```python
import torch

def _softmax(x, axis=-1):
    return torch.softmax(x, dim=axis)

def _gelu(x):
    return torch.nn.functional.gelu(x, approximate='tanh')

def _silu(x):
    return torch.nn.functional.silu(x)

def _sigmoid(x):
    return torch.sigmoid(x)

def _layernorm(x, axis=-1, eps=1e-05):
    m = x.mean(dim=axis, keepdim=True)
    v = x.var(dim=axis, keepdim=True, unbiased=False)
    return (x - m) / torch.sqrt(v + eps)

def _scatter_add(tgt, idx, src, axis=0):
    return tgt.clone().index_add_(axis, idx, src)

def _segment_sum(src, seg, n):
    out = torch.zeros((n,) + src.shape[1:], dtype=src.dtype)
    return out.index_add_(0, seg, src)

def _pad(x, pw):
    flat = tuple((v for pair in reversed(pw) for v in pair))
    return torch.nn.functional.pad(x, flat)
kernel_name = 'concat_heads__memory_aug_recurrent_mem_tr__ssm_conv_s5__prompt'

def setup_inputs():

    _w = lambda a: (lambda t: t.to(torch.bfloat16) if t.is_floating_point() else t)(torch.as_tensor(a))

    def _A_setup():
        B, S, Dm = (1, 2048, 640)
        H, Dh = (32, 192)
        M, seg = (8, 32)
        seg = min(seg, S)
        S = S // seg * seg
        return {'x': _w((lambda *s: torch.randn(*s, dtype=torch.bfloat16) * 0.05)(B, S, Dm)), 'mem0': _w((lambda *s: torch.randn(*s, dtype=torch.bfloat16) * 0.8)(B, M, Dm)), 'Wq': _w((lambda *s: torch.randn(*s, dtype=torch.bfloat16) * 1.6)(Dm, H, Dh) * Dm ** (-0.5)), 'Wk': _w((lambda *s: torch.randn(*s, dtype=torch.bfloat16) * 1.6)(Dm, H, Dh) * Dm ** (-0.5)), 'Wv': _w((lambda *s: torch.randn(*s, dtype=torch.bfloat16) * 0.8)(Dm, H, Dh) * Dm ** (-0.5)), 'Wo': _w((lambda *s: torch.randn(*s, dtype=torch.bfloat16) * 0.8)(H, Dh, Dm) * (H * Dh) ** (-0.5)), 'seg_len': seg}
    _A_in = _A_setup()

    def _B_setup():
        B, S, D = (1, 2048, 640)
        P = D
        Lambda_re = -0.5 * (lambda _x: torch.exp(torch.as_tensor(_x)))((lambda *s: torch.randn(*s, dtype=torch.bfloat16) * 0.8)(P))
        Lambda_im = (lambda *s: torch.randn(*s, dtype=torch.bfloat16) * 0.8)(P) * 1.0
        B_re = (lambda *s: torch.randn(*s, dtype=torch.bfloat16) * 0.8)(P, D) * D ** (-0.5)
        B_im = (lambda *s: torch.randn(*s, dtype=torch.bfloat16) * 0.8)(P, D) * D ** (-0.5)
        C_re = (lambda *s: torch.randn(*s, dtype=torch.bfloat16) * 0.8)(D, P) * P ** (-0.5)
        C_im = (lambda *s: torch.randn(*s, dtype=torch.bfloat16) * 0.8)(D, P) * P ** (-0.5)
        log_dt = (lambda *s: torch.randn(*s, dtype=torch.bfloat16) * 0.8)(P) * 0.3 - 2.0
        Dskip = (lambda *s: torch.randn(*s, dtype=torch.bfloat16) * 0.8)(D)
        return {'x': _w((lambda *s: torch.randn(*s, dtype=torch.bfloat16) * 0.05)(B, S, D)), 'Lambda_re': _w(Lambda_re), 'Lambda_im': _w(Lambda_im), 'B_re': _w(B_re), 'B_im': _w(B_im), 'C_re': _w(C_re), 'C_im': _w(C_im), 'log_dt': _w(log_dt), 'Dskip': _w(Dskip)}
    _B_in = _B_setup()
    return {'A_x': _A_in['x'], 'A_mem0': _A_in['mem0'], 'A_Wq': _A_in['Wq'], 'A_Wk': _A_in['Wk'], 'A_Wv': _A_in['Wv'], 'A_Wo': _A_in['Wo'], 'A_seg_len': _A_in['seg_len'], 'B_x': _B_in['x'], 'B_Lambda_re': _B_in['Lambda_re'], 'B_Lambda_im': _B_in['Lambda_im'], 'B_B_re': _B_in['B_re'], 'B_B_im': _B_in['B_im'], 'B_C_re': _B_in['C_re'], 'B_C_im': _B_in['C_im'], 'B_log_dt': _B_in['log_dt'], 'B_Dskip': _B_in['Dskip']}

def reference(A_x, A_mem0, A_Wq, A_Wk, A_Wv, A_Wo, A_seg_len, B_x, B_Lambda_re, B_Lambda_im, B_B_re, B_B_im, B_C_re, B_C_im, B_log_dt, B_Dskip):

    def _A_ref(x, mem0, Wq, Wk, Wv, Wo, seg_len):
        B, S, Dm = x.shape
        H, Dh = (Wq.shape[1], Wq.shape[2])
        M = mem0.shape[1]
        scale = Dh ** (-0.5)
        n_seg = S // seg_len
        L = M + seg_len
        idx = torch.arange(L)
        mask = (idx[:, None] < M) | (idx[:, None] >= idx[None, :])
        mem = mem0
        outs = []
        for s in range(n_seg):
            xs = x[:, s * seg_len:(s + 1) * seg_len, :].clone()
            h = torch.concatenate([mem, xs], axis=1)
            q = torch.einsum('btd,dhe->bhte', h, Wq)
            k = torch.einsum('btd,dhe->bhte', h, Wk)
            v = torch.einsum('btd,dhe->bhte', h, Wv)
            scores = torch.einsum('bhqe,bhke->bhqk', q, k) * scale
            scores = torch.where(mask[None, None], scores, -1000000000.0)
            p = _softmax(scores, axis=-1)
            o = torch.einsum('bhqk,bhke->bhqe', p, v)
            o = torch.einsum('bhte,hed->btd', o, Wo)
            mem = o[:, :M, :].clone()
            outs.append(o[:, M:, :])
        return torch.concatenate(outs, axis=1)

    def _B_ref(x, Lambda_re, Lambda_im, B_re, B_im, C_re, C_im, log_dt, Dskip):
        Bsz, L, H = x.shape
        Lam = Lambda_re + 1j * Lambda_im
        Bmat = B_re + 1j * B_im
        Cmat = C_re + 1j * C_im
        dt = torch.exp(log_dt)
        Lam_bar = torch.exp(dt * Lam)
        B_bar = ((Lam_bar - 1.0) / Lam)[:, None] * Bmat
        Bu = torch.einsum('bld,pd->blp', x + 0j, B_bar)
        h = torch.zeros_like(Bu[:, 0, :])
        hs = []
        for t in range(L):
            h = Lam_bar[None, :] * h + Bu[:, t, :]
            hs.append(h)
        hseq = torch.stack(hs, 1)
        y = 2.0 * torch.einsum('blp,dp->bld', hseq, Cmat).real + x * Dskip[None, None, :]
        return y
    a = _A_ref(A_x, A_mem0, A_Wq, A_Wk, A_Wv, A_Wo, A_seg_len)
    b = _B_ref(B_x, B_Lambda_re, B_Lambda_im, B_B_re, B_B_im, B_C_re, B_C_im, B_log_dt, B_Dskip)
    return torch.concatenate([a, b], axis=-1)
```

```python
import re

def _expand(tok):
    t = tok.strip()
    t = re.sub(r'^(neg|abs|sext)\((.*)\)$', r'\2', t)
    t = t.lstrip('-').strip('|')
    m = re.fullmatch(r'([vas])(\d+)', t)
    if m:
        return [t]
    m = re.fullmatch(r'([vas])\[(\d+):(\d+)\]', t)
    if m:
        return [f'{m.group(1)}{i}' for i in range(int(m.group(2)), int(m.group(3)) + 1)]
    if t == 'vcc':
        return ['vcc_lo', 'vcc_hi']
    if t == 'exec':
        return ['exec_lo', 'exec_hi']
    if t in ('vcc_lo', 'vcc_hi', 'exec_lo', 'exec_hi', 'm0', 'scc'):
        return [t]
    return []

def _split_ops(s):
    ops, mods, depth, cur = [], [], 0, ''
    for ch in s + ',':
        if ch in '[(':
            depth += 1
        elif ch in '])':
            depth -= 1
        if ch == ',' and depth == 0:
            parts = cur.split()
            if parts:
                ops.append(parts[0])
                mods += parts[1:]
            cur = ''
        else:
            cur += ch
    return ops, mods

TRANS = ('v_exp_f32', 'v_log_f32', 'v_rcp_f32', 'v_rsq_f32', 'v_sqrt_f32', 'v_sin_f32', 'v_cos_f32', 'v_rcp_iflag_f32')

class Ins:
    __slots__ = ('text', 'mn', 'ops', 'mods', 'kind', 'wr', 'rd', 'srcc', 'srcab', 'passes', 'dpp', 'trans', 'states',
                 'label', 'target', 'uncond', 'wide_store', 'store_data', 'ldsdma', 'comment', 'sdwa')
    def __init__(self, text, comment=None):
        self.text = text
        self.comment = comment
        self.label = None
        self.target = None
        self.uncond = False
        self.wr = set(); self.rd = set(); self.srcc = []; self.srcab = set()
        self.passes = 0; self.dpp = False; self.trans = False; self.states = 1
        self.wide_store = False; self.store_data = set(); self.ldsdma = False; self.sdwa = False
        t = text.strip()
        if t.endswith(':'):
            self.kind = 'label'; self.label = t[:-1]; self.states = 0; self.mn = ''; self.ops = []; self.mods = []
            return
        if t.startswith('.') or t.startswith(';') or not t:
            self.kind = 'dir'; self.states = 0; self.mn = ''; self.ops = []; self.mods = []
            return
        parts = t.split(None, 1)
        mn = parts[0]
        self.mn = mn
        ops, mods = _split_ops(parts[1]) if len(parts) > 1 else ([], [])
        self.ops, self.mods = ops, mods
        E = _expand
        if mn.startswith('v_mfma') or mn.startswith('v_smfmac'):
            self.kind = 'mfma'
            self.passes = 8 if '32x32' in mn else 4
            self.wr = set(E(ops[0]))
            self.srcab = set(E(ops[1])) | set(E(ops[2]))
            if mn.startswith('v_smfmac'):
                self.srcc = E(ops[0]); self.srcab |= set(E(ops[3]))
            else:
                self.srcc = E(ops[3])
            self.rd = self.srcab | set(self.srcc)
        elif mn.startswith('v_'):
            self.kind = 'valu'
            base = mn.replace('_e32', '').replace('_e64', '').replace('_dpp', '').replace('_sdwa', '')
            self.trans = base in TRANS
            self.dpp = mn.endswith('_dpp') or any(m.startswith(('row_', 'quad_perm', 'wave_')) for m in mods)
            self.sdwa = mn.endswith('_sdwa') and any(m.startswith('dst_sel:WORD') or m.startswith('dst_sel:BYTE') for m in mods)
            if base in ('v_nop',):
                pass
            elif base in ('v_swap_b32', 'v_permlane32_swap_b32', 'v_permlane16_swap_b32'):
                self.wr = set(E(ops[0])) | set(E(ops[1])); self.rd = set(self.wr)
            elif base.startswith(('v_add_co', 'v_sub_co', 'v_subrev_co', 'v_addc_co', 'v_subb_co', 'v_div_scale', 'v_mad_u64')):
                self.wr = set(E(ops[0])) | set(E(ops[1]))
                for o in ops[2:]: self.rd |= set(E(o))
            else:
                self.wr = set(E(ops[0]))
                for o in ops[1:]: self.rd |= set(E(o))
                if base.startswith(('v_fmac', 'v_dot2c', 'v_pk_fmac', 'v_writelane')) or self.dpp or self.sdwa:
                    self.rd |= self.wr
                if base.startswith('v_cmpx'):
                    self.wr |= {'exec_lo', 'exec_hi'}
        elif mn.startswith('ds_'):
            self.kind = 'ds'
            if mn.startswith(('ds_read', 'ds_bpermute', 'ds_permute', 'ds_swizzle')) or '_rtn' in mn:
                self.wr = set(E(ops[0]))
                for o in ops[1:]: self.rd |= set(E(o))
            else:
                for o in ops: self.rd |= set(E(o))
        elif mn.startswith(('buffer_', 'global_')):
            self.kind = 'vmem'
            if mn in ('buffer_wbl2', 'buffer_inv'):
                pass
            elif 'lds' in mods or '_lds_' in mn:
                self.ldsdma = True
                for o in ops: self.rd |= set(E(o))
                self.rd.add('m0')
            elif '_load' in mn:
                self.wr = set(E(ops[0]))
                for o in ops[1:]: self.rd |= set(E(o))
            elif '_atomic' in mn:
                for o in ops: self.rd |= set(E(o))
                if 'sc0' in mods:
                    self.wr = set(E(ops[0]))
            else:
                for o in ops: self.rd |= set(E(o))
                data = ops[0] if mn.startswith('buffer_') else ops[1]
                self.store_data = set(E(data))
                self.wide_store = mn.endswith(('x3', 'x4'))
        elif mn.startswith('s_'):
            self.kind = 'salu'
            if mn == 's_nop':
                self.states = int(ops[0], 0) + 1
            elif mn in ('s_branch',):
                self.target = ops[0]; self.uncond = True
            elif mn.startswith('s_cbranch'):
                self.target = ops[0]
            elif mn == 's_endpgm':
                self.uncond = True
            elif mn.startswith(('s_waitcnt', 's_barrier', 's_sleep', 's_setprio', 's_cmp', 's_bitcmp')):
                for o in ops: self.rd |= set(E(o))
            else:
                if ops:
                    self.wr = set(E(ops[0]))
                    for o in ops[1:]: self.rd |= set(E(o))
                if 'saveexec' in mn:
                    self.wr |= {'exec_lo', 'exec_hi'}
        else:
            raise ValueError('unknown instruction: ' + text)

def _isv(r): return r[0] in 'va' and r[1].isdigit()
def _iss(r): return (r[0] == 's' and r[1].isdigit()) or r.startswith('vcc')

def need_states(p, c):
    n = 0
    if p.kind == 'valu':
        vw = {r for r in p.wr if _isv(r)}
        sw = {r for r in p.wr if _iss(r)}
        if c.kind == 'mfma' and vw & c.rd: n = max(n, 2)
        if c.kind == 'valu':
            if c.dpp and vw & c.rd: n = max(n, 2)
            if c.mn.startswith('v_permlane') and vw & c.rd: n = max(n, 2)
            if c.mn.startswith(('v_readlane', 'v_readfirstlane')) and vw & c.rd: n = max(n, 1)
            if p.trans and not c.trans and vw & c.rd: n = max(n, 1)
            if p.sdwa and vw & (c.rd | c.wr): n = max(n, 1)
            if sw & c.rd:
                n = max(n, 4 if c.mn.startswith(('v_readlane', 'v_writelane', 'v_div_fmas')) else 2)
            if 'exec_lo' in p.wr:
                n = max(n, 5 if c.dpp else (4 if c.mn.startswith(('v_readlane', 'v_readfirstlane', 'v_writelane', 'v_permlane')) else 0))
        if p.trans and c.kind in ('vmem', 'ds') and vw & c.rd: n = max(n, 1)
        if c.kind == 'vmem' and sw & c.rd: n = max(n, 5)
        if c.kind == 'salu' and sw & c.rd: n = max(n, 1)
        if c.kind == 'mfma' and 'exec_lo' in p.wr: n = max(n, 4)
    if p.kind == 'mfma':
        far = p.passes + 4
        if c.kind == 'mfma':
            if p.wr & c.srcab: n = max(n, far)
            cs = set(c.srcc)
            if p.wr & cs:
                if not (cs == p.wr and c.passes == p.passes): n = max(n, p.passes + 2)
            elif p.wr & c.wr: n = max(n, p.passes + 2)
        elif c.kind in ('valu', 'vmem', 'ds'):
            if p.wr & (c.rd | c.wr): n = max(n, far)
            if c.kind == 'valu' and set(p.srcc) & c.wr: n = max(n, p.passes - 1)
    if p.kind == 'salu' and 'm0' in p.wr and c.ldsdma: n = max(n, 1)
    if p.kind == 'vmem' and p.wide_store and p.store_data & c.wr:
        n = max(n, 2 if c.kind in ('valu', 'mfma') else 1)
    return n

MAXLOOK = 13

class Asm:
    def __init__(self):
        self.ins = []
        self._lab = 0
    def __call__(self, text, comment=None):
        for line in text.split('\n'):
            line = line.split(';')[0].strip() if not line.strip().startswith(';') else line.strip()
            if line:
                self.ins.append(Ins(line, comment))
    def label(self, name):
        self.ins.append(Ins(name + ':'))
    def newlabel(self, stem='L'):
        self._lab += 1
        return f'{stem}_{self._lab}'
    def comment(self, s):
        self.ins.append(Ins('; ' + s))

    def fix_hazards(self):
        total = 0
        out = []
        for c in self.ins:
            if c.kind not in ('label', 'dir') and not (c.kind == 'salu' and not c.rd):
                acc = 0; worst = 0; j = len(out) - 1
                while j >= 0 and acc < MAXLOOK:
                    p = out[j]
                    if p.kind not in ('label', 'dir'):
                        if p.uncond: break
                        nd = need_states(p, c)
                        if nd > acc: worst = max(worst, nd - acc)
                        acc += p.states
                    j -= 1
                if worst > 0:
                    out.append(Ins(f's_nop {worst-1}', 'auto hazard pad')); total += 1
            out.append(c)
        self.ins = out
        while True:
            ins = self.ins
            labpos = {x.label: i for i, x in enumerate(ins) if x.kind == 'label'}
            jumps = {}
            for i, x in enumerate(ins):
                if x.target is not None and x.target in labpos:
                    jumps.setdefault(labpos[x.target], []).append(i)
            inserts = []
            for i, c in enumerate(ins):
                if c.kind in ('label', 'dir'): continue
                if c.kind == 'salu' and not c.rd: continue
                worst = 0
                stack = [(i - 1, 0)]
                seen = set()
                while stack:
                    j, acc = stack.pop()
                    while j >= 0 and acc < MAXLOOK:
                        if (j, acc) in seen: break
                        seen.add((j, acc))
                        p = ins[j]
                        if p.kind == 'label':
                            for src in jumps.get(j, []):
                                stack.append((src, acc))
                            k = j - 1
                            while k >= 0 and ins[k].kind in ('dir',): k -= 1
                            if k >= 0 and ins[k].kind != 'label' and ins[k].uncond: break
                            j -= 1
                            continue
                        if p.kind == 'dir':
                            j -= 1
                            continue
                        nd = need_states(p, c)
                        if nd > acc: worst = max(worst, nd - acc)
                        acc += p.states
                        j -= 1
                if worst > 0:
                    inserts.append((i, worst))
            if not inserts: break
            out = []
            last = -100
            insd = dict()
            for i, w in inserts:
                if i - last > MAXLOOK + 2:
                    insd[i] = w; last = i
            for i, x in enumerate(ins):
                if i in insd:
                    out.append(Ins(f's_nop {insd[i]-1}', 'auto hazard pad')); total += 1
                out.append(x)
            self.ins = out
        return total

    def text(self):
        lines = []
        for x in self.ins:
            if x.kind == 'label': lines.append(x.text)
            elif x.kind == 'dir': lines.append(x.text)
            else: lines.append('    ' + x.text + (f'   ; {x.comment}' if x.comment else ''))
        return '\n'.join(lines) + '\n'

def v(i, n=1): return f'v{i}' if n == 1 else f'v[{i}:{i+n-1}]'
def a(i, n=1): return f'a{i}' if n == 1 else f'a[{i}:{i+n-1}]'
def s(i, n=1): return f's{i}' if n == 1 else f's[{i}:{i+n-1}]'
```

```python
MiB = 1 << 20
WS_BYTES = 268435456
KQ_OFF = 0
KQ_SH = 24576
KQ_S = 32 * KQ_SH
VW_OFF = 48 * MiB
VW_X = 40 * 16 * 1024
VW_S = 2 * VW_X
TP_OFF = 128 * MiB
T_OFF = 172 * MiB
T_X = 40 * 4096
T_S = 2 * T_X
MI_OFF = 194 * MiB
MI_S = 65536
TF_OFF = 150 * MiB
PI_OFF = 153 * MiB
PI_S = 2 * 10240
PX_OFF = 155 * MiB
PX_S = 32 * 2048
PXM_OFF = 159 * MiB
PXM_S = 16384
HT_OFF = 160 * MiB
SE_OFF = 166 * MiB
STAMP_OFF = 200 * MiB
RT_OFF = 240 * MiB
DBG_CENSUS = 0
DBG_PROG = 192
DBG_NEAR = 56
DBG_QUEUE = 60
DBG_SF1 = 16
DBG_SF2 = 36
DBG_MASK = 64
DBG_VCNT = 200
KA = dict(A_x=0, mem0=8, Wq=16, Wk=24, Wv=32, Wo=40, seg=48, B_x=56, Lre=64, Lim=72, Bre=80, Bim=88,
          Cre=96, Cim=104, ldt=112, Dsk=120, out=128, dbg=136, ws=144)
W_BYTES = 640 * 6144 * 2
X_BYTES = 2048 * 640 * 2
import os
NR = int(os.environ.get('NR', '4'))
OUT_BYTES = 2048 * 1280 * 4
```

```python
from asmgen import *
from layout import *

RIMG = 0
PIMG = 10240
QIMG = 20480
KIMG = 23552
WRES = 26624
BUF = 108544
LDS_REC = 157696

SRD_WS, SRD_DBG, SRD_W1, SRD_W2, SRD_AUX = 8, 12, 16, 20, 24
sW, sX, sHL, sH, sS, sBUD = 28, 29, 30, 31, 32, 33
sT0, sT1, sT2, sT3 = 34, 35, 36, 37
sML, sMR = 38, 39
sA, sB, sC, sD, sE, sF, sG = 40, 41, 42, 43, 44, 45, 46
sCSC = 47
sXCC = 48
sUNIT = 49
sM2 = 50
sSTP = 52
sTM = 54
vTRB, vIDX, vTRA, vP2, vAIW, vL16, vP0, vWR, vBUFR, v9, v10, v11 = range(12)
sH1, sH2, sH3 = 56, 57, 58
bD, bE, bB, bC, bML, bMR, sD2, sE2, sTP = 60, 61, 62, 63, 64, 65, 66, 67, 59
import os
if os.environ.get('NOSTREAM'):
    KQ_S = 0; VW_S = 0
CSC = 192 ** -0.5 * 1.4426950408889634

import struct
def f2u(x): return struct.unpack('<I', struct.pack('<f', x))[0]

def srd(A, d, lo, nbytes):
    A(f's_mov_b32 s{d}, s{lo}')
    A(f's_mov_b32 s{d+1}, s{lo+1}')
    A(f's_mov_b32 s{d+2}, {nbytes:#x}')
    A(f's_mov_b32 s{d+3}, 0x20000')

def lds_frags(vo):
    return ([(c, 2) for c in range(4, 10)] if vo else []) + [(c, 2) for c in range(10, 20)]
def wreg(c, t, vo=False):
    lf = lds_frags(vo)
    regs = [(c_, t_) for c_ in range(20) for t_ in range(3) if (c_, t_) not in lf]
    i = regs.index((c, t))
    return ('a', 8 * i) if i < 32 else ('v', 256 - 8 * (len(regs) - i))
def R(f, base, n): return f'{f}[{base}:{base+n-1}]'

class Lg:
    def __init__(self, A): self.A = A; self.q = []
    def op(self, text, tag=None):
        self.A(text); self.q.append(tag)
    def wait(self, tag):
        idx = [i for i, t in enumerate(self.q) if t == tag]
        if not idx: return
        n = len(self.q) - 1 - idx[-1]
        self.A(f's_waitcnt lgkmcnt({min(n, 15)})')
        self.q = self.q[len(self.q) - min(n, 15):] if n else []
    def drain(self):
        self.A('s_waitcnt lgkmcnt(0)'); self.q = []

class F:
    def __init__(self, e, text, tag=None, id=None, after=()):
        self.e, self.text, self.tag, self.id, self.after = e, text, tag, id, tuple(after)
        mn = text.split()[0]
        self.cls = 'lds' if mn.startswith('ds_') else 'valu' if mn.startswith('v_') else 'vmem' if mn.startswith('buffer_') else 'salu'

def run_stream(A, lg, items, fillers, cap=None):
    cap = cap or dict(lds=1, valu=1, vmem=1, salu=2)
    pend = sorted(fillers, key=lambda f: f.e)
    done = {}
    def issue(f, gap):
        for a_ in f.after:
            assert a_ in done, (f.text, a_)
        if f.cls == 'lds': lg.op(f.text, f.tag)
        else: A(f.text)
        if f.id is not None: done[f.id] = gap
        pend.remove(f)
    for f in [f for f in pend if f.e < 0]: issue(f, -1)
    def gap(i, slack=0):
        n = 0
        for cls in ('lds', 'valu', 'salu', 'vmem'):
            k = 0
            for f in [f for f in pend if f.cls == cls]:
                if k >= cap[cls]: break
                if f.e > i or any(a_ not in done or done[a_] >= i for a_ in f.after): break
                issue(f, i); k += 1; n += 1
        return n
    for i, (text, need) in enumerate(items):
        for tg in need:
            for f in [f for f in pend if f.tag == tg]:
                assert f.e < i, (f.text, f.e, i)
                issue(f, i - 1)
            lg.wait(tg)
        A(text)
        gap(i)
    i = len(items)
    cap = dict(lds=2, valu=2, vmem=2, salu=2)
    while pend:
        gap(i); i += 1
        assert i < 1000

def smf(acc, afr, bop):
    return f'v_smfmac_f32_16x16x64_bf16 {v(acc,4)}, {v(afr,4)}, {bop}, v{vIDX}'

def stamp(A, cfg, idx):
    if not cfg.get('stamps') or idx == 9.5: return
    A(f's_memtime s[{70+2*idx}:{71+2*idx}]')
    if idx == 0: A(f's_memrealtime s[{70+2*11}:{71+2*11}]')
    if idx == 0: A(f's_mov_b32 s{70+2*9}, s{sBUD}')
    if idx == 1: A(f's_sub_u32 s{70+2*10}, s{70+2*9}, s{sBUD}')

def rt_stamp(A, cfg, sidx, vt, first=False):
    if not cfg.get('rt'): return
    if first:
        A('s_lshl_b32 s97, s2, 8')
        A(f's_add_u32 s97, s97, {RT_OFF}')
    A('s_memrealtime s[98:99]')
    A('s_waitcnt lgkmcnt(0)')
    A(f'v_mov_b32 v{vt}, s98')
    A(f'buffer_store_dword v{vt}, off, s[{SRD_WS}:{SRD_WS+3}], s97')
    A('s_add_u32 s97, s97, 4')

def stamp_flush(A, cfg, n, r):
    if not cfg.get('stamps'): return
    A('s_waitcnt lgkmcnt(0)')
    for i in range(12):
        A(f'v_writelane_b32 v{r}, s{70+2*i}, {i}')
    A(f'v_lshrrev_b32 v{r+1}, 2, v{vL16}')
    A(f'buffer_store_dword v{r}, v{r+1}, s[{SRD_WS}:{SRD_WS+3}], s{sSTP} offen')
    A(f's_add_u32 s{sSTP}, s{sSTP}, 256')

WS = f's[{SRD_WS}:{SRD_WS+3}]'

def retry_tail(A, tmp, L, D):
    A(f'v_cmp_eq_u32 vcc, -1, v{tmp}')
    A(f's_cbranch_vccz {D}')
    A(f's_sub_u32 s{sBUD}, s{sBUD}, 1')
    A(f's_cbranch_scc0 {L}')
    A(f's_mov_b32 s{sBUD}, 0')

def ld10(A, soff, rb, skip_first=False):
    if not skip_first: A(f'buffer_load_dwordx4 {v(rb,4)}, v{vP0}, {WS}, s{soff} offen sc1')
    A(f'buffer_load_dwordx4 {v(rb+4,4)}, v{vP0}, {WS}, s{soff} offen offset:1024 sc1')
    A(f'buffer_load_dwordx2 {v(rb+8,2)}, v{vP2}, {WS}, s{soff} offen offset:2048 sc1')

def chk10(A, rb, tmp, behind=0):
    A(f's_waitcnt vmcnt({2+behind})')
    A(f'v_max3_u32 v{tmp}, v{rb}, v{rb+1}, v{rb+2}')
    A(f's_waitcnt vmcnt({1+behind})')
    A(f'v_max3_u32 v{tmp+1}, v{rb+4}, v{rb+5}, v{rb+6}')
    A(f'v_max3_u32 v{tmp}, v{tmp}, v{rb+3}, v{rb+7}')
    A(f's_waitcnt vmcnt({behind})')
    A(f'v_max3_u32 v{tmp+1}, v{tmp+1}, v{rb+8}, v{rb+9}')
    A(f'v_max_u32 v{tmp}, v{tmp}, v{tmp+1}')

def put10(A, rb, img, first=True):
    if first: A(f'ds_write_b128 v{vP0}, {v(rb,4)} offset:{img}')
    A(f'ds_write_b128 v{vP0}, {v(rb+4,4)} offset:{img + 1024}')
    A(f'ds_write_b64 v{vP2}, {v(rb+8,2)} offset:{img + 2048}')

def fetch_m(A, cfg, lf, lr, rem, tmp, filler1, filler2, extra=None):
    LL = A.newlabel('ml'); LC = A.newlabel('mlc'); LD = A.newlabel('mld')
    RL = A.newlabel('mr'); RC = A.newlabel('mrc'); RR = A.newlabel('mrr'); D = A.newlabel('mrd')
    ld10(A, sML, lr)
    filler1()
    A(f's_branch {LC}')
    A.label(LL)
    ld10(A, sML, lr)
    A.label(LC)
    chk10(A, lr, tmp)
    retry_tail(A, tmp, LL, LD)
    A.label(LD)
    A('s_barrier', 'B0')
    ld10(A, sMR, rem)
    stamp(A, cfg, 0)
    for i in range(10):
        A(f'v_lshlrev_b32 v{lf+2*i}, 16, v{lr+i}')
        A(f'v_and_b32 v{lf+2*i+1}, 0xffff0000, v{lr+i}')
    filler2()
    def process(behind):
        for part, (o, n) in enumerate(((0, 4), (4, 4), (8, 2))):
            A(f's_waitcnt vmcnt({2-part+behind})')
            r = rem + o
            if part == 0:
                A(f'v_cmp_eq_u32 vcc, -1, v{r+3}')
                A(f'v_max3_u32 v{tmp}, v{r}, v{r+1}, v{r+2}')
                A(f's_cbranch_vccnz {RR}')
            elif part == 1:
                A(f'v_max3_u32 v{tmp+1}, v{r}, v{r+1}, v{r+2}')
                A(f'v_max_u32 v{tmp}, v{tmp}, v{r+3}')
            else:
                A(f'v_max3_u32 v{tmp+1}, v{tmp+1}, v{r}, v{r+1}')
            for i in range(n):
                A(f'v_lshlrev_b32 v{lr+2*i}, 16, v{r+i}')
                A(f'v_and_b32 v{lr+2*i+1}, 0xffff0000, v{r+i}')
            if part == 2: A(f'v_max_u32 v{tmp}, v{tmp}, v{tmp+1}')
            for i in range(n):
                A(f'v_pk_add_f32 {v(lr+2*i,2)}, {v(lr+2*i,2)}, {v(lf+2*(o+i),2)}')
            if part == 2: A(f'v_cmp_eq_u32 vcc, -1, v{tmp}')
            for i in range(n):
                A(f'v_cvt_pk_bf16_f32 v{r+i}, v{lr+2*i}, v{lr+2*i+1}')
            if n == 4: A(f'ds_write_b128 v{vP0}, {v(r,4)} offset:{RIMG + part*1024}')
            else: A(f'ds_write_b64 v{vP2}, {v(r,2)} offset:{RIMG + 2048}')
    if extra:
        A(f's_cmp_eq_u32 s{sT2}, 0')
        A(f's_cbranch_scc1 {RC}')
        process(extra[1])
        A(f's_cbranch_vccz {D}')
        A(f's_branch {RR}')
    else:
        A(f's_branch {RC}')
    A.label(RR)
    A(f's_sub_u32 s{sBUD}, s{sBUD}, 1')
    A(f's_cbranch_scc0 {RL}')
    A(f's_mov_b32 s{sBUD}, 0')
    A('s_waitcnt vmcnt(0)')
    A(f's_branch {D}')
    A.label(RL)
    ld10(A, sMR, rem)
    A.label(RC)
    process(0)
    A(f's_cbranch_vccnz {RR}')
    A.label(D)
    stamp(A, cfg, 1)

def wait_mask(A, cfg, blk_s, word, sbits, tmpv):
    if cfg.get('noflags'): return
    L = A.newlabel('fl'); D = A.newlabel('fld')
    A(f's_lshl_b32 s{sT0}, s{blk_s}, 3')
    A(f's_add_u32 s{sT0}, s{sT0}, {DBG_MASK + 4*word}')
    A(f'v_mov_b32 v{tmpv+1}, 0')
    A.label(L)
    A(f'buffer_load_dword v{tmpv}, v{tmpv+1}, s[{SRD_DBG}:{SRD_DBG+3}], s{sT0} offen sc1')
    A('s_waitcnt vmcnt(0)')
    A(f'v_readfirstlane_b32 s{sT1}, v{tmpv}')
    A(f's_and_b32 s{sT1}, s{sT1}, s{sbits}')
    A(f's_cmp_eq_u32 s{sT1}, s{sbits}')
    A(f's_cbranch_scc1 {D}')
    A('s_sleep 4')
    A(f's_sub_u32 s{sBUD}, s{sBUD}, 1')
    A(f's_cbranch_scc0 {L}')
    A(f's_mov_b32 s{sBUD}, 0')
    A.label(D)

def common_setup(A, cfg):
    A(f's_load_dwordx2 s[4:5], s[0:1], {KA["ws"]}')
    A(f's_load_dwordx2 s[6:7], s[0:1], {KA["dbg"]}')
    A(f's_load_dwordx2 s[56:57], s[0:1], {KA["mem0"]}')
    A(f's_load_dwordx8 s[60:67], s[0:1], {KA["Wq"]}')
    A(f'v_lshrrev_b32 v1, 6, v0')
    A(f'v_readfirstlane_b32 s{sW}, v1')
    A(f's_and_b32 s{sX}, s2, 7')
    A(f's_lshr_b32 s{sT0}, s2, 3')
    A(f's_and_b32 s{sHL}, s{sT0}, 15')
    A(f's_lshl_b32 s{sH}, s{sX}, 4')
    A(f's_add_u32 s{sH}, s{sH}, s{sHL}')
    A(f's_mov_b32 s{sS}, 0')
    A(f's_mov_b32 s{sBUD}, 0x10000')
    A(f's_mov_b32 s{sCSC}, {f2u(CSC):#x}')
    A(f's_getreg_b32 s{sXCC}, hwreg(HW_REG_XCC_ID)')
    A(f's_and_b32 s{sXCC}, s{sXCC}, 7')
    A('s_waitcnt lgkmcnt(0)')
    srd(A, SRD_WS, 4, WS_BYTES)
    srd(A, SRD_DBG, 6, 256)
    srd(A, SRD_AUX, 56, 8 * 640 * 2)
    A('v_mov_b32 v12, v0')
    A('v_and_b32 v13, 63, v0')
    A('v_and_b32 v14, 15, v13')
    A('v_lshrrev_b32 v15, 4, v13')
    A('v_bfe_u32 v16, v14, 1, 1')
    A('v_mul_u32_u24 v17, 0x5555, v16')
    A(f'v_add_u32 v{vIDX}, 0x8888, v17')
    A(f'v_lshlrev_b32 v{vTRA}, 8, v15')
    A('v_and_b32 v17, 3, v14')
    A(f'v_lshl_add_u32 v{vTRA}, v17, 6, v{vTRA}')
    A('v_lshrrev_b32 v17, 2, v14')
    A(f'v_lshl_add_u32 v{vTRA}, v17, 3, v{vTRA}')
    A('v_and_b32 v17, 1, v15')
    A(f'v_lshl_add_u32 v{vTRA}, v17, 5, v{vTRA}')
    A(f'v_xor_b32 v{vTRB}, 32, v{vTRA}')
    A(f'v_lshlrev_b32 v{vAIW}, 2, v12')
    A(f's_and_b32 s{sT0}, s{sW}, 1')
    A(f's_lshl_b32 s{sT0}, s{sT0}, 5')
    A(f'v_xor_b32 v{vAIW}, s{sT0}, v{vAIW}')
    A(f'v_lshlrev_b32 v{vL16}, 4, v13')
    A(f's_mul_i32 s{sT0}, s{sW}, 2560')
    A(f'v_add_u32 v{vP0}, s{sT0}, v{vL16}')
    A(f'v_lshl_add_u32 v{vP2}, v13, 3, s{sT0}')
    A(f's_mul_i32 s{sML}, s{sX}, {2*MI_C}')
    A(f's_add_u32 s{sML}, s{sML}, {MI_OFF}')
    A(f's_xor_b32 s{sT1}, s{sX}, 1')
    A(f's_mul_i32 s{sMR}, s{sT1}, {2*MI_C}')
    A(f's_add_u32 s{sMR}, s{sMR}, {MI_OFF + MI_C}')
    A(f's_mul_i32 s{sT0}, s{sW}, 20480')
    A(f's_add_u32 s{sT0}, s{sT0}, {WRES}')
    A(f'v_add_u32 v{vWR}, s{sT0}, v{vL16}')
    if cfg.get('stamps'):
        A(f's_lshl_b32 s{sSTP}, s2, 2')
        A(f's_add_u32 s{sSTP}, s{sSTP}, s{sW}')
        A(f's_lshl_b32 s{sSTP}, s{sSTP}, 14')
        A(f's_add_u32 s{sSTP}, s{sSTP}, {STAMP_OFF}')

def load_weights(A, cfg, vo):
    for j in range(3):
        A(f'v_add_u32 v20, {64*j}, v13')
        A('v_mul_u32_u24 v21, 0xaaab, v20')
        A('v_lshrrev_b32 v21, 20, v21')
        A('v_mul_u32_u24 v22, 24, v21')
        A('v_sub_u32 v22, v20, v22')
        A('v_mul_u32_u24 v21, 12288, v21')
        A(f'v_lshl_add_u32 v{16+j}, v22, 4, v21')
    A(f's_mul_i32 s{sA}, s{sW}, {16*12288}')
    A(f's_mul_i32 s{sT0}, s{sH}, 384')
    A(f's_add_u32 s{sA}, s{sA}, s{sT0}')
    A('v_lshrrev_b32 v21, 3, v13')
    A('v_mul_u32_u24 v21, 1280, v21')
    A('v_and_b32 v22, 7, v13')
    A('v_lshl_add_u32 v19, v22, 4, v21')
    A(f's_mul_i32 s{sB}, s{sW}, {48*1280}')
    A(f's_mul_i32 s{sT0}, s{sH}, {192*1280}')
    A(f's_add_u32 s{sB}, s{sB}, s{sT0}')
    A(f's_mul_i32 s{sC}, s{sW}, 6144')
    A('v_lshrrev_b32 v21, 2, v14')
    A('v_lshl_add_u32 v21, v15, 3, v21')
    A('v_and_b32 v22, 3, v14')
    A('v_lshlrev_b32 v22, 3, v22')
    A(f's_lshl_b32 s{sT0}, s{sW}, 5')
    A(f'v_add_u32 v22, s{sT0}, v22')
    A('v_mul_u32_u24 v23, 384, v21')
    A('v_add_u32 v23, v23, v22')
    A('v_lshl_add_u32 v24, v21, 7, v22')
    def issue(c):
        slot = (c % 6) * 24576
        typeB = vo and c >= 10
        for j in range(6):
            A(f's_add_u32 m0, s{sC}, {slot + j*1024}')
            if typeB:
                A(f's_add_u32 s{sT0}, s{sB}, {(c-10)*128 + j*8*1280}')
                A(f'buffer_load_dwordx4 v19, s[{SRD_W2}:{SRD_W2+3}], s{sT0} offen lds')
            else:
                sr = SRD_W1 if c < 10 else SRD_W2
                A(f's_add_u32 s{sT0}, s{sA}, {((c%10)*64 + (j//3)*8)*12288}')
                A(f'buffer_load_dwordx4 v{16+j%3}, s[{sr}:{sr+3}], s{sT0} offen lds')
    for c in range(5): issue(c)
    for c in range(20):
        outstanding = min(20, c + 5) - c - 1
        A(f's_waitcnt vmcnt({6*outstanding}) lgkmcnt(0)')
        A('s_barrier')
        if c + 5 < 20: issue(c + 5)
        slot = (c % 6) * 24576
        typeB = vo and c >= 10
        A(f'v_add_u32 v25, {slot}, v{24 if typeB else 23}')
        for t in range(3):
            f, base = ('v', 32 + 8 * lds_frags(vo).index((c, t))) if (c, t) in lds_frags(vo) else wreg(c, t, vo)
            for rd in range(4):
                krow = 32 * (rd >> 1) + 4 * (rd & 1)
                off = (64 * t + krow) * 128 if typeB else krow * 384 + t * 128
                A(f'ds_read_b64_tr_b16 {R(f, base+2*rd, 2)}, v25 offset:{off}')
    A('s_waitcnt lgkmcnt(0)')
    A('s_barrier')
    for j in range(len(lds_frags(vo))):
        A(f'ds_write_b128 v{vWR}, {v(32+8*j,4)} offset:{j*2048}')
        A(f'ds_write_b128 v{vWR}, {v(36+8*j,4)} offset:{j*2048+1024}')
    A('s_waitcnt lgkmcnt(0)')

def init_images(A):
    A('v_lshrrev_b32 v17, 6, v12')
    A('v_lshl_add_u32 v21, v17, 4, v14')
    A('v_lshlrev_b32 v21, 1, v21')
    A('v_mul_u32_u24 v22, 2560, v15')
    A('v_add_u32 v21, v21, v22')
    for j in range(10):
        A(f'buffer_load_ushort v{32+2*j}, v21, s[{SRD_AUX}:{SRD_AUX+3}], 0 offen offset:{j*128}')
        A(f'buffer_load_ushort v{33+2*j}, v21, s[{SRD_AUX}:{SRD_AUX+3}], 0 offen offset:{j*128+1280}')
    A(f'v_mov_b32 v22, v{vAIW}')
    A('v_mov_b32 v23, 0')
    A('s_waitcnt vmcnt(0)')
    for j in range(10):
        A(f'v_lshl_or_b32 v{32+2*j}, v{33+2*j}, 16, v{32+2*j}')
        A(f'ds_write_b32 v22, v{32+2*j} offset:{RIMG + j*1024}')

def census(A, cfg, fast_label, slow_label):
    A('s_waitcnt vmcnt(0) lgkmcnt(0)')
    A('s_barrier')
    skip = A.newlabel('cens')
    A(f's_cmp_lg_u32 s{sW}, 0')
    A(f's_cbranch_scc1 {skip}')
    A(f's_lshl_b32 s{sT0}, s{sXCC}, 3')
    A(f's_lshl_b64 s[{sM2}:{sM2+1}], 1, s{sT0}')
    A(f'v_mov_b32 v16, s{sM2}')
    A(f'v_mov_b32 v17, s{sM2+1}')
    A(f's_lshl_b32 s{sT0}, s{sX}, 3')
    A(f'v_mov_b32 v18, s{sT0}')
    A('s_mov_b64 exec, 1')
    A(f'buffer_atomic_add_x2 v[16:17], v18, s[{SRD_DBG}:{SRD_DBG+3}], 0 offen offset:{DBG_CENSUS} sc1')
    A('s_mov_b64 exec, -1')
    A.label(skip)
    L = A.newlabel('cw'); D = A.newlabel('cwd')
    A('v_mov_b32 v20, 0')
    A.label(L)
    A(f'buffer_load_dwordx4 v[16:19], v20, s[{SRD_DBG}:{SRD_DBG+3}], 0 offen offset:{DBG_CENSUS} sc1')
    A('s_waitcnt vmcnt(0)')
    A('v_sad_u8 v21, v16, 0, 0')
    A('v_sad_u8 v21, v17, 0, v21')
    A('v_sad_u8 v21, v18, 0, v21')
    A('v_sad_u8 v21, v19, 0, v21')
    A(f'v_readfirstlane_b32 s{sT0}, v21')
    A(f's_cmp_eq_u32 s{sT0}, 64')
    A(f's_cbranch_scc1 {D}')
    A('s_sleep 4')
    A(f's_sub_u32 s{sBUD}, s{sBUD}, 1')
    A(f's_cbranch_scc0 {L}')
    A(f's_mov_b32 s{sBUD}, 0')
    A.label(D)
    A(f'v_readfirstlane_b32 s{sA}, v16')
    A(f'v_readfirstlane_b32 s{sB}, v17')
    A(f'v_readfirstlane_b32 s{sC}, v18')
    A(f'v_readfirstlane_b32 s{sD}, v19')
    A(f's_cmp_eq_u32 s{sX}, 0')
    A(f's_cselect_b32 s{sM2}, s{sA}, s{sC}')
    A(f's_cselect_b32 s{sM2+1}, s{sB}, s{sD}')
    A(f's_lshl_b32 s{sT0}, s{sXCC}, 3')
    A(f's_lshr_b64 s[{sM2}:{sM2+1}], s[{sM2}:{sM2+1}], s{sT0}')
    A(f's_and_b32 s{sT0}, s{sM2}, 0xff')
    A(f's_cmp_eq_u32 s{sT0}, {32 if not cfg.get("forceslow") else 77}')

def ring(A, dst, base, ahead, stride):
    if ahead:
        A(f's_add_u32 s{sT0}, s{sS}, {ahead}')
        A(f's_and_b32 s{sT0}, s{sT0}, {NR-1}')
    else:
        A(f's_and_b32 s{sT0}, s{sS}, {NR-1}')
    A(f's_mul_i32 s{sT0}, s{sT0}, {stride}')
    A(f's_add_u32 s{dst}, s{base}, s{sT0}')

def zero(A, base, n):
    i = base
    while i < base + n:
        if i % 2 == 0 and i + 1 < base + n:
            A(f'v_mov_b64 {v(i,2)}, 0'); i += 2
        else:
            A(f'v_mov_b32 v{i}, 0'); i += 1

def atr(e, dst, off, tag):
    return [F(e, f'ds_read_b64_tr_b16 {v(dst+2*u,2)}, v{(vTRA, vTRB)[u]} offset:{off}', tag) for u in range(2)]

def wfrag_fill(j, slot, e):
    return [F(e, f'ds_read_b128 {v(slot,4)}, v{vWR} offset:{j*2048}', ('W', j)),
            F(e, f'ds_read_b128 {v(slot+4,4)}, v{vWR} offset:{j*2048+1024}', ('W', j))]

KACC, QAW, QWW, PRE, QACC, LOC8 = 12, 24, 40, 64, 100, 92
DUMP = LDS_REC
NT = os.environ.get('NT', ' nt')
VWD = int(os.environ.get('VWD', '1'))
LINK = [1, 3, 5, 7, 8, 9]

def kx_dst(j):
    step, kt = j >> 1, j & 1
    return PRE + 16 * (step >> 1) + 8 * kt + 4 * (step & 1)

def qk_bop(ph, k, t, slot):
    if ph == 1 and t == 2: return v(QWW + 8 * slot, 8)
    f, b = wreg(10 * ph + k, t)
    return R(f, b, 8)

def qk_remote(A, lg, cfg):
    order = [(0, 0), (0, 1)]
    for j in range(8): order += [(0, j + 2), (1, j)]
    order += [(1, 8), (1, 9)]
    items, kend = [], {}
    for ph, k in order:
        for t in range(3):
            need = [('A', k)] if (ph, t) == (0, 0) else []
            if (ph, t) == (1, 2): need.append(('W', k))
            items.append((smf((QACC if ph == 0 else KACC) + 4 * t, QAW + 4 * (k % 4), qk_bop(ph, k, t, k % 3)), need))
        if ph == 1: kend[k] = len(items) - 1
    fl = []
    for k in range(10):
        fl += atr(-1 if k < 3 else (0 if k == 3 else kend[k - 4]), QAW + 4 * (k % 4), RIMG + k * 1024, ('A', k))
        fl += wfrag_fill(k, QWW + 8 * (k % 3), kend[k - 3] + 1 if k >= 3 else 2 + 2 * k)
    fl.append(F(-1, f's_mov_b32 m0, {DUMP}'))
    fl.append(F(-1, f'v_lshlrev_b32 v{QWW+23}, 3, v{vL16}'))
    fl.append(F(0, f'buffer_load_dword v{QWW+23}, {WS}, s{sH1} offen sc1 lds'))
    fl.append(F(0, f'v_mov_b32 v{QWW+22}, s{sS}', id='pg'))
    fl.append(F(1, f'buffer_store_byte v{QWW+22}, off, s[{SRD_DBG}:{SRD_DBG+3}], s{bC} sc1', after=['pg']))
    for t in range(3):
        b = QACC + 4 * t
        fl.append(F(52 + t, f'v_add_f32 v{b}, v{b}, v{b+2}'))
        fl.append(F(52 + t, f'v_add_f32 v{b+1}, v{b+1}, v{b+3}', id=('a', t)))
    for t in range(3):
        b = QACC + 4 * t
        fl.append(F(55, f'v_cvt_pk_bf16_f32 v{b}, v{b}, v{b+1}', id=('c', t), after=[('a', t)]))
        fl.append(F(55, f'ds_write_b32 v{vAIW}, v{b} offset:{QIMG + t*1024}', id=('w', t), after=[('c', t)]))
    run_stream(A, lg, items, fl, cap=dict(lds=1, valu=2, vmem=1, salu=2))

def qk_role(A, cfg):
    A.comment('==== QK role ====')
    srd(A, SRD_W1, 60, W_BYTES); srd(A, SRD_W2, 62, W_BYTES)
    A(f'v_add_u32 v{vBUFR}, {BUF}, v{vL16}')
    A(f's_lshl_b32 s{sT0}, s{sW}, 8')
    A(f'v_lshlrev_b32 v{v9}, 4, v14')
    A(f'v_lshl_add_u32 v{v9}, v15, 2, v{v9}')
    A(f'v_add_u32 v{v9}, s{sT0}, v{v9}')
    A('v_lshrrev_b32 v16, 2, v14')
    A('v_lshl_add_u32 v16, v15, 3, v16')
    A('v_and_b32 v17, 1, v14')
    A('v_lshlrev_b32 v17, 3, v17')
    A(f'v_lshl_add_u32 v{v10}, v16, 4, v17')
    A('v_cmp_gt_u32 vcc, 8, v14')
    A('v_mov_b32 v16, 0x40000000')
    A(f'v_cndmask_b32 v{v11}, v16, v{vAIW}, vcc')
    def p_offsets():
        A(f's_mul_i32 s{sD}, s{sX}, 10240')
        A(f's_add_u32 s{sD}, s{sD}, {PI_OFF}')
        A(f's_lshr_b32 s{sT0}, s{sHL}, 1')
        A(f's_lshl_b32 s{sT0}, s{sT0}, 8')
        A(f's_add_u32 s{sE}, s{sD}, s{sT0}')
        A(f's_add_u32 s{sE}, s{sE}, 8192')
        A(f's_lshr_b32 s{sT0}, s{sHL}, 1')
        A(f's_xor_b32 s{sT0}, s{sT0}, s{sHL}')
        A(f's_and_b32 s{sT0}, s{sT0}, 1')
        A(f's_lshl_b32 s{sT0}, s{sT0}, 5')
        A(f's_add_u32 s{sE}, s{sE}, s{sT0}')
        A(f's_lshl_b32 s{sT0}, s{sHL}, 9')
        A(f's_add_u32 s{sD}, s{sD}, s{sT0}')
    p_offsets()
    sk = A.newlabel('qkclr')
    A(f's_cmp_lg_u32 s{sW}, 0')
    A(f's_cbranch_scc1 {sk}')
    vSENT = 16
    A('v_mov_b32 v16, -1')
    for st in range(2):
        A(f's_add_u32 s{sT0}, s{sD}, {st*PI_S}')
        A(f's_add_u32 s{sT1}, s{sE}, {st*PI_S}')
        A(f'buffer_store_dword v{vSENT}, v{vAIW}, {WS}, s{sT0} offen sc1')
        A(f'buffer_store_dword v{vSENT}, v{vAIW}, {WS}, s{sT0} offen offset:256 sc1')
        A(f'buffer_store_dword v{vSENT}, v{v11}, {WS}, s{sT1} offen sc1')
    A('s_waitcnt vmcnt(0)')
    A.label(sk)
    load_weights(A, cfg, vo=False)
    rt_stamp(A, cfg, 0, 24)
    init_images(A)
    census(A, cfg, None, None)
    A(f's_cselect_b32 s{sG}, 1, 0')
    p_offsets()
    for d_, s_ in ((bD, sD), (bE, sE), (bML, sML), (bMR, sMR)): A(f's_mov_b32 s{d_}, s{s_}')
    qk_rings(A)
    A(f's_mul_i32 s{sA}, s{sH}, {KQ_SH}')
    A(f's_add_u32 s{sA}, s{sA}, {KQ_OFF}')
    A(f's_lshl_b32 s{sB}, s{sH}, 11')
    A(f's_sub_u32 s{sT0}, s{sW}, 1')
    A(f's_lshl_b32 s{sT1}, s{sT0}, 10')
    A(f's_add_u32 s{sB}, s{sB}, s{sT1}')
    A(f's_add_u32 s{sB}, s{sB}, {PX_OFF}')
    A(f's_lshr_b32 s{sC}, s{sH}, 2')
    A(f's_lshl_b32 s{sC}, s{sC}, 11')
    A(f's_add_u32 s{sC}, s{sC}, s{sT1}')
    A(f's_and_b32 s{sT0}, s{sH}, 3')
    A(f's_lshl_b32 s{sT0}, s{sT0}, 8')
    A(f's_add_u32 s{sC}, s{sC}, s{sT0}')
    A(f's_add_u32 s{sC}, s{sC}, {PXM_OFF}')
    A(f's_lshl_b32 s{sF}, 1, s{sH}')
    A(f's_lshl_b32 s{sT0}, s{sX}, 4')
    A(f's_lshl_b32 s{sH3}, 0xffff, s{sT0}')
    A(f's_mul_i32 s{sH1}, s{sX}, {VW_X}')
    A(f's_mul_i32 s{sT0}, s{sHL}, 40960')
    A(f's_add_u32 s{sH1}, s{sH1}, s{sT0}')
    A(f's_lshl_b32 s{sT0}, s{sW}, 13')
    A(f's_add_u32 s{sH1}, s{sH1}, s{sT0}')
    A(f's_add_u32 s{sH1}, s{sH1}, {VW_OFF + VWD*VW_S}')
    A(f's_add_u32 s{sH2}, s{sA}, {2*KQ_S}')
    A(f's_add_u32 s{bC}, s{sH}, {DBG_PROG}')
    A(f's_cmp_eq_u32 s{sW}, 1')
    A(f's_cselect_b32 s{bC}, s{bC}, 0x1000')
    A(f's_mul_i32 s{sTP}, s{sH}, 10240')
    A(f's_add_u32 s{bB}, s{sTP}, {T_OFF}')
    A(f's_add_u32 s{sTP}, s{sTP}, {TP_OFF}')
    sk = A.newlabel('qkpre')
    A(f's_cmp_lg_u32 s{sW}, 0')
    A(f's_cbranch_scc1 {sk}')
    wait_mask(A, cfg, sS, 0, sF, 16)
    A(f's_mov_b32 s{sT2}, {BUF}')
    kq_dma(A)
    wait_mask(A, cfg, sS, 1, sH3, 16)
    A(f'v_lshlrev_b32 v16, 3, v{vL16}')
    for st in range(VWD):
        for j in range(5):
            A(f's_sub_u32 s{sT0}, s{sH1}, {((VWD-st)*VW_S - j*8192) & 0xffffffff}')
            A(f'buffer_load_dword v17, v16, {WS}, s{sT0} offen sc1')
    for j in range(3):
        A(f's_add_u32 s{sT0}, s{sA}, {j*8192}')
        A(f'buffer_load_dword v17, v16, {WS}, s{sT0} offen sc1')
    A('s_waitcnt vmcnt(0)')
    A.label(sk)
    zero(A, KACC, 12); zero(A, QACC, 12)
    A('s_barrier')
    kx_early(A)
    A('s_waitcnt lgkmcnt(0)')
    rt_stamp(A, cfg, 0, 24)
    slow = A.newlabel('qkslow')
    A(f's_cmp_eq_u32 s{sG}, 0')
    A(f's_cbranch_scc1 {slow}')
    qk_loop(A, cfg, '')
    A.label(slow)
    qk_loop(A, cfg, ' sc1')

def kx_early(A):
    for j in range(12):
        if kx_dst(j) < QACC: A(f'ds_read_b128 {v(kx_dst(j),4)}, v{vBUFR} offset:{j*1024}')

def qk_rings(A):
    ring(A, sD, bD, 0, PI_S); ring(A, sE, bE, 0, PI_S)
    ring(A, sD2, bD, 2, PI_S); ring(A, sE2, bE, 2, PI_S)
    ring(A, sML, bML, 0, MI_S); ring(A, sMR, bMR, 0, MI_S)

def kq_dma(A):
    for j in range(6):
        A(f's_add_u32 m0, s{sT2}, {j*4096}')
        A(f's_add_u32 s{sT0}, s{sA}, {j*4096}')
        for i in range(4):
            A(f'buffer_load_dwordx4 v{vL16}, {WS}, s{sT0} offen offset:{i*1024} sc1{NT} lds')
    A(f's_add_u32 s{sA}, s{sA}, {KQ_S}')

def rowred(A, op, regs):
    for sh in (8, 4, 2, 1):
        for r in regs:
            A(f'{op}_dpp v{r}, v{r}, v{r} row_ror:{sh} row_mask:0xf bank_mask:0xf')

def qk_loop(A, cfg, ST):
    lg = Lg(A)
    TOP = A.newlabel('qkloop'); END = A.newlabel('qkend')
    A.label(TOP)
    A('s_barrier', 'B1')
    stamp(A, cfg, 2)
    qk_remote(A, lg, cfg)
    stamp(A, cfg, 3)
    for t in range(3):
        b = KACC + 4 * t
        A(f'v_add_f32 v{b}, v{b}, v{b+2}')
        A(f'v_add_f32 v{b+1}, v{b+1}, v{b+3}')
    for t in range(3):
        b = KACC + 4 * t
        A(f'v_cvt_pk_bf16_f32 v{QAW+t}, v{b}, v{b+1}')
    for t in range(3):
        lg.op(f'ds_write_b32 v{v9}, v{QAW+t} offset:{KIMG + t*1024}')
    zero(A, KACC, 12)
    lg.drain()
    A('s_barrier', 'B3')
    stamp(A, cfg, 4)
    WX = A.newlabel('qkwx'); W3 = A.newlabel('qkw3'); JOIN = A.newlabel('qkjoin')
    A(f's_cmp_lg_u32 s{sW}, 0')
    A(f's_cbranch_scc1 {WX}')
    for k3 in range(3):
        for u in range(2):
            lg.op(f'ds_read_b64_tr_b16 {v(QAW+4*k3+2*u,2)}, v{(vTRA, vTRB)[u]} offset:{QIMG + k3*1024}', ('q', k3))
    for j in range(12):
        if kx_dst(j) >= QACC: lg.op(f'ds_read_b128 {v(kx_dst(j),4)}, v{vBUFR} offset:{j*1024}', ('q', 2))
    def kmrd(k3):
        for rd in range(4):
            lg.op(f'ds_read_b64_tr_b16 {v(QWW+8*k3+2*rd,2)}, v{v10} offset:{KIMG + k3*1024 + (rd>>1)*512 + (rd&1)*64}', ('k', k3))
    kmrd(0)
    cs = QAW + 12
    A(f'v_mov_b32 v{cs}, s{sCSC}')
    A(f'v_xor_b32 v{QAW+15}, 32, v{vAIW}')
    for k3 in range(3):
        lg.wait(('q', k3))
        for kt in range(2):
            A(smf(KACC + 4 * kt, QAW + 4 * k3, v(PRE + 16 * k3 + 8 * kt, 8)))
        if k3 < 2: kmrd(k3 + 1)
    a0, a1, am = KACC, KACC + 4, KACC + 8
    for k3 in range(3):
        lg.wait(('k', k3))
        A(smf(am, QAW + 4 * k3, v(QWW + 8 * k3, 8)))
    stamp(A, cfg, 5)
    m0_, m1_ = QAW + 13, QAW + 14
    for b in (a0, a1):
        A(f'v_add_f32 v{b}, v{b}, v{b+2}')
        A(f'v_add_f32 v{b+1}, v{b+1}, v{b+3}')
    A(f'v_add_f32 v{am}, v{am}, v{am+2}')
    A(f'v_add_f32 v{am+1}, v{am+1}, v{am+3}')
    A(f'v_max3_f32 v{m0_}, v{a0}, v{a1}, v{am}')
    A(f'v_max3_f32 v{m1_}, v{a0+1}, v{a1+1}, v{am+1}')
    rowred(A, 'v_max_f32', (m0_, m1_))
    A(f'v_mul_f32 v{m0_}, v{cs}, v{m0_}')
    A(f'v_mul_f32 v{m1_}, v{cs}, v{m1_}')
    for b in (a0, a1, am):
        A(f'v_fma_f32 v{b}, v{b}, v{cs}, -v{m0_}')
        A(f'v_fma_f32 v{b+1}, v{b+1}, v{cs}, -v{m1_}')
    for b in (am, a0, a1):
        A(f'v_exp_f32 v{b}, v{b}')
        A(f'v_exp_f32 v{b+1}, v{b+1}')
    A(f'v_add_f32 v{m0_}, v{a0}, v{a1}')
    A(f'v_add_f32 v{m1_}, v{a0+1}, v{a1+1}')
    A(f'v_add_f32_dpp v{m0_}, v{am}, v{m0_} quad_perm:[0,1,2,3] row_mask:0xf bank_mask:0x3')
    A(f'v_add_f32_dpp v{m1_}, v{am+1}, v{m1_} quad_perm:[0,1,2,3] row_mask:0xf bank_mask:0x3')
    rowred(A, 'v_add_f32', (m0_, m1_))
    A(f'v_rcp_f32 v{m0_}, v{m0_}')
    A(f'v_rcp_f32 v{m1_}, v{m1_}')
    for b in (a0, a1, am):
        A(f'v_mul_f32 v{b}, v{b}, v{m0_}')
        A(f'v_mul_f32 v{b+1}, v{b+1}, v{m1_}')
    for b in (a0, a1, am):
        A(f'v_cvt_pk_bf16_f32 v{b}, v{b}, v{b+1}')
    for b, off, vo_, so in ((a0, 0, vAIW, sD), (a1, 256, QAW + 15, sD), (am, 0, v11, sE)):
        A(f'buffer_store_dword v{b}, v{vo_}, {WS}, s{so} offen offset:{off}{ST}')
    stamp(A, cfg, 8)
    vSENT = cs
    A(f'v_mov_b32 v{vSENT}, -1')
    A(f'buffer_store_dword v{vSENT}, v{vAIW}, {WS}, s{sD2} offen{ST}')
    A(f'buffer_store_dword v{vSENT}, v{vAIW}, {WS}, s{sD2} offen offset:256{ST}')
    A(f'buffer_store_dword v{vSENT}, v{v11}, {WS}, s{sE2} offen{ST}')
    A(f's_cmp_eq_u32 s{sS}, 63')
    A(f's_cbranch_scc1 {JOIN}')
    A(f's_add_u32 s{sT3}, s{sS}, 1')
    A(f's_and_b32 s{sT2}, s{sT3}, 1')
    A(f's_mul_i32 s{sT2}, s{sT2}, 24576')
    A(f's_add_u32 s{sT2}, s{sT2}, {BUF}')
    kq_dma(A)
    A(f's_branch {JOIN}')
    A.label(WX)
    A(f's_cmp_eq_u32 s{sW}, 3')
    A(f's_cbranch_scc1 {W3}')
    x_softmax(A, cfg)
    A(f's_branch {JOIN}')
    A.label(W3)
    A(f'v_lshlrev_b32 v{QWW}, 3, v{vL16}')
    A(f's_add_u32 s{sT0}, s{sH1}, 8192')
    A(f'buffer_load_dword v{QWW}, {WS}, s{sT0} offen sc1 lds')
    for j in range(3):
        A(f's_sleep {cfg.get("tsleep", 4)}')
        A(f's_add_u32 s{sT0}, s{sH2}, {j*8192}')
        A(f'buffer_load_dword v{QWW}, {WS}, s{sT0} offen sc1 lds')
    if cfg.get('tcopy', 1):
        L = A.newlabel('tc'); D = A.newlabel('tcd')
        A(f's_and_b32 s{sT0}, s{sS}, 1')
        A(f's_mul_i32 s{sT0}, s{sT0}, {T_S}')
        A(f's_add_u32 s{sT0}, s{sT0}, s{bB}')
        A(f's_add_u32 s{sT1}, s{sT0}, 4096')
        A(f's_add_u32 s{sT2}, s{sT0}, 8192')
        A(f's_bfe_u32 s{sT3}, s{sS}, 0x10001')
        A.label(L)
        for j in range(10):
            A(f'buffer_load_dwordx4 {v(24+4*j,4)}, v{vL16}, {WS}, s{sT0+j//4} offen offset:{(j%4)*1024} sc1')
        A('s_waitcnt vmcnt(0)')
        A(f'v_xor_b32 v12, s{sT3}, v24')
        for j in range(1, 10):
            A(f'v_bitop3_b32 v12, v12, v{24+4*j}, s{sT3} bitop3:0xf6')
        A('v_and_b32 v12, 1, v12')
        A('v_cmp_ne_u32 vcc, 0, v12')
        A(f's_cbranch_vccz {D}')
        A('s_sleep 2')
        A(f's_sub_u32 s{sBUD}, s{sBUD}, 1')
        A(f's_cbranch_scc0 {L}')
        A(f's_mov_b32 s{sBUD}, 0')
        A.label(D)
        A(f's_add_u32 s{sT1}, s{sTP}, 4096')
        A(f's_add_u32 s{sT2}, s{sTP}, 8192')
        for j in range(10):
            A(f'buffer_store_dwordx4 {v(24+4*j,4)}, v{vL16}, {WS}, s{(sTP, sT1, sT2)[j//4]} offen offset:{(j%4)*1024} sc1')
        A(f's_add_u32 s{sTP}, s{sTP}, {T_S}')
    A(f's_add_u32 s{sT3}, s{sS}, 3')
    A(f's_and_b32 s{sT0}, s{sT3}, 0x43')
    A(f's_cmp_lg_u32 s{sT0}, 0')
    A(f's_cbranch_scc1 {JOIN}')
    A(f's_lshr_b32 s{sT2}, s{sT3}, 2')
    wait_mask(A, cfg, sT2, 0, sF, 12)
    wait_mask(A, cfg, sT2, 1, sH3, 12)
    A.label(JOIN)
    stamp(A, cfg, 6)
    stamp_flush(A, cfg, 9, PRE)
    lg.q = []
    A(f's_cmp_eq_u32 s{sS}, 63')
    A(f's_cbranch_scc1 {END}')
    A(f's_add_u32 s{sS}, s{sS}, 1')
    qk_rings(A)
    def f1():
        zero(A, KACC + 2, 10); zero(A, QACC, 12)
        A(f'v_xor_b32 v{vBUFR}, {BUF ^ (BUF+24576)}, v{vBUFR}')
        A(f's_add_u32 s{sB}, s{sB}, {PX_S}')
        A(f's_add_u32 s{sC}, s{sC}, {PXM_S}')
        A(f's_add_u32 s{sH1}, s{sH1}, {VW_S}')
        A(f's_add_u32 s{sH2}, s{sH2}, {KQ_S}')
    fetch_m(A, cfg, QAW, QAW + 20, QAW + 30, KACC, f1, lambda: kx_early(A))
    zero(A, KACC, 2)
    A('s_waitcnt lgkmcnt(0)')
    A(f's_branch {TOP}')
    A.label(END)
    A('s_waitcnt vmcnt(0)')
    A('s_barrier')
    A('v_mov_b32 v24, 64')
    A(f'buffer_store_byte v24, off, s[{SRD_DBG}:{SRD_DBG+3}], s{bC} sc1')
    rt_stamp(A, cfg, 0, 24)
    A('s_endpgm')

def x_softmax(A, cfg):
    lg = Lg(A)
    KM, QF, KX, SX, TMP = 40, 64, 12, 88, 100
    n_, g_, ad = TMP, TMP + 1, TMP + 2
    if cfg.get('xsleep', 3): A(f's_sleep {cfg.get("xsleep", 3)}')
    A(f'v_bfe_u32 v{n_}, v{vL16}, 4, 4')
    A(f'v_lshrrev_b32 v{g_}, 8, v{vL16}')
    A(f's_lshl_b32 s{sT0}, s{sW}, 10')
    A(f's_add_u32 s{sT0}, s{sT0}, {12288 - 1024}')
    A(f'v_add_u32 v{ad}, s{sT0}, v{vBUFR}')
    for st in range(6):
        lg.op(f'ds_read_b128 {v(QF+4*st,4)}, v{ad} offset:{st*2048}', ('q', st))
    for k3 in range(3):
        for rd in range(4):
            lg.op(f'ds_read_b64_tr_b16 {v(KM+8*k3+2*rd,2)}, v{v10} offset:{KIMG + k3*1024 + (rd>>1)*512 + (rd&1)*64}', ('k', 2*k3 + (rd >> 1)))
    A(f'v_sub_u32 v{ad+1}, v{vBUFR}, v{vL16}')
    A(f'v_lshrrev_b32 v{ad+2}, 3, v{n_}')
    A(f'v_lshl_add_u32 v{ad+1}, v{ad+2}, 10, v{ad+1}')
    A(f'v_bfe_u32 v{ad+2}, v{n_}, 2, 1')
    A(f'v_lshl_add_u32 v{ad+1}, v{ad+2}, 7, v{ad+1}')
    A(f'v_and_b32 v{ad+2}, 3, v{n_}')
    A(f'v_lshl_add_u32 v{ad+1}, v{ad+2}, 4, v{ad+1}')
    A(f'v_lshl_add_u32 v{ad+1}, v{g_}, 8, v{ad+1}')
    for st in range(6):
        lg.wait(('q', st)); lg.wait(('k', st))
        c = '0' if st == 0 else v(SX + 8, 4)
        A(f'v_mfma_f32_16x16x32_bf16 {v(SX+8,4)}, {v(KM+4*st,4)}, {v(QF+4*st,4)}, {c}')
    for kt in range(2):
        for st in range(6):
            lg.op(f'ds_read_b128 {v(KX+4*st,4)}, v{ad+1} offset:{st*2048 + kt*64}', ('x', kt, st))
        for st in range(6):
            lg.wait(('x', kt, st))
            c = '0' if st == 0 else v(SX + 4 * kt, 4)
            A(f'v_mfma_f32_16x16x32_bf16 {v(SX+4*kt,4)}, {v(KX+4*st,4)}, {v(QF+4*st,4)}, {c}')
    d_ = ad
    A(f's_lshl_b32 s{sT0}, s{sW}, 4')
    A(f's_sub_u32 s{sT0}, s{sT0}, 16')
    A(f'v_lshlrev_b32 v{d_}, 3, v{g_}')
    A(f'v_sub_u32 v{d_}, v{n_}, v{d_}')
    A(f'v_add_u32 v{d_}, s{sT0}, v{d_}')
    ninf = ad + 1
    A(f'v_mov_b32 v{ninf}, 0xff800000')
    for j in range(8):
        A(f'v_cmp_le_i32 vcc, {j}, v{d_}')
        A(f'v_cndmask_b32 v{SX+j}, v{ninf}, v{SX+j}, vcc')
    A(f'v_cmp_gt_u32 vcc, 2, v{g_}')
    for j in range(4):
        A(f'v_cndmask_b32 v{SX+8+j}, v{ninf}, v{SX+8+j}, vcc')
    mx, t2 = ad + 2, ad + 3
    A(f'v_max3_f32 v{mx}, v{SX}, v{SX+1}, v{SX+2}')
    for j in range(3, 11, 2):
        A(f'v_max3_f32 v{mx}, v{mx}, v{SX+j}, v{SX+j+1}')
    A(f'v_max_f32 v{mx}, v{mx}, v{SX+11}')
    def xred(op):
        for sw in ('v_permlane16_swap_b32', 'v_permlane32_swap_b32'):
            A(f'v_mov_b32 v{t2}, v{mx}')
            A(f'{sw} v{mx}, v{t2}')
            A(f'{op} v{mx}, v{mx}, v{t2}')
    xred('v_max_f32')
    A(f'v_mul_f32 v{mx}, s{sCSC}, v{mx}')
    for j in range(12):
        A(f'v_fma_f32 v{SX+j}, v{SX+j}, s{sCSC}, -v{mx}')
    for j in range(12):
        A(f'v_exp_f32 v{SX+j}, v{SX+j}')
    A(f'v_add_f32 v{mx}, v{SX}, v{SX+1}')
    for j in range(2, 12):
        A(f'v_add_f32 v{mx}, v{mx}, v{SX+j}')
    xred('v_add_f32')
    A(f'v_rcp_f32 v{mx}, v{mx}')
    for j in range(12):
        A(f'v_mul_f32 v{SX+j}, v{SX+j}, v{mx}')
    for j in range(6):
        A(f'v_cvt_pk_bf16_f32 v{KX+j}, v{SX+2*j}, v{SX+2*j+1}')
    PST = ' sc1'
    A(f'buffer_store_dwordx4 {v(KX,4)}, v{vL16}, {WS}, s{sB} offen{PST}')
    A(f'v_lshlrev_b32 v{t2}, 4, v{n_}')
    A(f'v_lshl_add_u32 v{t2}, v{g_}, 3, v{t2}')
    A(f'v_mov_b32 v{mx}, 0x40000000')
    A(f'v_cndmask_b32 v{t2}, v{mx}, v{t2}, vcc')
    A(f'buffer_store_dwordx2 {v(KX+4,2)}, v{t2}, {WS}, s{sC} offen{PST}')
    A('s_nop 1')

ACC2, VAW, TACC, VWW, VACC, BVW, BT = 12, 16, 32, 72, 96, 96, 72
sPH = 68
vPUB, vSN = vBUFR, v11
sEX = 54
def wslot(j): return VWW + 8 * (j % 3)

def vo_role(A, cfg):
    A.comment('==== VO role ====')
    srd(A, SRD_W1, 64, W_BYTES); srd(A, SRD_W2, 66, W_BYTES)
    A(f's_lshl_b32 s{sT0}, s{sW}, 15')
    A(f's_add_u32 s{sT0}, s{sT0}, {WRES}')
    A(f'v_add_u32 v{vWR}, s{sT0}, v{vL16}')
    A(f's_and_b32 s{sT0}, s{sHL}, 1')
    A(f's_lshl_b32 s{sT0}, s{sT0}, 5')
    A(f'v_lshlrev_b32 v{vPUB}, 2, v13')
    A(f'v_xor_b32 v{vPUB}, s{sT0}, v{vPUB}')
    A(f'v_mov_b32 v{vSN}, -1')
    A(f'v_lshlrev_b32 v{v9}, 4, v14')
    A(f'v_mul_u32_u24 v{v10}, 10240, v15')
    A(f'v_add_u32 v{v10}, v{v10}, v{v9}')
    A('v_cmp_gt_u32 vcc, 2, v15')
    A('v_mov_b32 v16, 0x40000000')
    A(f'v_cndmask_b32 v{v9}, v16, v{vL16}, vcc')
    A(f's_lshl_b32 s{sT0}, s{sW}, 4')
    A(f's_add_u32 s{sT0}, s{sT0}, s{sHL}')
    A(f's_cmp_lt_u32 s{sT0}, 40')
    A(f's_cselect_b32 s{sUNIT}, 1, 0')
    A(f's_cselect_b64 s[{sEX}:{sEX+1}], -1, 0')
    def offsets():
        A(f's_lshl_b32 s{sT0}, s{sW}, 4')
        A(f's_add_u32 s{sT0}, s{sT0}, s{sHL}')
        A(f's_mul_i32 s{sD}, s{sX}, {T_X}')
        A(f's_add_u32 s{sD}, s{sD}, {T_OFF}')
        A(f's_mul_i32 s{sT1}, s{sW}, 2560')
        A(f's_add_u32 s{sC}, s{sD}, s{sT1}')
        A(f's_mul_i32 s{sT1}, s{sHL}, 10240')
        A(f's_add_u32 s{sC}, s{sC}, s{sT1}')
        A(f's_and_b32 s{sT1}, s{sT0}, 3')
        A(f's_mul_i32 s{sT1}, s{sT1}, 2560')
        A(f's_add_u32 s{sD}, s{sD}, s{sT1}')
        A(f's_lshr_b32 s{sT1}, s{sT0}, 2')
        A(f's_lshl_b32 s{sT1}, s{sT1}, 8')
        A(f's_add_u32 s{sD}, s{sD}, s{sT1}')
        A(f's_mul_i32 s{sE}, s{sX}, {2*MI_C}')
        A(f's_add_u32 s{sE}, s{sE}, {MI_OFF}')
        A(f's_lshl_b32 s{sT1}, s{sT0}, 8')
        A(f's_add_u32 s{sE}, s{sE}, s{sT1}')
        A(f's_mul_i32 s{sF}, s{sX}, {VW_X}')
        A(f's_lshl_b32 s{sT1}, s{sT0}, 14')
        A(f's_add_u32 s{sF}, s{sF}, s{sT1}')
        A(f's_add_u32 s{sF}, s{sF}, {VW_OFF}')
        A(f's_mul_i32 s{sTP}, s{sX}, {T_X}')
        A(f's_lshl_b32 s{sT1}, s{sT0}, 12')
        A(f's_add_u32 s{sTP}, s{sTP}, s{sT1}')
        A(f's_add_u32 s{sTP}, s{sTP}, {TP_OFF}')
        A(f's_cmp_eq_u32 s{sUNIT}, 0')
        for r_ in (sD, sE, sF, sTP): A(f's_cselect_b32 s{r_}, 0x40000000, s{r_}')
    offsets()
    for i in range(4): A(f'v_mov_b32 v{16+i}, -1')
    for st in range(2):
        for cp in range(2):
            A(f's_add_u32 s{sT0}, s{sE}, {(st+1)*MI_S + cp*MI_C}')
            A(f'buffer_store_dword v16, v{vPUB}, {WS}, s{sT0} offen sc1')
    for st in range(2):
        A(f's_add_u32 s{sT0}, s{sC}, {st*T_S}')
        for j in range(3):
            A(f'buffer_store_dwordx4 v[16:19], v{vL16 if j < 2 else v9}, {WS}, s{sT0} offen offset:{j*1024} sc1')
    A('s_waitcnt vmcnt(0)')
    load_weights(A, cfg, vo=True)
    rt_stamp(A, cfg, 0, 24)
    init_images(A)
    census(A, cfg, None, None)
    A(f's_cselect_b32 s{sG}, 1, 0')
    offsets()
    A(f's_mov_b32 s{sA}, s{sF}')
    A(f's_mul_i32 s{sB}, s{sX}, 10240')
    A(f's_add_u32 s{sB}, s{sB}, {PI_OFF}')
    A(f's_lshl_b32 s{sT0}, s{sX}, 4')
    A(f's_lshl_b32 s{sF}, 0xffff, s{sT0}')
    for d_, s_ in ((bD, sD), (bE, sE), (bB, sB), (bC, sC), (bML, sML), (bMR, sMR)): A(f's_mov_b32 s{d_}, s{s_}')
    vo_rings(A); vw_offs(A)
    wait_mask(A, cfg, sS, 1, sF, 16)
    vw_early(A); w_early(A)
    zero(A, VACC, 12)
    A('s_waitcnt lgkmcnt(0)')
    rt_stamp(A, cfg, 0, 24)
    slow = A.newlabel('voslow')
    A(f's_cmp_eq_u32 s{sG}, 0')
    A(f's_cbranch_scc1 {slow}')
    vo_loop(A, cfg, '')
    A.label(slow)
    vo_loop(A, cfg, ' sc1')

def vwld_text(j):
    return f'buffer_load_dwordx4 {v(BVW+4*j,4)}, v{vL16}, {WS}, s{(sA, sH1, sH2, sH3)[j//4]} offen offset:{(j%4)*1024} sc1{NT}'
NVE = int(os.environ.get('NVE', '8'))
def vw_early(A):
    for j in range(16 - NVE, 16): A(vwld_text(j))
def w_early(A):
    for j in range(3):
        for f_ in wfrag_fill(j, wslot(j), 0): A(f_.text)
def vw_offs(A):
    A(f's_add_u32 s{sH1}, s{sA}, 4096')
    A(f's_add_u32 s{sH2}, s{sA}, 8192')
    A(f's_add_u32 s{sH3}, s{sA}, 12288')

def vo_rings(A):
    assert NR == 4
    ring(A, sB, bB, 0, PI_S)
    ring(A, sE, bE, 1, MI_S); ring(A, sE2, bE, 2, MI_S)
    A(f's_bfe_u32 s{sPH}, s{sS}, 0x10001')
    A(f's_and_b32 s{sT0}, s{sS}, 1')
    A(f's_mul_i32 s{sT0}, s{sT0}, {T_S}')
    A(f's_add_u32 s{sD}, s{bD}, s{sT0}')
    A(f's_add_u32 s{sC}, s{bC}, s{sT0}')

def vo_loop(A, cfg, ST):
    lg = Lg(A)
    TOP = A.newlabel('voloop'); END = A.newlabel('voend')
    A.label(TOP)
    A('s_barrier', 'B1')
    stamp(A, cfg, 2)
    items, fl, use = [], [], {}
    for k in range(10):
        for t in range(3):
            need = [('A', k)] if t == 0 else []
            if (k, t) in lds_frags(True):
                j = lds_frags(True).index((k, t)); bop = v(wslot(j), 8); use[j] = len(items)
                if j >= 3: need.append(('W', j))
            else:
                f, b = wreg(k, t, True); bop = R(f, b, 8)
            items.append((smf(VACC + 4 * t, VAW + 4 * (k % 4), bop), need))
        fl += atr(-1 if k < 3 else (0 if k == 3 else 3 * (k - 4) + 2), VAW + 4 * (k % 4), RIMG + k * 1024, ('A', k))
    for j in range(3, 8):
        fl += wfrag_fill(j, wslot(j), use[j - 3] + 0.5)
    fl += [F(i, f'v_mov_b64 {v(TACC+2*i,2)}, 0') for i in range(20)]
    fl += [F(4 * (j - 3) + 4, vwld_text(j)) for j in range(3, 16 - NVE)]
    fl += [F(0, f's_add_u32 s{sT1}, s{sE2}, {MI_C}', id='t1'),
           F(1, f'buffer_store_dword v{vSN}, v{vPUB}, {WS}, s{sT1} offen sc1', after=['t1']),
           F(2, f'buffer_store_dword v{vSN}, v{vPUB}, {WS}, s{sE2} offen{ST}')]
    fl += [F(5, f's_add_u32 s{sT0}, s{sS}, 1'), F(6, f's_and_b32 s{sT0}, s{sT0}, {NR-1}'), F(7, f's_mul_i32 s{sT0}, s{sT0}, {MI_S}'),
           F(8, f's_add_u32 s{sML}, s{bML}, s{sT0}'), F(9, f's_add_u32 s{sMR}, s{bMR}, s{sT0}')]
    run_stream(A, lg, items, fl, cap=dict(lds=1, valu=1, vmem=1, salu=1))
    for t in range(3):
        b = VACC + 4 * t
        A(f'v_add_f32 v{b}, v{b}, v{b+2}')
        A(f'v_add_f32 v{b+1}, v{b+1}, v{b+3}')
    for t in range(3):
        b = VACC + 4 * t
        A(f'v_cvt_pk_bf16_f32 v{b}, v{b}, v{b+1}')
    for t in range(3):
        lg.op(f'ds_write_b32 v{vAIW}, v{VACC+4*t} offset:{QIMG + t*1024}')
    lg.drain()
    A('s_barrier', 'B2')
    stamp(A, cfg, 3)
    stamp_flush(A, cfg, 9, ACC2)
    items, fl = [], []
    for k3 in range(3): fl += atr(-1, VAW + 4 * k3, QIMG + k3 * 1024, ('A', k3))
    fl += wfrag_fill(8, wslot(8), -1)
    fl += [F(j, vwld_text(j)) for j in range(3)]
    last = {}
    for c0 in range(0, 10, 2):
        for k3 in range(3):
            for c in (c0, c0 + 1):
                need = [('A', k3)] if c == 0 else []
                if k3 == 2:
                    bop = v(wslot(6 + c), 8)
                    if c >= 2: need.append(('W', 6 + c))
                    last[c] = len(items)
                else:
                    f, b = wreg(10 + c, k3, True); bop = R(f, b, 8)
                items.append((smf(TACC + 4 * c, VAW + 4 * k3, bop), need))
    for c in range(10):
        if c >= 3: fl += wfrag_fill(6 + c, wslot(6 + c), last[c - 3])
        b = TACC + 4 * c
        e = last[c] + 3
        gb = ACC2 if c < 4 else (VAW + 12 if c < 8 else TACC)
        fl.append(F(e, f'v_add_f32 v{b}, v{b}, v{b+2}'))
        fl.append(F(e, f'v_add_f32 v{b+1}, v{b+1}, v{b+3}', id=('a', c)))
        fl.append(F(e + 1.5, f'v_cvt_pk_bf16_f32 v{gb + c%4}, v{b}, v{b+1}', id=('c', c), after=[('a', c)]))
        if c % 4 == 3 or c == 9:
            fl.append(F(e + 2, f'v_permlane32_swap_b32 v{gb}, v{gb+2}', after=[('c', c)]))
            fl.append(F(e + 2, f'v_permlane32_swap_b32 v{gb+1}, v{gb+3}', id=('s1', c)))
            fl.append(F(e + 3, f'v_permlane16_swap_b32 v{gb}, v{gb+1}', after=[('s1', c)]))
            fl.append(F(e + 3, f'v_permlane16_swap_b32 v{gb+2}, v{gb+3}', id=('s2', c)))
            fl.append(F(e + 4, f'v_and_or_b32 v{gb}, v{gb}, -2, s{sPH}', id=('tg', c), after=[('s2', c)]))
            vo_ = vL16 if c < 9 else v9
            fl.append(F(e + 5, f'buffer_store_dwordx4 {v(gb,4)}, v{vo_}, {WS}, s{sC} offen offset:{(c//4)*1024}{ST}', after=[('tg', c)]))
    run_stream(A, lg, items, fl, cap=dict(lds=1, valu=cfg.get('tval', 2), vmem=1, salu=2))
    stamp(A, cfg, 4)
    A(f's_cmp_eq_u32 s{sS}, 63')
    A(f's_cbranch_scc1 {END}')
    L1 = A.newlabel('tp'); R1 = A.newlabel('tpr'); L2 = A.newlabel('pp'); C2 = A.newlabel('ppc'); D = A.newlabel('ppd')
    for j in range(1, 4): A(f's_add_u32 s{sT0+j}, s{sD}, {j*40960}')
    A(f's_cmp_eq_u32 s{sUNIT}, 0')
    A(f's_cbranch_scc1 {R1}')
    A.label(L1)
    for j in range(4):
        A(f'buffer_load_dwordx4 {v(BT+4*j,4)}, v{v10}, {WS}, s{sT0+j if j else sD} offen sc1')
    ld10(A, sB, VAW)
    A('s_waitcnt vmcnt(3)')
    A(f'v_bitop3_b32 v{ACC2}, v{BT}, v{BT+4}, v{BT+8} bitop3:0x7e')
    A(f'v_bitop3_b32 v{ACC2+1}, v{BT}, v{BT+12}, s{sPH} bitop3:0x7e')
    A(f'v_bitop3_b32 v{ACC2}, v{ACC2}, v{ACC2+1}, 1 bitop3:0xa8')
    A(f'v_cmp_ne_u32 vcc, 0, v{ACC2}')
    A(f's_cbranch_vccz {C2}')
    A(f's_sub_u32 s{sBUD}, s{sBUD}, 1')
    A(f's_cbranch_scc0 {L1}')
    A(f's_mov_b32 s{sBUD}, 0')
    A.label(R1)
    A.label(L2)
    ld10(A, sB, VAW)
    A.label(C2)
    chk10(A, VAW, ACC2)
    retry_tail(A, ACC2, L2, D)
    A.label(D)
    stamp(A, cfg, 6)
    put10(A, VAW, PIMG)
    zero(A, ACC2, 4)
    lg.drain()
    A('s_barrier', 'B4')
    stamp(A, cfg, 7)
    NU2 = A.newlabel('vonu')
    A(f's_cmp_eq_u32 s{sUNIT}, 0')
    A(f's_cbranch_scc1 {NU2}')
    items = [(smf(ACC2, TACC + 4 * k, v(BVW + 8 * k if k < 8 else BT + 8 * (k - 8), 8)), [('A', k)]) for k in range(10)]
    fa = []
    for k in range(10): fa += atr(-1 if k < 7 else 0, TACC + 4 * k, PIMG + k * 1024, ('A', k))
    run_stream(A, lg, items, fa, cap=dict(lds=2, valu=1, vmem=1, salu=2))
    A(f's_add_u32 s{sT0}, s{sE}, {MI_C}')
    A(f'v_add_f32 v{ACC2}, v{ACC2}, v{ACC2+2}')
    A(f'v_add_f32 v{ACC2+1}, v{ACC2+1}, v{ACC2+3}')
    A(f'v_cvt_pk_bf16_f32 v{ACC2}, v{ACC2}, v{ACC2+1}')
    A(f'buffer_store_dword v{ACC2}, v{vPUB}, {WS}, s{sT0} offen sc1')
    A(f'buffer_store_dword v{ACC2}, v{vPUB}, {WS}, s{sE} offen{ST}')
    stamp(A, cfg, 8)
    A.label(NU2)
    A(f's_add_u32 s{sA}, s{sA}, {VW_S}')
    vw_offs(A)
    A('s_barrier', 'B5')
    NU3 = A.newlabel('vonu3')
    A(f's_cmp_eq_u32 s{sUNIT}, 0')
    A(f's_cbranch_scc1 {NU3}_s')
    vw_early(A)
    A.label(NU3)
    def f1():
        zero(A, VACC, 12)
        A(f's_add_u32 s{sS}, s{sS}, 1')
        vo_rings(A)
        w_early(A)
    fetch_m(A, cfg, TACC, TACC + 20, TACC + 30, ACC2 + 2, f1, lambda: None)
    A('s_waitcnt lgkmcnt(0)')
    A(f's_branch {TOP}')
    A.label(f'{NU3}_s')
    A(f's_sleep {cfg.get("nusleep", 6)}')
    A(f's_branch {NU3}')
    A.label(END)
    rt_stamp(A, cfg, 0, 24)
    A('s_endpgm')

def rec_entry(A, cfg):
    common_setup(A, cfg)
    rt_stamp(A, cfg, 0, 16, first=True)
    VO = A.newlabel('role_vo')
    A('s_lshr_b32 s34, s2, 7')
    A('s_cmp_lg_u32 s34, 0')
    A(f's_cbranch_scc1 {VO}')
    qk_role(A, cfg)
    A.label(VO)
    vo_role(A, cfg)
```

```python
from asmgen import *
from layout import *
from rec import srd, Lg, rt_stamp, f2u, SRD_WS, SRD_DBG, WS
from work import Pipe, mf, sW, sT0, sT1, sT2, sLI, sBUD, sR

SRD_1, SRD_2, SRD_X, SRD_O = 16, 20, 24, 48
sB, sG, sA1, sA2, sA3, sA4, sN = 35, 36, 37, 38, 39, 40, 41
DBG = f's[{SRD_DBG}:{SRD_DBG+3}]'
M_BYTES = 640 * 640 * 2

def wait_bits(A, soff, sbits, vt):
    L = A.newlabel('wb'); D = A.newlabel('wbd')
    A.label(L)
    A(f'buffer_load_dword v{vt}, off, {DBG}, s{soff} sc1')
    A('s_waitcnt vmcnt(0)')
    A(f'v_readfirstlane_b32 s{sT1}, v{vt}')
    A(f's_and_b32 s{sT1}, s{sT1}, s{sbits}')
    A(f's_cmp_eq_u32 s{sT1}, s{sbits}')
    A(f's_cbranch_scc1 {D}')
    A('s_sleep 8')
    A(f's_sub_u32 s{sBUD}, s{sBUD}, 1')
    A(f's_cbranch_scc0 {L}')
    A(f's_mov_b32 s{sBUD}, 0')
    A.label(D)

def set_bit(A, soff, sbit, vt):
    A('s_waitcnt vmcnt(0)')
    A('s_barrier')
    sk = A.newlabel('sb')
    A(f's_cmp_lg_u32 s{sW}, 0')
    A(f's_cbranch_scc1 {sk}')
    A(f'v_mov_b32 v{vt}, s{sbit}')
    A('s_mov_b64 exec, 1')
    A(f'buffer_atomic_or v{vt}, off, {DBG}, s{soff} sc1')
    A('s_mov_b64 exec, -1')
    A.label(sk)

def row_voffs(A, dst, rowmap):
    for j in range(4):
        A('v_lshrrev_b32 v27, 3, v0')
        A(f'v_add_u32 v27, {8*j}, v27')
        A('v_bfe_u32 v29, v27, 1, 3')
        A('v_and_b32 v28, 7, v0')
        A('v_xor_b32 v28, v28, v29')
        rowmap(j)
        A('v_mul_u32_u24 v27, 1280, v27')
        A(f'v_lshl_add_u32 v{dst+j}, v28, 4, v27')

def rd_addrs(A, dst):
    A('v_lshrrev_b32 v26, 5, v0')
    A('v_and_b32 v27, 31, v0')
    A('v_bfe_u32 v28, v0, 1, 3')
    A('v_xor_b32 v28, v28, v26')
    A('v_lshlrev_b32 v27, 7, v27')
    for ks in range(4):
        A(f'v_xor_b32 v29, {2*ks}, v28')
        A(f'v_lshl_add_u32 v{dst+ks}, v29, 4, v27')

def cmul(A, dr, di, ar, ai, br, bi, t):
    A(f'v_mul_f32 v{t}, v{ai}, v{bi}')
    A(f'v_mul_f32 v{t+1}, v{ar}, v{bi}')
    A(f'v_fma_f32 v{t}, v{ar}, v{br}, -v{t}')
    A(f'v_fma_f32 v{di}, v{ai}, v{br}, v{t+1}')
    A(f'v_mov_b32 v{dr}, v{t}')

def ssm(A, cfg):
    A(f's_load_dwordx16 s[64:79], s[0:1], {KA["B_x"]}')
    A(f's_load_dwordx4 s[80:83], s[0:1], {KA["Dsk"]}')
    A(f's_mul_i32 s{sB}, s{sN}, 0x3334')
    A(f's_lshr_b32 s{sB}, s{sB}, 16')
    A(f's_mul_i32 s{sT0}, s{sB}, 5')
    A(f's_sub_u32 s{sG}, s{sN}, s{sT0}')
    A('s_waitcnt lgkmcnt(0)')
    A('s_barrier')
    srd(A, SRD_X, 64, X_BYTES); srd(A, SRD_1, 70, M_BYTES); srd(A, SRD_2, 72, M_BYTES); srd(A, SRD_O, 82, OUT_BYTES)
    SL = 49152
    vXV, vBV, vRD = 1, 5, 9
    def xmap(j):
        A('v_bfe_u32 v29, v27, 2, 1')
        A('v_and_b32 v27, 3, v27')
        A('v_lshl_add_u32 v27, v29, 6, v27')
        A(f'v_add_u32 v27, {4*j}, v27')
    row_voffs(A, vXV, xmap)
    row_voffs(A, vBV, lambda j: None)
    rd_addrs(A, vRD)
    for sl in (1, 2):
        for ks in range(4): A(f'v_add_u32 v{vRD+4*sl+ks}, {sl*SL}, v{vRD+ks}')
    vPR = 21
    A(f's_lshl_b32 s{sT0}, s{sW}, 13')
    A(f's_add_u32 s{sA4}, s{sT0}, 16384')
    A(f's_lshl_b32 s{sA1}, s{sB}, 7')
    A(f's_lshl_b32 s{sT0}, s{sW}, 4')
    A(f's_add_u32 s{sA1}, s{sA1}, s{sT0}')
    A(f's_mul_i32 s{sA1}, s{sA1}, 1280')
    A(f's_lshl_b32 s{sA3}, s{sW}, 12')
    A(f's_lshl_b32 s{sA2}, s{sG}, 7')
    A(f's_lshl_b32 s{sT0}, s{sW}, 5')
    A(f's_add_u32 s{sA2}, s{sA2}, s{sT0}')
    A('v_and_b32 v26, 31, v0')
    A(f'v_add_u32 v26, s{sA2}, v26')
    A('v_lshlrev_b32 v26, 1, v26')
    PAR = 232
    for i, p_ in enumerate((66, 68, 78)):
        srd(A, 52, p_, 1280)
        A(f'buffer_load_ushort v{PAR+i}, v26, s[52:55], 0 offen')
    A(f's_mul_i32 s{sA2}, s{sA2}, 1280')
    ACC = 32
    stages = []
    for kc in range(10):
        slot = kc % 3
        def dma(nxt, kc=kc, slot=slot):
            g = []
            for j in range(4):
                g.append([f's_add_u32 m0, s{sA3}, {slot*SL + j*1024}', f's_add_u32 s{sT0}, s{sA1}, {kc*128}',
                          f'buffer_load_dwordx4 v{vXV+j}, s[{SRD_X}:{SRD_X+3}], s{sT0} offen lds'])
            for part in range(2):
                sr = (SRD_1, SRD_2)[part]
                for j in range(4):
                    g.append([f's_add_u32 m0, s{sA4}, {slot*SL + part*4096 + j*1024}', f's_add_u32 s{sT0}, s{sA2}, {kc*128}',
                              f'buffer_load_dwordx4 v{vBV+j}, s[{sr}:{sr+3}], s{sT0} offen lds'])
            return g
        steps = []
        for ks in range(4):
            fb = 24 * (ks % 2)
            reads = [(f'ds_read_b128 {a(fb+16+4*part,4)}, v{160+4*slot+ks} offset:{part*4096}', ('b', fb)) for part in range(2)]
            reads += [(f'ds_read_b128 {a(fb+4*tt,4)}, v{vRD+4*slot+ks} offset:{tt*4096}', ('x', fb, tt)) for tt in range(4)]
            mfs = []
            for tt in range(4):
                for part in range(2):
                    d = v(ACC + 64 * part + 16 * tt, 16)
                    mfs.append((mf(d, a(fb + 4 * tt, 4), a(fb + 16 + 4 * part, 4), '0' if (kc, ks) == (0, 0) else d), [('x', fb, tt)]))
            steps.append(dict(reads=reads, mf=mfs))
        stages.append(dict(dma=dma, steps=steps))
    for i in range(12): A(f'v_add_u32 v{160+i}, s{sA4}, v{vRD+i}')
    P = Pipe(A, stages, 3, False)
    P.prologue(); P.body()
    Lr, Li, dt = PAR, PAR + 1, PAR + 2
    lr, li, cr, ci, qr, qi, t0 = 236, 237, 238, 239, 240, 241, 242
    for i in range(3): A(f'v_lshlrev_b32 v{PAR+i}, 16, v{PAR+i}')
    A(f'v_mul_f32 v{dt}, {f2u(1.4426950408889634):#x}, v{dt}')
    A(f'v_exp_f32 v{dt}, v{dt}')
    A(f'v_cvt_pk_bf16_f32 v{dt}, v{dt}, v{dt}')
    A(f'v_lshlrev_b32 v{dt}, 16, v{dt}')
    A(f'v_mul_f32 v{t0}, v{dt}, v{Lr}')
    A(f'v_mul_f32 v{t0}, {f2u(1.4426950408889634):#x}, v{t0}')
    A(f'v_exp_f32 v{t0}, v{t0}')
    A(f'v_mul_f32 v{t0+1}, v{dt}, v{Li}')
    A(f'v_mul_f32 v{t0+1}, 0.15915494309189535, v{t0+1}')
    A(f'v_rndne_f32 v{t0+2}, v{t0+1}')
    A(f'v_sub_f32 v{t0+1}, v{t0+1}, v{t0+2}')
    A(f'v_cos_f32 v{lr}, v{t0+1}')
    A(f'v_sin_f32 v{li}, v{t0+1}')
    A(f'v_mul_f32 v{lr}, v{lr}, v{t0}')
    A(f'v_mul_f32 v{li}, v{li}, v{t0}')
    A(f'v_mul_f32 v{t0}, v{Lr}, v{Lr}')
    A(f'v_fma_f32 v{t0}, v{Li}, v{Li}, v{t0}')
    A(f'v_rcp_f32 v{t0}, v{t0}')
    A(f'v_add_f32 v{t0+1}, -1.0, v{lr}')
    A(f'v_add_f32 v{t0}, v{t0}, v{t0}')
    A(f'v_mul_f32 v{cr}, v{t0+1}, v{Lr}')
    A(f'v_fma_f32 v{cr}, v{li}, v{Li}, v{cr}')
    A(f'v_mul_f32 v{ci}, v{li}, v{Lr}')
    A(f'v_fma_f32 v{ci}, -v{t0+1}, v{Li}, v{ci}')
    A(f'v_mul_f32 v{cr}, v{cr}, v{t0}')
    A(f'v_mul_f32 v{ci}, v{ci}, v{t0}')
    A(f'v_mov_b32 v{qr}, v{lr}'); A(f'v_mov_b32 v{qi}, v{li}')
    for _ in range(6): cmul(A, qr, qi, qr, qi, qr, qi, t0)
    UR, UI = ACC, ACC + 64
    er, ei, x1, x2 = 244, 245, 246, 247
    A(f'v_mov_b32 v{er}, v{UR}'); A(f'v_mov_b32 v{ei}, v{UI}')
    for i in range(1, 64):
        A(f'v_fma_f32 v{x1}, v{lr}, v{er}, v{UR+i}')
        A(f'v_fma_f32 v{x2}, v{lr}, v{ei}, v{UI+i}')
        A(f'v_fma_f32 v{x1}, -v{li}, v{ei}, v{x1}')
        A(f'v_fma_f32 v{ei}, v{li}, v{er}, v{x2}')
        er, x1 = x1, er
    if er != 244:
        A(f'v_mov_b32 v244, v{er}'); er, x1 = 244, 246
    A('v_lshlrev_b32 v27, 2, v26') if False else None
    A('v_and_b32 v26, 31, v0')
    A('v_lshlrev_b32 v26, 3, v26')
    A('v_lshrrev_b32 v28, 5, v0')
    A('v_mul_u32_u24 v27, 5120, v28')
    A('v_add_u32 v27, v27, v26')
    A(f's_lshl_b32 s{sA1}, s{sG}, 10')
    A(f's_lshl_b32 s{sT0}, s{sW}, 8')
    A(f's_add_u32 s{sA1}, s{sA1}, s{sT0}')
    A(f's_add_u32 s{sA1}, s{sA1}, {SE_OFF}')
    A(f's_mul_i32 s{sT0}, s{sB}, 10240')
    A(f's_add_u32 s{sT0}, s{sT0}, s{sA1}')
    A(f'buffer_store_dwordx2 v[244:245], v27, {WS}, s{sT0} offen sc1')
    A(f's_lshl_b32 s{sA2}, s{sG}, 2')
    A(f's_add_u32 s{sA2}, s{sA2}, {DBG_SF1}')
    A(f's_lshl_b32 s{sA3}, 1, s{sB}')
    set_bit(A, sA2, sA3, 29)
    A(f's_lshl_b32 s{sA4}, s{sA3}, 1')
    A(f's_sub_u32 s{sA4}, s{sA4}, 1')
    wait_bits(A, sA2, sA4, 29)
    EB = 164
    for j in range(31):
        A(f's_add_u32 s{sT0}, s{sA1}, {j*5120}')
        A(f'buffer_load_dwordx2 {v(EB+2*j,2)}, v26, {WS}, s{sT0} offen sc1')
    A(f's_lshl_b32 s{sT0}, s{sB}, 1')
    A(f'v_add_u32 v28, s{sT0}, v28')
    hr, hi = 244, 245
    A(f'v_mov_b64 v[244:245], 0')
    A('s_waitcnt vmcnt(0)')
    for j in range(31):
        A(f'v_cmp_lt_u32 vcc, {j}, v28')
        A(f'v_fma_f32 v246, v{qr}, v{hr}, v{EB+2*j}')
        A(f'v_fma_f32 v247, v{qr}, v{hi}, v{EB+2*j+1}')
        A(f'v_fma_f32 v246, -v{qi}, v{hi}, v246')
        A(f'v_fma_f32 v247, v{qi}, v{hr}, v247')
        A(f'v_cndmask_b32 v{hr}, v{hr}, v246, vcc')
        A(f'v_cndmask_b32 v{hi}, v{hi}, v247, vcc')
    A('v_bfe_u32 v26, v0, 2, 3')
    A('v_lshlrev_b32 v26, 10, v26')
    A('v_and_b32 v27, 3, v0')
    A('v_lshl_add_u32 v26, v27, 4, v26')
    A('v_lshrrev_b32 v27, 5, v0')
    A('v_lshl_add_u32 v26, v27, 9, v26')
    A(f's_mul_i32 s{sA1}, s{sB}, 327680')
    A(f's_lshl_b32 s{sT0}, s{sG}, 15')
    A(f's_add_u32 s{sA1}, s{sA1}, s{sT0}')
    A(f's_lshl_b32 s{sT0}, s{sW}, 13')
    A(f's_add_u32 s{sA1}, s{sA1}, s{sT0}')
    A(f's_add_u32 s{sA1}, s{sA1}, {HT_OFF}')
    A(f's_add_u32 s{sA4}, s{sA1}, 163840')
    pr, pi_ = hr, hi
    for i in range(64):
        A(f'v_fma_f32 v{UR+i}, v{lr}, v{pr}, v{UR+i}')
        A(f'v_fma_f32 v{UI+i}, v{lr}, v{pi_}, v{UI+i}')
        if i > 0:
            A(f'v_mul_f32 v{EB+16+(i-1)%8}, v{cr}, v{pr}')
            A(f'v_mul_f32 v{EB+24+(i-1)%8}, v{cr}, v{pi_}')
        A(f'v_fma_f32 v{UR+i}, -v{li}, v{pi_}, v{UR+i}')
        A(f'v_fma_f32 v{UI+i}, v{li}, v{pr}, v{UI+i}')
        def fin(k, r_, i_):
            A(f'v_fma_f32 v{EB+16+k%8}, -v{ci}, v{i_}, v{EB+16+k%8}')
            A(f'v_fma_f32 v{EB+24+k%8}, -v{ci}, v{r_}, -v{EB+24+k%8}')
            if k % 8 == 7:
                o = EB + 8 * ((k // 8) % 2) if False else EB
                for q in range(4):
                    A(f'v_cvt_pk_bf16_f32 v{EB+32+8*((k//8)%2)+q}, v{EB+16+2*q}, v{EB+16+2*q+1}')
                    A(f'v_cvt_pk_bf16_f32 v{EB+36+8*((k//8)%2)+q}, v{EB+24+2*q}, v{EB+24+2*q+1}')
                A(f'buffer_store_dwordx4 {v(EB+32+8*((k//8)%2),4)}, v26, {WS}, s{sA1} offen offset:{(k//8)*64} sc1')
                A(f'buffer_store_dwordx4 {v(EB+36+8*((k//8)%2),4)}, v26, {WS}, s{sA4} offen offset:{(k//8)*64} sc1')
        if i > 0: fin(i - 1, pr, pi_)
        pr, pi_ = UR + i, UI + i
    A(f'v_mul_f32 v{EB+16+7}, v{cr}, v{pr}')
    A(f'v_mul_f32 v{EB+24+7}, v{cr}, v{pi_}')
    fin(63, pr, pi_)
    A(f's_add_u32 s{sA2}, s{sA2}, {DBG_SF2 - DBG_SF1}')
    set_bit(A, sA2, sA3, 29)
    rt_stamp(A, cfg, 0, 29)
    srd(A, SRD_1, 74, M_BYTES); srd(A, SRD_2, 76, M_BYTES)
    SL = 32768
    vCV, vHV, vCR, vHR = 5, 1, 9, 21
    A(f'v_lshlrev_b32 v{vHV}, 4, v0')
    rd_addrs(A, vCR)
    A(f's_lshl_b32 s{sT0}, s{sW}, 12')
    A(f's_add_u32 s{sA4}, s{sT0}, 16384')
    A(f's_mov_b32 s{sA3}, s{sT0}')
    for ks in range(4):
        A(f'v_add_u32 v{vCR+ks}, s{sA4}, v{vCR+ks}')
        A(f'v_add_u32 v{vCR+4+ks}, 65536, v{vCR+ks}')
        A(f'v_add_u32 v{vCR+8+ks}, 131072, v{vCR+ks}')
    A('v_lshrrev_b32 v26, 5, v0')
    A(f'v_lshlrev_b32 v{vHR}, 11, v26')
    A('v_bfe_u32 v26, v0, 2, 2')
    A(f'v_lshl_add_u32 v{vHR}, v26, 4, v{vHR}')
    A('v_bfe_u32 v26, v0, 4, 1')
    A(f'v_lshl_add_u32 v{vHR}, v26, 7, v{vHR}')
    A('v_bfe_u32 v26, v0, 1, 1')
    A(f'v_lshl_add_u32 v{vHR}, v26, 6, v{vHR}')
    A('v_and_b32 v26, 1, v0')
    A(f'v_lshl_add_u32 v{vHR}, v26, 3, v{vHR}')
    A(f'v_add_u32 v{vHR+1}, 65536, v{vHR}')
    A(f'v_add_u32 v{vHR+2}, 131072, v{vHR}')
    A(f's_mul_i32 s{sA1}, s{sB}, 327680')
    A(f's_add_u32 s{sA1}, s{sA1}, s{sT0}')
    A(f's_add_u32 s{sA1}, s{sA1}, {HT_OFF}')
    A(f's_lshl_b32 s{sN}, s{sG}, 7')
    A(f's_lshl_b32 s{sT0}, s{sW}, 5')
    A(f's_add_u32 s{sN}, s{sN}, s{sT0}')
    XF, DF = 100, 132
    A('v_and_b32 v26, 31, v0')
    A('v_mul_u32_u24 v27, 1280, v26')
    A('v_lshrrev_b32 v28, 5, v0')
    A('v_lshl_add_u32 v27, v28, 4, v27')
    A(f's_mul_i32 s{sT0}, s{sB}, {128*1280}')
    A(f's_lshl_b32 s{sT1}, s{sN}, 1')
    A(f's_add_u32 s{sT0}, s{sT0}, s{sT1}')
    for tt in range(4):
        A(f's_add_u32 s{sT2}, s{sT0}, {tt*32*1280}')
        for ks in range(2):
            A(f'buffer_load_dwordx4 {v(XF+8*tt+4*ks,4)}, v27, s[{SRD_X}:{SRD_X+3}], s{sT2} offen offset:{ks*32}')
    srd(A, 52, 80, 1280)
    A('v_lshlrev_b32 v27, 1, v26')
    A(f'buffer_load_ushort v29, v27, s[52:55], s{sT1} offen')
    A('v_lshlrev_b32 v28, 3, v28')
    A('v_sub_u32 v26, v26, v28')
    A('s_waitcnt vmcnt(0)')
    A('v_lshlrev_b32 v30, 16, v29')
    for ks in range(2):
        for q in range(4):
            r_ = DF + 4 * ks + q
            A(f'v_cmp_eq_u32 vcc, {16*ks + 2*q}, v26')
            A(f'v_cndmask_b32 v{r_}, 0, v29, vcc')
            A(f'v_cmp_eq_u32 vcc, {16*ks + 2*q + 1}, v26')
            A(f'v_cndmask_b32 v{r_}, v{r_}, v30, vcc')
    for tt in range(4):
        for ks in range(2):
            d = v(ACC + 16 * tt, 16)
            A(mf(d, v(XF + 8 * tt + 4 * ks, 4), v(DF + 4 * ks, 4), '0' if ks == 0 else d))
    A(f's_mul_i32 s{sA2}, s{sN}, 1280')
    A(f's_lshl_b32 s{sT2}, 1, s{sB}')
    for g_ in range(5):
        A(f's_mov_b32 s{sT0}, {DBG_SF2 + 4*g_}')
        wait_bits(A, sT0, sT2, 29)
    stages = []
    for kc in range(20):
        slot = kc % 5
        def dma(nxt, kc=kc, slot=slot):
            g = []
            for j in range(4):
                g.append([f's_add_u32 m0, s{sA3}, {slot*SL + j*1024}', f's_add_u32 s{sT0}, s{sA1}, {kc*16384 + j*1024}',
                          f'buffer_load_dwordx4 v{vHV}, {WS}, s{sT0} offen sc1 lds'])
            sr = SRD_1 if kc < 10 else SRD_2
            for j in range(4):
                g.append([f's_add_u32 m0, s{sA4}, {slot*SL + j*1024}', f's_add_u32 s{sT0}, s{sA2}, {(kc%10)*128}',
                          f'buffer_load_dwordx4 v{vCV+j}, s[{sr}:{sr+3}], s{sT0} offen lds'])
            return g
        steps = []
        for ks in range(4):
            fb = 20 * (ks % 2)
            hb, so = slot >> 1, (slot & 1) * SL
            reads = [(f'ds_read_b128 {a(fb+16,4)}, v{vCR+4*hb+ks} offset:{so}', ('c', fb))]
            for tt in range(4):
                for rd in range(2):
                    reads.append((f'ds_read_b64_tr_b16 {a(fb+4*tt+2*rd,2)}, v{vHR+hb} offset:{so + ks*4096 + rd*1024 + tt*256}', ('h', fb, tt)))
            mfs = []
            for tt in range(4):
                d = v(ACC + 16 * tt, 16)
                mfs.append((mf(d, a(fb + 4 * tt, 4), a(fb + 16, 4), d), [('h', fb, tt)]))
            steps.append(dict(reads=reads, mf=mfs))
        stages.append(dict(dma=dma, steps=steps))
    P = Pipe(A, stages, 5, False)
    P.prologue(); P.body()
    A('v_and_b32 v26, 31, v0')
    A('v_lshlrev_b32 v26, 2, v26')
    A('v_lshrrev_b32 v27, 5, v0')
    A('v_mul_u32_u24 v27, 20480, v27')
    A('v_add_u32 v26, v26, v27')
    A(f's_mul_i32 s{sA1}, s{sB}, {128*5120}')
    A(f's_lshl_b32 s{sT0}, s{sN}, 2')
    A(f's_add_u32 s{sA1}, s{sA1}, s{sT0}')
    A(f's_add_u32 s{sA1}, s{sA1}, 2560')
    for tt in range(4):
        for rg in range(16):
            A(f's_add_u32 s{sT0}, s{sA1}, {(32*tt + 8*(rg>>2) + (rg&3))*5120}')
            A(f'buffer_store_dword v{ACC+16*tt+rg}, v26, s[{SRD_O}:{SRD_O+3}], s{sT0} offen')
    rt_stamp(A, cfg, 0, 29)

def post(A, cfg, first, stride, waitprog=True):
    A(f's_load_dwordx2 s[82:83], s[0:1], {KA["out"]}')
    A(f's_mov_b32 s{sN}, s{first}')
    A('v_lshlrev_b32 v1, 4, v0')
    A('v_lshrrev_b32 v27, 4, v0')
    A('v_and_b32 v26, 15, v0')
    A('v_mul_u32_u24 v2, 10240, v27')
    A('v_lshl_add_u32 v2, v26, 4, v2')
    A('v_mul_u32_u24 v3, 5120, v26')
    A('v_lshl_add_u32 v3, v27, 4, v3')
    A('v_and_b32 v4, 31, v0')
    A(f's_mul_i32 s{sT0}, s{sW}, 10240')
    A(f'v_add_u32 v5, s{sT0}, v1')
    A('s_waitcnt lgkmcnt(0)')
    srd(A, SRD_O, 82, OUT_BYTES)
    TOP = A.newlabel('ptop'); END = A.newlabel('pend')
    A.label(TOP)
    A(f's_cmp_ge_u32 s{sN}, 512')
    A(f's_cbranch_scc1 {END}')
    A(f's_lshr_b32 s{sB}, s{sN}, 3')
    A(f's_and_b32 s{sG}, s{sN}, 7')
    A(f's_mul_i32 s{sG}, s{sG}, 5')
    PF, ACC, VF = 8, 88, 0
    A(f's_mul_i32 s{sA1}, s{sB}, {VW_S}')
    A(f's_lshr_b32 s{sT0}, s{sW}, 1')
    A(f's_mul_i32 s{sT0}, s{sT0}, {VW_X}')
    A(f's_add_u32 s{sA1}, s{sA1}, s{sT0}')
    A(f's_and_b32 s{sT0}, s{sW}, 1')
    A(f's_lshl_b32 s{sT0}, s{sT0}, 13')
    A(f's_add_u32 s{sA1}, s{sA1}, s{sT0}')
    A(f's_lshl_b32 s{sT0}, s{sG}, 14')
    A(f's_add_u32 s{sA1}, s{sA1}, s{sT0}')
    A(f's_add_u32 s{sA1}, s{sA1}, {VW_OFF}')
    if waitprog:
        L = A.newlabel('pw'); D = A.newlabel('pwd')
        A.label(L)
        A(f'buffer_load_ubyte v6, v4, {DBG}, 0 offen offset:{DBG_PROG} sc1')
        A('s_waitcnt vmcnt(0)')
        A(f'v_cmp_ge_u32 vcc, s{sB}, v6')
        A(f's_cbranch_vccz {D}')
        A('s_sleep 8')
        A(f's_sub_u32 s{sBUD}, s{sBUD}, 1')
        A(f's_cbranch_scc0 {L}')
        A(f's_mov_b32 s{sBUD}, 0')
        A.label(D)
    A(f's_mul_i32 s{sA2}, s{sB}, {PX_S}')
    A(f's_lshl_b32 s{sT0}, s{sW}, 14')
    A(f's_add_u32 s{sA2}, s{sA2}, s{sT0}')
    A(f's_add_u32 s{sA2}, s{sA2}, {PX_OFF}')
    for j in range(16):
        if j % 4 == 0: A(f's_add_u32 s{sT0}, s{sA2}, {j*1024}')
        A(f'buffer_load_dwordx4 {v(PF+4*j,4)}, v1, {WS}, s{sT0} offen offset:{(j%4)*1024} sc1')
    A(f's_mul_i32 s{sA2}, s{sB}, {PXM_S}')
    A(f's_lshl_b32 s{sT0}, s{sW}, 12')
    A(f's_add_u32 s{sA2}, s{sA2}, s{sT0}')
    A(f's_add_u32 s{sA2}, s{sA2}, {PXM_OFF}')
    for j in range(4):
        A(f'buffer_load_dwordx4 {v(PF+64+4*j,4)}, v1, {WS}, s{sA2} offen offset:{j*1024} sc1')
    A(f's_mul_i32 s{sA3}, s{sB}, {T_S}')
    A(f's_mul_i32 s{sT0}, s{sW}, 81920')
    A(f's_add_u32 s{sA3}, s{sA3}, s{sT0}')
    A(f's_add_u32 s{sA3}, s{sA3}, {TP_OFF}')
    def tile_loads(t):
        for hh in range(8):
            if hh % 4 == 0: A(f's_add_u32 s{sT0}, s{sA1}, {t*16384 + hh*1024}')
            A(f'buffer_load_dwordx4 {a(40*t+4*hh,4)}, v1, {WS}, s{sT0} offen offset:{(hh%4)*1024} sc1')
        A(f's_add_u32 s{sT1}, s{sG}, {t}')
        A(f's_and_b32 s{sT0}, s{sT1}, 3')
        A(f's_mul_i32 s{sT0}, s{sT0}, 2560')
        A(f's_lshr_b32 s{sT1}, s{sT1}, 2')
        A(f's_lshl_b32 s{sT1}, s{sT1}, 8')
        A(f's_add_u32 s{sT0}, s{sT0}, s{sT1}')
        A(f's_add_u32 s{sT0}, s{sT0}, s{sA3}')
        A(f'buffer_load_dwordx4 {a(40*t+32,4)}, v2, {WS}, s{sT0} offen sc1')
        A(f's_add_u32 s{sT0}, s{sT0}, 40960')
        A(f'buffer_load_dwordx4 {a(40*t+36,4)}, v2, {WS}, s{sT0} offen sc1')
    for t in range(4): tile_loads(t)
    for t in range(5):
        A(f's_waitcnt vmcnt({30 if t < 2 else 10*(4-t)})')
        if t == 0: tile_loads(4)
        for kk in range(10):
            for qt in range(2):
                d = v(ACC + 8 * t + 4 * qt, 4)
                A(f'v_mfma_f32_16x16x32_bf16 {d}, {a(40*t+4*kk,4)}, {v(PF+8*kk+4*qt,4)}, {"0" if kk == 0 else d}')
    A('s_barrier')
    for i in range(10):
        A(f'ds_write_b128 v5, {v(ACC+4*i,4)} offset:{i*1024}')
    A('s_waitcnt lgkmcnt(0)')
    A('s_barrier')
    A(f's_lshl_b32 s{sT0}, s{sW}, 10')
    A(f'v_add_u32 v6, s{sT0}, v1')
    for k in range(3):
        for p in range(4):
            A(f'ds_read_b128 {v(PF+16*k+4*p,4)}, v6 offset:{p*10240 + k*4096}')
    A(f's_lshl_b32 s{sA1}, s{sB}, 5')
    A(f's_and_b32 s{sT0}, s{sW}, 1')
    A(f's_lshl_b32 s{sT0}, s{sT0}, 4')
    A(f's_add_u32 s{sA1}, s{sA1}, s{sT0}')
    A(f's_mul_i32 s{sA1}, s{sA1}, 5120')
    A(f's_lshr_b32 s{sT0}, s{sW}, 1')
    A(f's_add_u32 s{sT0}, s{sT0}, s{sG}')
    A(f's_lshl_b32 s{sT0}, s{sT0}, 6')
    A(f's_add_u32 s{sA1}, s{sA1}, s{sT0}')
    A(f's_cmp_lt_u32 s{sW}, 2')
    A(f's_cselect_b32 s{sA2}, s{sA1}, 0x40000000')
    A('s_waitcnt lgkmcnt(0)')
    for k in range(3):
        b = PF + 16 * k
        for r in range(4):
            A(f'v_add_f32 v{b+r}, v{b+r}, v{b+4+r}')
            A(f'v_add_f32 v{b+8+r}, v{b+8+r}, v{b+12+r}')
        for r in range(4):
            A(f'v_add_f32 v{b+r}, v{b+r}, v{b+8+r}')
        A(f'buffer_store_dwordx4 {v(b,4)}, v3, s[{SRD_O}:{SRD_O+3}], s{sA1 if k < 2 else sA2} offen offset:{k*128}')
    A(f's_add_u32 s{sN}, s{sN}, {stride}')
    A('s_waitcnt vmcnt(0)')
    rt_stamp(A, cfg, 0, 6)
    A(f's_branch {TOP}')
    A.label(END)
```

```python
from asmgen import *
from layout import *
from rec import rt_stamp, srd, Lg, SRD_WS, SRD_DBG, SRD_W1, SRD_W2, WS

SRD_X = 24
sW, sH, sR, sBLK, sT0, sT1, sT2 = 28, 29, 30, 31, 32, 33, 34
sM0W, sM0X = 35, 36
sWA, sWB = 37, 38
sXC, sXN = 39, 40
sOUT = 41
sBIT = 42
sLI, sBUD = 43, 44
SLOT = 40960
NS = 4
vA0, vB, vX0, vWE, vXR, vOE, vST = 1, 4, 5, 9, 13, 21, 25
ACCA, ACCB, STG = 32, 128, 224

def mf(d, a_, b_, c): return f'v_mfma_f32_32x32x16_bf16 {d}, {a_}, {b_}, {c}'

class Pipe:
    def __init__(self, A, stages, ns, loop):
        self.A, self.stages, self.ns, self.loop = A, stages, ns, loop
    def prologue(self):
        A = self.A
        for st in self.stages[:self.ns]:
            for grp in st['dma'](False):
                for t in grp: A(t)
        n_after = sum(len(st['dma'](False)) for st in self.stages[1:self.ns])
        A(f's_waitcnt vmcnt({n_after})')
        A('s_barrier')
        for t, _ in self.stages[0]['steps'][0]['reads']: A(t)
    def body(self):
        A = self.A; S = self.stages; n = len(S); NS_ = self.ns
        flat = [(si, k) for si, st in enumerate(S) for k in range(len(st['steps']))]
        vq = [('dma', i) for i in range(1, NS_) for _ in S[i]['dma'](False)]
        pend = []
        lg = Lg(A)
        lg.q = [tg for _, tg in S[0]['steps'][0]['reads']]
        for j, (si, k) in enumerate(flat):
            step = S[si]['steps'][k]
            last = j + 1 == len(flat)
            nsi, nk = flat[(j + 1) % len(flat)]
            if nk == 0 and (self.loop or not last):
                idx = max(i for i, tg in enumerate(vq) if tg == ('dma', nsi))
                lg.drain()
                A(f's_waitcnt vmcnt({min(63, len(vq) - 1 - idx)})')
                vq = vq[idx + 1:]
                A('s_barrier')
                tgt = si + NS_
                assert not pend
                if self.loop or tgt < n:
                    pend = [(grp, ('dma', tgt % n)) for grp in S[tgt % n]['dma'](tgt >= n)]
                    nmf = sum(len(S[a_]['steps'][b_]['mf']) for a_, b_ in [flat[(j + d) % len(flat)] for d in range(len(S[nsi]['steps']))])
                    dper = max(1, nmf // len(pend)); dcnt = 0
            reads = list(S[nsi]['steps'][nk]['reads']) if (self.loop or not last) else []
            extra = list(step.get('fill', []))
            nm = len(step['mf'])
            rper = -(-len(reads) // max(1, nm - 1))
            eper = -(-len(extra) // nm)
            for i, (text, need) in enumerate(step['mf']):
                for tg in need: lg.wait(tg)
                A(text)
                for _ in range(rper):
                    if reads:
                        t, tg = reads.pop(0); lg.op(t, tg)
                if pend:
                    dcnt += 1
                    if dcnt % dper == 0:
                        grp, tg = pend.pop(0)
                        for t in grp: A(t)
                        vq.append(tg)
                for _ in range(eper):
                    if extra:
                        t = extra.pop(0); A(t)
                        if t.startswith('buffer_'): vq.append('st')
            for t in step.get('post', []):
                A(t)
                if t.startswith('buffer_'): vq.append('st')
        for grp, tg in pend:
            for t in grp: A(t)

def setup(A, vw):
    A(f's_load_dwordx2 s[4:5], s[0:1], {KA["ws"]}')
    A(f's_load_dwordx2 s[6:7], s[0:1], {KA["dbg"]}')
    A(f's_load_dwordx2 s[56:57], s[0:1], {KA["A_x"]}')
    A(f's_load_dwordx8 s[60:67], s[0:1], {KA["Wq"]}')
    A('v_lshrrev_b32 v30, 6, v0')
    A(f'v_readfirstlane_b32 s{sW}, v30')
    A('v_and_b32 v0, 63, v0')
    A('s_waitcnt lgkmcnt(0)')
    srd(A, SRD_WS, 4, WS_BYTES); srd(A, SRD_DBG, 6, 256); srd(A, SRD_X, 56, X_BYTES)
    if vw: srd(A, SRD_W1, 64, W_BYTES); srd(A, SRD_W2, 66, W_BYTES)
    else:  srd(A, SRD_W1, 62, W_BYTES); srd(A, SRD_W2, 60, W_BYTES)
    for j in range(3):
        A(f'v_add_u32 v26, {64*j}, v0')
        A('v_mul_u32_u24 v27, 0xaaab, v26')
        A('v_lshrrev_b32 v27, 20, v27')
        A('v_mul_u32_u24 v28, 24, v27')
        A('v_sub_u32 v28, v26, v28')
        A('v_bfe_u32 v29, v27, 1, 1')
        A('v_lshlrev_b32 v29, 2, v29')
        A('v_xor_b32 v28, v28, v29')
        A('v_mul_u32_u24 v27, 12288, v27')
        A(f'v_lshl_add_u32 v{vA0+j}, v28, 4, v27')
    A('v_lshrrev_b32 v27, 3, v0')
    A('v_and_b32 v28, 7, v0')
    A('v_bfe_u32 v29, v27, 1, 1')
    A('v_lshlrev_b32 v29, 2, v29')
    A('v_xor_b32 v28, v28, v29')
    A('v_mul_u32_u24 v27, 1280, v27')
    A(f'v_lshl_add_u32 v{vB}, v28, 4, v27')
    for j in range(4):
        A('v_lshrrev_b32 v27, 3, v0')
        A(f'v_add_u32 v27, {8*j}, v27')
        A('v_bfe_u32 v29, v27, 1, 3')
        A('v_and_b32 v28, 7, v0')
        A('v_xor_b32 v28, v28, v29')
        if vw:
            A('v_bfe_u32 v29, v27, 2, 1')
            A('v_and_b32 v27, 3, v27')
            A('v_lshl_add_u32 v27, v29, 4, v27')
            A(f'v_add_u32 v27, {8*(j>>1) + 4*(j&1)}, v27')
        A('v_mul_u32_u24 v27, 1280, v27')
        A(f'v_lshl_add_u32 v{vX0+j}, v28, 4, v27')
    A('v_lshrrev_b32 v26, 5, v0')
    A('v_bfe_u32 v27, v0, 2, 2')
    A('v_bfe_u32 v28, v0, 4, 1')
    A('v_and_b32 v29, 3, v0')
    A('v_lshl_add_u32 v30, v26, 3, v27')
    A('v_mul_u32_u24 v30, 384, v30')
    A('v_and_b32 v31, 1, v29')
    A('v_lshl_add_u32 v30, v31, 5, v30')
    A('v_lshl_add_u32 v30, v28, 4, v30')
    A('v_lshrrev_b32 v31, 1, v29')
    A('v_lshl_add_u32 v30, v31, 3, v30')
    A('v_lshrrev_b32 v31, 1, v27')
    A('v_lshlrev_b32 v31, 6, v31')
    A(f'v_add_u32 v{vWE}, v30, v31')
    A('v_sub_u32 v30, v30, v31')
    A(f'v_add_u32 v{vWE+1}, 64, v30')
    A(f'v_add_u32 v{vWE+2}, {2*SLOT}, v{vWE}')
    A(f'v_add_u32 v{vWE+3}, {2*SLOT}, v{vWE+1}')
    A('v_lshl_add_u32 v30, v26, 4, v27')
    A('v_lshlrev_b32 v30, 7, v30')
    A('v_lshl_add_u32 v30, v28, 5, v30')
    A('v_lshl_add_u32 v30, v29, 3, v30')
    A(f'v_add_u32 v{vOE}, v30, v31')
    A('v_sub_u32 v30, v30, v31')
    A(f'v_add_u32 v{vOE+1}, 64, v30')
    A(f'v_add_u32 v{vOE+2}, {2*SLOT}, v{vOE}')
    A(f'v_add_u32 v{vOE+3}, {2*SLOT}, v{vOE+1}')
    A(f's_lshl_b32 s{sM0X}, s{sW}, 12')
    A(f's_add_u32 s{sM0X}, s{sM0X}, 24576')
    A(f's_mul_i32 s{sM0W}, s{sW}, 6144')
    A('v_and_b32 v27, 31, v0')
    A('v_bfe_u32 v28, v0, 1, 3')
    A('v_xor_b32 v28, v28, v26')
    A('v_lshlrev_b32 v27, 7, v27')
    A(f'v_add_u32 v27, s{sM0X}, v27')
    for ks in range(4):
        A(f'v_xor_b32 v29, {2*ks}, v28')
        A(f'v_lshl_add_u32 v{vXR+ks}, v29, 4, v27')
        A(f'v_add_u32 v{vXR+4+ks}, {2*SLOT}, v{vXR+ks}')
    A('v_bfe_u32 v28, v0, 4, 1')
    A(f'v_lshlrev_b32 v{vST}, {14 if vw else 10}, v28')
    A('v_and_b32 v28, 15, v0')
    A(f'v_lshl_add_u32 v{vST}, v28, 4, v{vST}')
    A(f'v_lshl_add_u32 v{vST}, v26, 9, v{vST}')
    A(f's_mul_i32 s{sWA}, s{sW}, {16*12288}')
    A(f's_mul_i32 s{sT0}, s{sH}, 384')
    A(f's_add_u32 s{sWA}, s{sWA}, s{sT0}')
    A(f's_mul_i32 s{sWB}, s{sW}, {48*1280}')
    A(f's_mul_i32 s{sT0}, s{sH}, {192*1280}')
    A(f's_add_u32 s{sWB}, s{sWB}, s{sT0}')
    A(f's_lshl_b32 s{sBIT}, 1, s{sH}')
    A(f's_mov_b32 s{sBLK}, s{sR}')

def blk_offsets(A, vw, step):
    A(f's_lshl_b32 s{sT0}, s{sBLK}, 2')
    A(f's_add_u32 s{sT0}, s{sT0}, s{sW}')
    A(f's_mul_i32 s{sXC}, s{sT0}, {32*1280}')
    A(f's_add_u32 s{sXN}, s{sXC}, {step*128*1280}')
    if vw:
        A(f's_mul_i32 s{sOUT}, s{sT0}, {VW_S}')
        A(f's_lshr_b32 s{sT1}, s{sH}, 4')
        A(f's_mul_i32 s{sT1}, s{sT1}, {VW_X}')
        A(f's_add_u32 s{sOUT}, s{sOUT}, s{sT1}')
        A(f's_and_b32 s{sT1}, s{sH}, 15')
        A(f's_lshl_b32 s{sT1}, s{sT1}, 10')
        A(f's_add_u32 s{sOUT}, s{sOUT}, s{sT1}')
        A(f's_add_u32 s{sOUT}, s{sOUT}, {VW_OFF}')
    else:
        A(f's_mul_i32 s{sOUT}, s{sT0}, {KQ_S}')
        A(f's_mul_i32 s{sT1}, s{sH}, {KQ_SH}')
        A(f's_add_u32 s{sOUT}, s{sOUT}, s{sT1}')

def proj_stages(first_slot, first_step, srdw, acc):
    stages = []
    for kc in range(10):
        slot = (first_slot + kc) % NS
        def dma(nxt, kc=kc, slot=slot):
            g = []
            for j in range(6):
                g.append([f's_add_u32 m0, s{sM0W}, {slot*SLOT + j*1024}',
                          f's_add_u32 s{sT0}, s{sWA}, {(kc*64 + (j//3)*8)*12288}',
                          f'buffer_load_dwordx4 v{vA0+j%3}, s[{srdw}:{srdw+3}], s{sT0} offen lds'])
            for j in range(4):
                g.append([f's_add_u32 m0, s{sM0X}, {slot*SLOT + j*1024}',
                          f's_add_u32 s{sT0}, s{sXN if nxt else sXC}, {kc*128}',
                          f'buffer_load_dwordx4 v{vX0+j}, s[{SRD_X}:{SRD_X+3}], s{sT0} offen lds'])
            return g
        steps = []
        for ks in range(4):
            fb = 28 * ((first_step + 4 * kc + ks) % 2)
            so = (slot & 1) * SLOT; hi = slot >> 1
            reads = [(f'ds_read_b128 {a(fb+24,4)}, v{vXR+4*hi+ks} offset:{so}', ('x', fb))]
            for T in range(6):
                for rd in range(2):
                    reads.append((f'ds_read_b64_tr_b16 {a(fb+4*T+2*rd,2)}, v{vWE+2*hi+(T&1)} offset:{so + (16*ks+4*rd)*384 + (T>>1)*128}', ('w', fb, T)))
            mfs = []
            for T in range(6):
                d = v(acc + 16 * T, 16)
                mfs.append((mf(d, a(fb + 4 * T, 4), a(fb + 24, 4), '0' if (kc, ks) == (0, 0) else d), [('w', fb, T)]))
            steps.append(dict(reads=reads, mf=mfs))
        stages.append(dict(dma=dma, steps=steps))
    return stages

def pack_store(acc16, stg, u, soff, imm):
    out = [f'v_cvt_pk_bf16_f32 v{stg+i}, v{acc16+8*u+2*i}, v{acc16+8*u+2*i+1}' for i in range(4)]
    out.append(f'buffer_store_dwordx4 {v(stg,4)}, v{vST}, {WS}, s{soff} offen offset:{imm} sc1')
    return out

def kq_epilogue(acc, base, sreg):
    out = []
    for T in range(6):
        for u in range(2):
            pre = [f's_add_u32 s{sreg}, s{sOUT}, {base + (T>>1)*4096}'] if (T % 2 == 0 and u == 0) else []
            out.append(pre + pack_store(acc + 16 * T, STG + 4 * ((2 * T + u) % 8), u, sreg, u * 256 + (T & 1) * 2048))
    return out

def publish(A, word):
    A('s_waitcnt vmcnt(0)')
    A('s_barrier')
    sk = A.newlabel('pub')
    A(f's_cmp_lg_u32 s{sW}, 0')
    A(f's_cbranch_scc1 {sk}')
    A(f's_lshl_b32 s{sT0}, s{sBLK}, 3')
    A(f's_add_u32 s{sT0}, s{sT0}, {DBG_MASK + 4*word}')
    A(f'v_mov_b32 v26, s{sBIT}')
    A('s_mov_b64 exec, 1')
    A(f'buffer_atomic_or v26, off, s[{SRD_DBG}:{SRD_DBG+3}], s{sT0} sc1')
    A('s_mov_b64 exec, -1')
    A.label(sk)

def worker(A, cfg, vw, done_label, nrep=3):
    setup(A, vw)
    rt_stamp(A, cfg, 0, 26, first=True)
    blk_offsets(A, vw, nrep)
    if vw:
        st = proj_stages(0, 0, SRD_W1, ACCA)
        VP, PACC = ACCB, ACCB + 48
        st[-1]['steps'][-1]['post'] = [f'v_cvt_pk_bf16_f32 v{VP+i}, v{ACCA+2*i}, v{ACCA+2*i+1}' for i in range(48)]
        pend_epi = []
        for c in range(10):
            slot = (10 + c) % NS
            def dma(nxt, c=c, slot=slot):
                return [[f's_add_u32 m0, s{sM0W}, {slot*SLOT + j*1024}',
                         f's_add_u32 s{sT0}, s{sWB}, {c*128 + j*8*1280}',
                         f'buffer_load_dwordx4 v{vB}, s[{SRD_W2}:{SRD_W2+3}], s{sT0} offen lds'] for j in range(6)]
            steps = []
            for q in range(4):
                ct, half = q >> 1, q & 1
                fb = 28 * (q % 2)
                so = (slot & 1) * SLOT; hi = slot >> 1
                d = v(PACC + 16 * ct, 16)
                reads, mfs = [], []
                for i in range(6):
                    kk = 6 * half + i; T, u = kk >> 1, kk & 1
                    for rd in range(2):
                        reads.append((f'ds_read_b64_tr_b16 {a(fb+4*i+2*rd,2)}, v{vOE+2*hi+ct} offset:{so + (32*T+8*u+4*rd)*128}', ('w', fb, i)))
                    mfs.append((mf(d, v(VP + 4 * kk, 4), a(fb + 4 * i, 4), '0' if kk == 0 else d), [('w', fb, i)]))
                step = dict(reads=reads, mf=mfs)
                if half == 1 and pend_epi: pass
                steps.append(step)
            st.append(dict(dma=dma, steps=steps))
        flat = [(c, q) for c in range(10) for q in range(4)]
        for n in range(20):
            epi = [f's_add_u32 s{sT2}, s{sOUT}, {n*32768}']
            for u in range(2): epi += pack_store(PACC + 16 * (n & 1), STG + 4 * ((2 * n + u) % 8), u, sT2, u * 256)
            if n < 19:
                c, q = flat[2 * (n + 1) + 1]
                st[10 + c]['steps'][q]['fill'] = epi
            else:
                st[19]['steps'][3]['post'] = epi
    else:
        st = proj_stages(0, 0, SRD_W1, ACCA) + proj_stages(10, 40, SRD_W2, ACCB)
        epi = kq_epilogue(ACCA, 0, sT2)
        for i, e in enumerate(epi):
            st[10 + (i + 1) // 4]['steps'][(i + 1) % 4]['fill'] = e
        st[19]['steps'][3]['post'] = [t for e in kq_epilogue(ACCB, 12288, sT2) for t in e]
    P = Pipe(A, st, NS, True)
    P.prologue()
    TOP = A.newlabel('wtop')
    A.label(TOP)
    def tail():
        publish(A, 1 if vw else 0)
        rt_stamp(A, cfg, 0, 26)
        A(f's_add_u32 s{sBLK}, s{sBLK}, {nrep}')
        blk_offsets(A, vw, nrep)
        A(f's_cmp_lt_u32 s{sBLK}, 16')
        A(f's_cbranch_scc1 {TOP}')
        A('s_waitcnt lgkmcnt(0)')
        A(f's_branch {done_label}')
    P.body()
    tail()

def worker_entry(A, cfg, done_label):
    A('s_and_b32 s32, s2, 7')
    A('s_sub_u32 s32, s32, 2')
    A('s_lshl_b32 s32, s32, 5')
    A('s_lshr_b32 s33, s2, 3')
    A('s_add_u32 s32, s32, s33')
    A(f's_mov_b32 s{sLI}, s32')
    A(f's_mov_b32 s{sBUD}, 0x40000')
    A('s_mul_i32 s33, s32, 0xaaab')
    A('s_lshr_b32 s33, s33, 17')
    A('s_mul_i32 s34, s33, 3')
    A(f's_sub_u32 s{sR}, s32, s34')
    A(f's_lshr_b32 s{sH}, s33, 1')
    VW = A.newlabel('role_vw')
    A('s_bitcmp1_b32 s33, 0')
    A(f's_cbranch_scc1 {VW}')
    worker(A, cfg, False, done_label)
    A.label(VW)
    worker(A, cfg, True, done_label)
```

```python
import sys, json
from asmgen import *
from layout import *
import rec, work, tailw

NAME = 'concat_heads__memory_aug_recurrent_mem_tr__ssm_conv_s5__prompt'
REF = f'cdna_kernels/{NAME}.s.ref'

def header(launches):
    lines = [l for l in open(REF).read().split('\n') if l.startswith(';') and '@launch' not in l and 'Override' not in l and 'grid=ceil' not in l]
    lines = [l for l in lines if l.startswith('; Kernarg') or l.startswith(';   offset')]
    return '\n'.join(lines + launches) + '\n.amdgcn_target "amdgcn-amd-amdhsa--gfx950"\n.text\n'

def kernel_text(name, A):
    n = A.fix_hazards()
    return f'.globl {name}\n.p2align 8\n.type {name},@function\n{name}:\n' + A.text()

def kd(name, vgpr=512, acc=256, sgpr=102):
    return (f'.p2align 6\n.amdhsa_kernel {name}\n  .amdhsa_next_free_vgpr {vgpr}\n  .amdhsa_next_free_sgpr {sgpr}\n'
            f'  .amdhsa_accum_offset {acc}\n  .amdhsa_group_segment_fixed_size 0\n  .amdhsa_kernarg_size 152\n'
            f'  .amdhsa_user_sgpr_count 2\n  .amdhsa_user_sgpr_kernarg_segment_ptr 1\n  .amdhsa_system_sgpr_workgroup_id_x 1\n'
            f'.end_amdhsa_kernel\n')

def build_rec_only(cfg):
    A = Asm()
    A('s_cmp_ge_u32 s2, 256')
    A('s_cbranch_scc1 L_exit')
    A('s_and_b32 s3, s2, 7')
    A('s_cmp_lt_u32 s3, 2')
    A('s_cbranch_scc1 L_rec')
    A.label('L_exit')
    A('s_endpgm')
    A.label('L_rec')
    rec.rec_entry(A, cfg)
    k = NAME + '_kernel'
    return header([f'; @launch grid=(256,1,1) block=(256,1,1) lds=163840']) + kernel_text(k, A) + '.section .rodata,"a"\n' + kd(k)

def build_work_only(cfg):
    A = Asm()
    A('s_cmp_ge_u32 s2, 256')
    A('s_cbranch_scc1 L_exit')
    A('s_and_b32 s3, s2, 7')
    A('s_cmp_ge_u32 s3, 2')
    A('s_cbranch_scc1 L_work')
    A.label('L_exit')
    A('s_endpgm')
    A.label('L_work')
    work.worker_entry(A, cfg, 'L_exit')
    k = NAME + '_kernel'
    return header([f'; @launch grid=(256,1,1) block=(256,1,1) lds=163840']) + kernel_text(k, A) + '.section .rodata,"a"\n' + kd(k)

def build_full(cfg):
    A = Asm()
    A('s_cmp_ge_u32 s2, 256')
    A('s_cbranch_scc1 L_exit')
    A('s_and_b32 s3, s2, 7')
    A('s_cmp_ge_u32 s3, 2')
    A('s_cbranch_scc1 L_work')
    A('s_branch L_rec')
    A.label('L_exit')
    A('s_endpgm')
    A.label('L_work')
    work.worker_entry(A, cfg, 'L_tail')
    A.label('L_tail')
    A(f's_mul_i32 s32, s{work.sLI}, 0xaaab')
    A('s_lshr_b32 s32, s32, 17')
    A('s_lshl_b32 s32, s32, 1')
    A(f's_add_u32 s32, s32, s{work.sR}')
    A(f's_sub_u32 s{tailw.sN}, s32, 1')
    A(f's_cmp_eq_u32 s{work.sR}, 0')
    A('s_cbranch_scc1 L_post')
    A(f's_cmp_ge_u32 s{tailw.sN}, 80')
    A('s_cbranch_scc1 L_post')
    tailw.ssm(A, cfg)
    A.label('L_post')
    tailw.post(A, cfg, work.sLI, 192)
    A('s_endpgm')
    A.label('L_rec')
    rec.rec_entry(A, cfg)
    k = NAME + '_kernel'
    return header([f'; @launch grid=(256,1,1) block=(256,1,1) lds=163840']) + kernel_text(k, A) + '.section .rodata,"a"\n' + kd(k)

if __name__ == '__main__':
    mode = sys.argv[1]; out = sys.argv[2]
    cfg = json.loads(sys.argv[3]) if len(sys.argv) > 3 else {}
    txt = globals()['build_' + mode](cfg)
    open(out, 'w').write(txt)
    print(out, len(txt), 'bytes', txt.count('\n'), 'lines', txt.count('auto hazard pad'), 'pads')
```

```python
from asmgen import *
from layout import *

RIMG = 0
PIMG = 10240
QIMG = 20480
KIMG = 23552
WRES = 26624
BUF = 108544
LDS_REC = 157696

SRD_WS, SRD_DBG, SRD_W1, SRD_W2, SRD_AUX = 8, 12, 16, 20, 24
sW, sX, sHL, sH, sS, sBUD = 28, 29, 30, 31, 32, 33
sT0, sT1, sT2, sT3 = 34, 35, 36, 37
sML, sMR = 38, 39
sA, sB, sC, sD, sE, sF, sG = 40, 41, 42, 43, 44, 45, 46
sCSC = 47
sXCC = 48
sUNIT = 49
sM2 = 50
sSTP = 52
sTM = 54
vTRB, vIDX, vTRA, vP2, vAIW, vL16, vP0, vWR, vBUFR, v9, v10, v11 = range(12)
sH1, sH2, sH3 = 56, 57, 58
bD, bE, bB, bC, bML, bMR, sD2, sE2, sTP = 60, 61, 62, 63, 64, 65, 66, 67, 59
import os
if os.environ.get('NOSTREAM'):
    KQ_S = 0; VW_S = 0
CSC = 192 ** -0.5 * 1.4426950408889634

import struct
def f2u(x): return struct.unpack('<I', struct.pack('<f', x))[0]

def srd(A, d, lo, nbytes):
    A(f's_mov_b32 s{d}, s{lo}')
    A(f's_mov_b32 s{d+1}, s{lo+1}')
    A(f's_mov_b32 s{d+2}, {nbytes:#x}')
    A(f's_mov_b32 s{d+3}, 0x20000')

def lds_frags(vo):
    return ([(c, 2) for c in range(4, 10)] if vo else []) + [(c, 2) for c in range(10, 20)]
def wreg(c, t, vo=False):
    lf = lds_frags(vo)
    regs = [(c_, t_) for c_ in range(20) for t_ in range(3) if (c_, t_) not in lf]
    i = regs.index((c, t))
    return ('a', 8 * i) if i < 32 else ('v', 256 - 8 * (len(regs) - i))
def R(f, base, n): return f'{f}[{base}:{base+n-1}]'

class Lg:
    def __init__(self, A): self.A = A; self.q = []
    def op(self, text, tag=None):
        self.A(text); self.q.append(tag)
    def wait(self, tag):
        idx = [i for i, t in enumerate(self.q) if t == tag]
        if not idx: return
        n = len(self.q) - 1 - idx[-1]
        self.A(f's_waitcnt lgkmcnt({min(n, 15)})')
        self.q = self.q[len(self.q) - min(n, 15):] if n else []
    def drain(self):
        self.A('s_waitcnt lgkmcnt(0)'); self.q = []

class F:
    def __init__(self, e, text, tag=None, id=None, after=()):
        self.e, self.text, self.tag, self.id, self.after = e, text, tag, id, tuple(after)
        mn = text.split()[0]
        self.cls = 'lds' if mn.startswith('ds_') else 'valu' if mn.startswith('v_') else 'vmem' if mn.startswith('buffer_') else 'salu'

def run_stream(A, lg, items, fillers, cap=None):
    cap = cap or dict(lds=1, valu=1, vmem=1, salu=2)
    pend = sorted(fillers, key=lambda f: f.e)
    done = {}
    def issue(f, gap):
        for a_ in f.after:
            assert a_ in done, (f.text, a_)
        if f.cls == 'lds': lg.op(f.text, f.tag)
        else: A(f.text)
        if f.id is not None: done[f.id] = gap
        pend.remove(f)
    for f in [f for f in pend if f.e < 0]: issue(f, -1)
    def gap(i, slack=0):
        n = 0
        for cls in ('lds', 'valu', 'salu', 'vmem'):
            k = 0
            for f in [f for f in pend if f.cls == cls]:
                if k >= cap[cls]: break
                if f.e > i or any(a_ not in done or done[a_] >= i for a_ in f.after): break
                issue(f, i); k += 1; n += 1
        return n
    for i, (text, need) in enumerate(items):
        for tg in need:
            for f in [f for f in pend if f.tag == tg]:
                assert f.e < i, (f.text, f.e, i)
                issue(f, i - 1)
            lg.wait(tg)
        A(text)
        gap(i)
    i = len(items)
    cap = dict(lds=2, valu=2, vmem=2, salu=2)
    while pend:
        gap(i); i += 1
        assert i < 1000

def smf(acc, afr, bop):
    return f'v_smfmac_f32_16x16x64_bf16 {v(acc,4)}, {v(afr,4)}, {bop}, v{vIDX}'

def stamp(A, cfg, idx):
    if not cfg.get('stamps') or idx == 9.5: return
    A(f's_memtime s[{70+2*idx}:{71+2*idx}]')
    if idx == 0: A(f's_memrealtime s[{70+2*11}:{71+2*11}]')
    if idx == 0: A(f's_mov_b32 s{70+2*9}, s{sBUD}')
    if idx == 1: A(f's_sub_u32 s{70+2*10}, s{70+2*9}, s{sBUD}')

def rt_stamp(A, cfg, sidx, vt, first=False):
    if not cfg.get('rt'): return
    if first:
        A('s_lshl_b32 s97, s2, 8')
        A(f's_add_u32 s97, s97, {RT_OFF}')
    A('s_memrealtime s[98:99]')
    A('s_waitcnt lgkmcnt(0)')
    A(f'v_mov_b32 v{vt}, s98')
    A(f'buffer_store_dword v{vt}, off, s[{SRD_WS}:{SRD_WS+3}], s97')
    A('s_add_u32 s97, s97, 4')

def stamp_flush(A, cfg, n, r):
    if not cfg.get('stamps'): return
    A('s_waitcnt lgkmcnt(0)')
    for i in range(12):
        A(f'v_writelane_b32 v{r}, s{70+2*i}, {i}')
    A(f'v_lshrrev_b32 v{r+1}, 2, v{vL16}')
    A(f'buffer_store_dword v{r}, v{r+1}, s[{SRD_WS}:{SRD_WS+3}], s{sSTP} offen')
    A(f's_add_u32 s{sSTP}, s{sSTP}, 256')

WS = f's[{SRD_WS}:{SRD_WS+3}]'

def retry_tail(A, tmp, L, D):
    A(f'v_cmp_eq_u32 vcc, -1, v{tmp}')
    A(f's_cbranch_vccz {D}')
    A(f's_sub_u32 s{sBUD}, s{sBUD}, 1')
    A(f's_cbranch_scc0 {L}')
    A(f's_mov_b32 s{sBUD}, 0')

def ld10(A, soff, rb, skip_first=False):
    if not skip_first: A(f'buffer_load_dwordx4 {v(rb,4)}, v{vP0}, {WS}, s{soff} offen sc1')
    A(f'buffer_load_dwordx4 {v(rb+4,4)}, v{vP0}, {WS}, s{soff} offen offset:1024 sc1')
    A(f'buffer_load_dwordx2 {v(rb+8,2)}, v{vP2}, {WS}, s{soff} offen offset:2048 sc1')

def chk10(A, rb, tmp, behind=0):
    A(f's_waitcnt vmcnt({2+behind})')
    A(f'v_max3_u32 v{tmp}, v{rb}, v{rb+1}, v{rb+2}')
    A(f's_waitcnt vmcnt({1+behind})')
    A(f'v_max3_u32 v{tmp+1}, v{rb+4}, v{rb+5}, v{rb+6}')
    A(f'v_max3_u32 v{tmp}, v{tmp}, v{rb+3}, v{rb+7}')
    A(f's_waitcnt vmcnt({behind})')
    A(f'v_max3_u32 v{tmp+1}, v{tmp+1}, v{rb+8}, v{rb+9}')
    A(f'v_max_u32 v{tmp}, v{tmp}, v{tmp+1}')

def put10(A, rb, img, first=True):
    if first: A(f'ds_write_b128 v{vP0}, {v(rb,4)} offset:{img}')
    A(f'ds_write_b128 v{vP0}, {v(rb+4,4)} offset:{img + 1024}')
    A(f'ds_write_b64 v{vP2}, {v(rb+8,2)} offset:{img + 2048}')

def fetch_m(A, cfg, lf, lr, rem, tmp, filler1, filler2, behind=None, oneshot=False):
    LL = A.newlabel('ml'); LC = A.newlabel('mlc'); LD = A.newlabel('mld')
    RL = A.newlabel('mr'); RC = A.newlabel('mrc'); RR = A.newlabel('mrr'); D = A.newlabel('mrd')
    ld10(A, sML, lr)
    if oneshot:
        A('s_barrier', 'local loads of all waves first')
        ld10(A, sMR, rem)
    filler1()
    if oneshot or not cfg.get('pipe', 1): A(f's_branch {LC}')
    else:
        A('s_waitcnt vmcnt(0)')
        stamp(A, cfg, 7)
        ld10(A, sML, lr)
        A('s_sleep 2')
    A.label(LL)
    ld10(A, sML, lr)
    if oneshot: ld10(A, sMR, rem)
    A.label(LC)
    chk10(A, lr, tmp, behind=3 if (oneshot or cfg.get('pipe', 1)) else 0)
    retry_tail(A, tmp, LL, LD)
    A.label(LD)
    if not oneshot:
        A('s_barrier', 'B0')
        ld10(A, sMR, rem)
        if behind: behind[1]()
    stamp(A, cfg, 0)
    for i in range(10):
        A(f'v_lshlrev_b32 v{lf+2*i}, 16, v{lr+i}')
        A(f'v_and_b32 v{lf+2*i+1}, 0xffff0000, v{lr+i}')
    filler2()
    def process(behind):
        for part, (o, n) in enumerate(((0, 4), (4, 4), (8, 2))):
            A(f's_waitcnt vmcnt({2-part+behind})')
            r = rem + o
            if part == 0:
                A(f'v_cmp_eq_u32 vcc, -1, v{r+3}')
                A(f'v_max3_u32 v{tmp}, v{r}, v{r+1}, v{r+2}')
                A(f's_cbranch_vccnz {RR}')
            elif part == 1:
                A(f'v_max3_u32 v{tmp+1}, v{r}, v{r+1}, v{r+2}')
                A(f'v_max_u32 v{tmp}, v{tmp}, v{r+3}')
            else:
                A(f'v_max3_u32 v{tmp+1}, v{tmp+1}, v{r}, v{r+1}')
            for i in range(n):
                A(f'v_lshlrev_b32 v{lr+2*i}, 16, v{r+i}')
                A(f'v_and_b32 v{lr+2*i+1}, 0xffff0000, v{r+i}')
            if part == 2: A(f'v_max_u32 v{tmp}, v{tmp}, v{tmp+1}')
            for i in range(n):
                A(f'v_pk_add_f32 {v(lr+2*i,2)}, {v(lr+2*i,2)}, {v(lf+2*(o+i),2)}')
            if part == 2: A(f'v_cmp_eq_u32 vcc, -1, v{tmp}')
            for i in range(n):
                A(f'v_cvt_pk_bf16_f32 v{r+i}, v{lr+2*i}, v{lr+2*i+1}')
            if n == 4: A(f'ds_write_b128 v{vP0}, {v(r,4)} offset:{RIMG + part*1024}')
            else: A(f'ds_write_b64 v{vP2}, {v(r,2)} offset:{RIMG + 2048}')
    process(behind[0] if behind else 0)
    A(f's_cbranch_vccz {D}')
    A.label(RR)
    A(f's_sub_u32 s{sBUD}, s{sBUD}, 1')
    A(f's_cbranch_scc0 {RL}')
    A(f's_mov_b32 s{sBUD}, 0')
    A('s_waitcnt vmcnt(0)')
    A(f's_branch {D}')
    A.label(RL)
    ld10(A, sMR, rem)
    A.label(RC)
    process(0)
    A(f's_cbranch_vccnz {RR}')
    A.label(D)
    stamp(A, cfg, 1)

def wait_mask(A, cfg, blk_s, word, sbits, tmpv):
    if cfg.get('noflags'): return
    L = A.newlabel('fl'); D = A.newlabel('fld')
    A(f's_lshl_b32 s{sT0}, s{blk_s}, 3')
    A(f's_add_u32 s{sT0}, s{sT0}, {DBG_MASK + 4*word}')
    A(f'v_mov_b32 v{tmpv+1}, 0')
    A.label(L)
    A(f'buffer_load_dword v{tmpv}, v{tmpv+1}, s[{SRD_DBG}:{SRD_DBG+3}], s{sT0} offen sc1')
    A('s_waitcnt vmcnt(0)')
    A(f'v_readfirstlane_b32 s{sT1}, v{tmpv}')
    A(f's_and_b32 s{sT1}, s{sT1}, s{sbits}')
    A(f's_cmp_eq_u32 s{sT1}, s{sbits}')
    A(f's_cbranch_scc1 {D}')
    A('s_sleep 4')
    A(f's_sub_u32 s{sBUD}, s{sBUD}, 1')
    A(f's_cbranch_scc0 {L}')
    A(f's_mov_b32 s{sBUD}, 0')
    A.label(D)

def common_setup(A, cfg):
    A(f's_load_dwordx2 s[4:5], s[0:1], {KA["ws"]}')
    A(f's_load_dwordx2 s[6:7], s[0:1], {KA["dbg"]}')
    A(f's_load_dwordx2 s[56:57], s[0:1], {KA["mem0"]}')
    A(f's_load_dwordx8 s[60:67], s[0:1], {KA["Wq"]}')
    A(f'v_lshrrev_b32 v1, 6, v0')
    A(f'v_readfirstlane_b32 s{sW}, v1')
    A(f's_and_b32 s{sX}, s2, 7')
    A(f's_lshr_b32 s{sT0}, s2, 3')
    A(f's_and_b32 s{sHL}, s{sT0}, 15')
    A(f's_lshl_b32 s{sH}, s{sX}, 4')
    A(f's_add_u32 s{sH}, s{sH}, s{sHL}')
    A(f's_mov_b32 s{sS}, 0')
    A(f's_mov_b32 s{sBUD}, 0x10000')
    A(f's_mov_b32 s{sCSC}, {f2u(CSC):#x}')
    A(f's_getreg_b32 s{sXCC}, hwreg(HW_REG_XCC_ID)')
    A(f's_and_b32 s{sXCC}, s{sXCC}, 7')
    A('s_waitcnt lgkmcnt(0)')
    srd(A, SRD_WS, 4, WS_BYTES)
    srd(A, SRD_DBG, 6, 256)
    srd(A, SRD_AUX, 56, 8 * 640 * 2)
    A('v_mov_b32 v12, v0')
    A('v_and_b32 v13, 63, v0')
    A('v_and_b32 v14, 15, v13')
    A('v_lshrrev_b32 v15, 4, v13')
    A('v_bfe_u32 v16, v14, 1, 1')
    A('v_mul_u32_u24 v17, 0x5555, v16')
    A(f'v_add_u32 v{vIDX}, 0x8888, v17')
    A(f'v_lshlrev_b32 v{vTRA}, 8, v15')
    A('v_and_b32 v17, 3, v14')
    A(f'v_lshl_add_u32 v{vTRA}, v17, 6, v{vTRA}')
    A('v_lshrrev_b32 v17, 2, v14')
    A(f'v_lshl_add_u32 v{vTRA}, v17, 3, v{vTRA}')
    A('v_and_b32 v17, 1, v15')
    A(f'v_lshl_add_u32 v{vTRA}, v17, 5, v{vTRA}')
    A(f'v_xor_b32 v{vTRB}, 32, v{vTRA}')
    A(f'v_lshlrev_b32 v{vAIW}, 2, v12')
    A(f's_and_b32 s{sT0}, s{sW}, 1')
    A(f's_lshl_b32 s{sT0}, s{sT0}, 5')
    A(f'v_xor_b32 v{vAIW}, s{sT0}, v{vAIW}')
    A(f'v_lshlrev_b32 v{vL16}, 4, v13')
    A(f's_mul_i32 s{sT0}, s{sW}, 2560')
    A(f'v_add_u32 v{vP0}, s{sT0}, v{vL16}')
    A(f'v_lshl_add_u32 v{vP2}, v13, 3, s{sT0}')
    A(f's_mul_i32 s{sML}, s{sX}, {2*MI_C}')
    A(f's_add_u32 s{sML}, s{sML}, {MI_OFF}')
    A(f's_xor_b32 s{sT1}, s{sX}, 1')
    A(f's_mul_i32 s{sMR}, s{sT1}, {2*MI_C}')
    A(f's_add_u32 s{sMR}, s{sMR}, {MI_OFF + MI_C}')
    A(f's_mul_i32 s{sT0}, s{sW}, 20480')
    A(f's_add_u32 s{sT0}, s{sT0}, {WRES}')
    A(f'v_add_u32 v{vWR}, s{sT0}, v{vL16}')
    if cfg.get('stamps'):
        A(f's_lshl_b32 s{sSTP}, s2, 2')
        A(f's_add_u32 s{sSTP}, s{sSTP}, s{sW}')
        A(f's_lshl_b32 s{sSTP}, s{sSTP}, 14')
        A(f's_add_u32 s{sSTP}, s{sSTP}, {STAMP_OFF}')

def load_weights(A, cfg, vo):
    for j in range(3):
        A(f'v_add_u32 v20, {64*j}, v13')
        A('v_mul_u32_u24 v21, 0xaaab, v20')
        A('v_lshrrev_b32 v21, 20, v21')
        A('v_mul_u32_u24 v22, 24, v21')
        A('v_sub_u32 v22, v20, v22')
        A('v_mul_u32_u24 v21, 12288, v21')
        A(f'v_lshl_add_u32 v{16+j}, v22, 4, v21')
    A(f's_mul_i32 s{sA}, s{sW}, {16*12288}')
    A(f's_mul_i32 s{sT0}, s{sH}, 384')
    A(f's_add_u32 s{sA}, s{sA}, s{sT0}')
    A('v_lshrrev_b32 v21, 3, v13')
    A('v_mul_u32_u24 v21, 1280, v21')
    A('v_and_b32 v22, 7, v13')
    A('v_lshl_add_u32 v19, v22, 4, v21')
    A(f's_mul_i32 s{sB}, s{sW}, {48*1280}')
    A(f's_mul_i32 s{sT0}, s{sH}, {192*1280}')
    A(f's_add_u32 s{sB}, s{sB}, s{sT0}')
    A(f's_mul_i32 s{sC}, s{sW}, 6144')
    A('v_lshrrev_b32 v21, 2, v14')
    A('v_lshl_add_u32 v21, v15, 3, v21')
    A('v_and_b32 v22, 3, v14')
    A('v_lshlrev_b32 v22, 3, v22')
    A(f's_lshl_b32 s{sT0}, s{sW}, 5')
    A(f'v_add_u32 v22, s{sT0}, v22')
    A('v_mul_u32_u24 v23, 384, v21')
    A('v_add_u32 v23, v23, v22')
    A('v_lshl_add_u32 v24, v21, 7, v22')
    def issue(c):
        slot = (c % 6) * 24576
        typeB = vo and c >= 10
        for j in range(6):
            A(f's_add_u32 m0, s{sC}, {slot + j*1024}')
            if typeB:
                A(f's_add_u32 s{sT0}, s{sB}, {(c-10)*128 + j*8*1280}')
                A(f'buffer_load_dwordx4 v19, s[{SRD_W2}:{SRD_W2+3}], s{sT0} offen lds')
            else:
                sr = SRD_W1 if c < 10 else SRD_W2
                A(f's_add_u32 s{sT0}, s{sA}, {((c%10)*64 + (j//3)*8)*12288}')
                A(f'buffer_load_dwordx4 v{16+j%3}, s[{sr}:{sr+3}], s{sT0} offen lds')
    for c in range(5): issue(c)
    for c in range(20):
        outstanding = min(20, c + 5) - c - 1
        A(f's_waitcnt vmcnt({6*outstanding}) lgkmcnt(0)')
        A('s_barrier')
        if c + 5 < 20: issue(c + 5)
        slot = (c % 6) * 24576
        typeB = vo and c >= 10
        A(f'v_add_u32 v25, {slot}, v{24 if typeB else 23}')
        for t in range(3):
            f, base = ('v', 32 + 8 * lds_frags(vo).index((c, t))) if (c, t) in lds_frags(vo) else wreg(c, t, vo)
            for rd in range(4):
                krow = 32 * (rd >> 1) + 4 * (rd & 1)
                off = (64 * t + krow) * 128 if typeB else krow * 384 + t * 128
                A(f'ds_read_b64_tr_b16 {R(f, base+2*rd, 2)}, v25 offset:{off}')
    A('s_waitcnt lgkmcnt(0)')
    A('s_barrier')
    for j in range(len(lds_frags(vo))):
        A(f'ds_write_b128 v{vWR}, {v(32+8*j,4)} offset:{j*2048}')
        A(f'ds_write_b128 v{vWR}, {v(36+8*j,4)} offset:{j*2048+1024}')
    A('s_waitcnt lgkmcnt(0)')

def init_images(A):
    A('v_lshrrev_b32 v17, 6, v12')
    A('v_lshl_add_u32 v21, v17, 4, v14')
    A('v_lshlrev_b32 v21, 1, v21')
    A('v_mul_u32_u24 v22, 2560, v15')
    A('v_add_u32 v21, v21, v22')
    for j in range(10):
        A(f'buffer_load_ushort v{32+2*j}, v21, s[{SRD_AUX}:{SRD_AUX+3}], 0 offen offset:{j*128}')
        A(f'buffer_load_ushort v{33+2*j}, v21, s[{SRD_AUX}:{SRD_AUX+3}], 0 offen offset:{j*128+1280}')
    A(f'v_mov_b32 v22, v{vAIW}')
    A('v_mov_b32 v23, 0')
    A('s_waitcnt vmcnt(0)')
    for j in range(10):
        A(f'v_lshl_or_b32 v{32+2*j}, v{33+2*j}, 16, v{32+2*j}')
        A(f'ds_write_b32 v22, v{32+2*j} offset:{RIMG + j*1024}')

def census(A, cfg, fast_label, slow_label):
    A('s_waitcnt vmcnt(0) lgkmcnt(0)')
    A('s_barrier')
    skip = A.newlabel('cens')
    A(f's_cmp_lg_u32 s{sW}, 0')
    A(f's_cbranch_scc1 {skip}')
    A(f's_lshl_b32 s{sT0}, s{sXCC}, 3')
    A(f's_lshl_b64 s[{sM2}:{sM2+1}], 1, s{sT0}')
    A(f'v_mov_b32 v16, s{sM2}')
    A(f'v_mov_b32 v17, s{sM2+1}')
    A(f's_lshl_b32 s{sT0}, s{sX}, 3')
    A(f'v_mov_b32 v18, s{sT0}')
    A('s_mov_b64 exec, 1')
    A(f'buffer_atomic_add_x2 v[16:17], v18, s[{SRD_DBG}:{SRD_DBG+3}], 0 offen offset:{DBG_CENSUS} sc1')
    A('s_mov_b64 exec, -1')
    A.label(skip)
    L = A.newlabel('cw'); D = A.newlabel('cwd')
    A('v_mov_b32 v20, 0')
    A.label(L)
    A(f'buffer_load_dwordx4 v[16:19], v20, s[{SRD_DBG}:{SRD_DBG+3}], 0 offen offset:{DBG_CENSUS} sc1')
    A('s_waitcnt vmcnt(0)')
    A('v_sad_u8 v21, v16, 0, 0')
    A('v_sad_u8 v21, v17, 0, v21')
    A('v_sad_u8 v21, v18, 0, v21')
    A('v_sad_u8 v21, v19, 0, v21')
    A(f'v_readfirstlane_b32 s{sT0}, v21')
    A(f's_cmp_eq_u32 s{sT0}, 64')
    A(f's_cbranch_scc1 {D}')
    A('s_sleep 4')
    A(f's_sub_u32 s{sBUD}, s{sBUD}, 1')
    A(f's_cbranch_scc0 {L}')
    A(f's_mov_b32 s{sBUD}, 0')
    A.label(D)
    A(f'v_readfirstlane_b32 s{sA}, v16')
    A(f'v_readfirstlane_b32 s{sB}, v17')
    A(f'v_readfirstlane_b32 s{sC}, v18')
    A(f'v_readfirstlane_b32 s{sD}, v19')
    A(f's_cmp_eq_u32 s{sX}, 0')
    A(f's_cselect_b32 s{sM2}, s{sA}, s{sC}')
    A(f's_cselect_b32 s{sM2+1}, s{sB}, s{sD}')
    A(f's_lshl_b32 s{sT0}, s{sXCC}, 3')
    A(f's_lshr_b64 s[{sM2}:{sM2+1}], s[{sM2}:{sM2+1}], s{sT0}')
    A(f's_and_b32 s{sT0}, s{sM2}, 0xff')
    A(f's_cmp_eq_u32 s{sT0}, {32 if not cfg.get("forceslow") else 77}')

def ring(A, dst, base, ahead, stride):
    if ahead:
        A(f's_add_u32 s{sT0}, s{sS}, {ahead}')
        A(f's_and_b32 s{sT0}, s{sT0}, {NR-1}')
    else:
        A(f's_and_b32 s{sT0}, s{sS}, {NR-1}')
    A(f's_mul_i32 s{sT0}, s{sT0}, {stride}')
    A(f's_add_u32 s{dst}, s{base}, s{sT0}')

def zero(A, base, n):
    i = base
    while i < base + n:
        if i % 2 == 0 and i + 1 < base + n:
            A(f'v_mov_b64 {v(i,2)}, 0'); i += 2
        else:
            A(f'v_mov_b32 v{i}, 0'); i += 1

def atr(e, dst, off, tag):
    return [F(e, f'ds_read_b64_tr_b16 {v(dst+2*u,2)}, v{(vTRA, vTRB)[u]} offset:{off}', tag) for u in range(2)]

def wfrag_fill(j, slot, e):
    return [F(e, f'ds_read_b128 {v(slot,4)}, v{vWR} offset:{j*2048}', ('W', j)),
            F(e, f'ds_read_b128 {v(slot+4,4)}, v{vWR} offset:{j*2048+1024}', ('W', j))]

KACC, QAW, QWW, PRE, QACC, PXR = 12, 24, 40, 64, 100, 64
DUMP = LDS_REC
NT = os.environ.get('NT', ' nt')
VWD = int(os.environ.get('VWD', '1'))
LINK = [1, 3, 5, 7, 8, 9]

def kx_dst(j):
    step, kt = j >> 1, j & 1
    return PRE + 16 * (step >> 1) + 8 * kt + 4 * (step & 1)

def qk_bop(ph, k, t, slot):
    if ph == 1 and t == 2: return v(QWW + 8 * slot, 8)
    f, b = wreg(10 * ph + k, t)
    return R(f, b, 8)

def qk_remote(A, lg, cfg):
    order = [(0, 0), (0, 1)]
    for j in range(8): order += [(0, j + 2), (1, j)]
    order += [(1, 8), (1, 9)]
    items, kend = [], {}
    for ph, k in order:
        for t in range(3):
            need = [('A', k)] if (ph, t) == (0, 0) else []
            if (ph, t) == (1, 2): need.append(('W', k))
            items.append((smf((QACC if ph == 0 else KACC) + 4 * t, QAW + 4 * (k % 4), qk_bop(ph, k, t, k % 3)), need))
        if ph == 1: kend[k] = len(items) - 1
    fl = []
    for k in range(10):
        fl += atr(-1 if k < 3 else (0 if k == 3 else kend[k - 4]), QAW + 4 * (k % 4), RIMG + k * 1024, ('A', k))
        fl += wfrag_fill(k, QWW + 8 * (k % 3), kend[k - 3] + 1 if k >= 3 else 2 + 2 * k)
    fl.append(F(-1, f'buffer_store_dwordx4 {v(PXR,4)}, v{vL16}, {WS}, s{sB} offen sc1'))
    fl.append(F(-1, f'buffer_store_dwordx2 {v(PXR+4,2)}, v{v11}, {WS}, s{sC} offen sc1'))
    fl.append(F(-1, f's_mov_b32 m0, {DUMP}'))
    fl.append(F(-1, f'v_lshlrev_b32 v{QWW+23}, 3, v{vL16}'))
    fl.append(F(0, f'buffer_load_dword v{QWW+23}, {WS}, s{sH1} offen sc1 lds'))
    fl.append(F(2, f'buffer_load_dword v{QWW+23}, {WS}, s{sH2} offen sc1 lds'))
    for t in range(3):
        b = QACC + 4 * t
        fl.append(F(52 + t, f'v_add_f32 v{b}, v{b}, v{b+2}'))
        fl.append(F(52 + t, f'v_add_f32 v{b+1}, v{b+1}, v{b+3}', id=('a', t)))
    for t in range(3):
        b = QACC + 4 * t
        fl.append(F(55, f'v_cvt_pk_bf16_f32 v{b}, v{b}, v{b+1}', id=('c', t), after=[('a', t)]))
        fl.append(F(55, f'ds_write_b32 v{vAIW}, v{b} offset:{QIMG + t*1024}', id=('w', t), after=[('c', t)]))
    run_stream(A, lg, items, fl, cap=dict(lds=1, valu=2, vmem=1, salu=2))

def qk_role(A, cfg):
    A.comment('==== QK role ====')
    srd(A, SRD_W1, 60, W_BYTES); srd(A, SRD_W2, 62, W_BYTES)
    A(f'v_add_u32 v{vBUFR}, {BUF}, v{vL16}')
    A(f's_lshl_b32 s{sT0}, s{sW}, 8')
    A(f'v_lshlrev_b32 v{v9}, 4, v14')
    A(f'v_lshl_add_u32 v{v9}, v15, 2, v{v9}')
    A(f'v_add_u32 v{v9}, s{sT0}, v{v9}')
    A('v_lshrrev_b32 v16, 2, v14')
    A('v_lshl_add_u32 v16, v15, 3, v16')
    A('v_and_b32 v17, 1, v14')
    A('v_lshlrev_b32 v17, 3, v17')
    A(f'v_lshl_add_u32 v{v10}, v16, 4, v17')
    A('v_cmp_gt_u32 vcc, 8, v14')
    A('v_mov_b32 v16, 0x40000000')
    A(f'v_cndmask_b32 v{v11}, v16, v{vAIW}, vcc')
    sk0 = A.newlabel('v11')
    A(f's_cmp_eq_u32 s{sW}, 0')
    A(f's_cbranch_scc1 {sk0}')
    A('v_lshlrev_b32 v17, 4, v14')
    A('v_lshl_add_u32 v17, v15, 3, v17')
    A('v_cmp_gt_u32 vcc, 2, v15')
    A(f'v_cndmask_b32 v{v11}, v16, v17, vcc')
    A.label(sk0)
    def p_offsets():
        A(f's_mul_i32 s{sD}, s{sX}, 10240')
        A(f's_add_u32 s{sD}, s{sD}, {PI_OFF}')
        A(f's_lshr_b32 s{sT0}, s{sHL}, 1')
        A(f's_lshl_b32 s{sT0}, s{sT0}, 8')
        A(f's_add_u32 s{sE}, s{sD}, s{sT0}')
        A(f's_add_u32 s{sE}, s{sE}, 8192')
        A(f's_lshr_b32 s{sT0}, s{sHL}, 1')
        A(f's_xor_b32 s{sT0}, s{sT0}, s{sHL}')
        A(f's_and_b32 s{sT0}, s{sT0}, 1')
        A(f's_lshl_b32 s{sT0}, s{sT0}, 5')
        A(f's_add_u32 s{sE}, s{sE}, s{sT0}')
        A(f's_lshl_b32 s{sT0}, s{sHL}, 9')
        A(f's_add_u32 s{sD}, s{sD}, s{sT0}')
    p_offsets()
    sk = A.newlabel('qkclr')
    A(f's_cmp_lg_u32 s{sW}, 0')
    A(f's_cbranch_scc1 {sk}')
    vSENT = 16
    A('v_mov_b32 v16, -1')
    for st in range(2):
        A(f's_add_u32 s{sT0}, s{sD}, {st*PI_S}')
        A(f's_add_u32 s{sT1}, s{sE}, {st*PI_S}')
        A(f'buffer_store_dword v{vSENT}, v{vAIW}, {WS}, s{sT0} offen sc1')
        A(f'buffer_store_dword v{vSENT}, v{vAIW}, {WS}, s{sT0} offen offset:256 sc1')
        A(f'buffer_store_dword v{vSENT}, v{v11}, {WS}, s{sT1} offen sc1')
    A('s_waitcnt vmcnt(0)')
    A.label(sk)
    load_weights(A, cfg, vo=False)
    rt_stamp(A, cfg, 0, 24)
    init_images(A)
    census(A, cfg, None, None)
    A(f's_cselect_b32 s{sG}, 1, 0')
    p_offsets()
    for d_, s_ in ((bD, sD), (bE, sE), (bML, sML), (bMR, sMR)): A(f's_mov_b32 s{d_}, s{s_}')
    qk_rings(A)
    A(f's_mul_i32 s{sA}, s{sH}, {KQ_SH}')
    A(f's_add_u32 s{sA}, s{sA}, {KQ_OFF}')
    A(f's_lshl_b32 s{sB}, s{sH}, 11')
    A(f's_sub_u32 s{sT0}, s{sW}, 1')
    A(f's_lshl_b32 s{sT1}, s{sT0}, 10')
    A(f's_add_u32 s{sB}, s{sB}, s{sT1}')
    A(f's_add_u32 s{sB}, s{sB}, {PX_OFF}')
    A(f's_lshr_b32 s{sC}, s{sH}, 2')
    A(f's_lshl_b32 s{sC}, s{sC}, 11')
    A(f's_add_u32 s{sC}, s{sC}, s{sT1}')
    A(f's_and_b32 s{sT0}, s{sH}, 3')
    A(f's_lshl_b32 s{sT0}, s{sT0}, 8')
    A(f's_add_u32 s{sC}, s{sC}, s{sT0}')
    A(f's_add_u32 s{sC}, s{sC}, {PXM_OFF}')
    A(f's_lshl_b32 s{sF}, 1, s{sH}')
    A(f's_lshl_b32 s{sT0}, s{sX}, 4')
    A(f's_lshl_b32 s{sH3}, 0xffff, s{sT0}')
    A(f's_mul_i32 s{sH1}, s{sX}, {VW_X}')
    A(f's_mul_i32 s{sT0}, s{sHL}, 40960')
    A(f's_add_u32 s{sH1}, s{sH1}, s{sT0}')
    A(f's_lshl_b32 s{sT0}, s{sW}, 13')
    A(f's_add_u32 s{sH1}, s{sH1}, s{sT0}')
    A(f's_add_u32 s{sH1}, s{sH1}, {VW_OFF + VWD*VW_S}')
    A(f's_add_u32 s{sH2}, s{sH1}, {4*8192}')
    A(f's_cmp_eq_u32 s{sW}, 0')
    A(f's_cselect_b32 s{sH2}, s{sH2}, 0x40000000')
    A(f's_sub_u32 s{sT0}, s{sW}, 1')
    A(f's_cmp_lt_u32 s{sT0}, 2')
    A(f's_cselect_b32 s{bB}, s{sB}, 0x40000000')
    A(f's_cselect_b32 s{sUNIT}, s{sC}, 0x40000000')
    A(f's_mov_b32 s{sB}, 0x40000000')
    A(f's_mov_b32 s{sC}, 0x40000000')
    sk = A.newlabel('qkpre')
    A(f's_cmp_lg_u32 s{sW}, 0')
    A(f's_cbranch_scc1 {sk}')
    wait_mask(A, cfg, sS, 0, sF, 16)
    A(f's_mov_b32 s{sT2}, {BUF}')
    kq_dma(A)
    wait_mask(A, cfg, sS, 1, sH3, 16)
    A(f'v_lshlrev_b32 v16, 3, v{vL16}')
    for st in range(VWD):
        for j in range(5):
            A(f's_sub_u32 s{sT0}, s{sH1}, {((VWD-st)*VW_S - j*8192) & 0xffffffff}')
            A(f'buffer_load_dword v17, v16, {WS}, s{sT0} offen sc1')
    A('s_waitcnt vmcnt(0)')
    A.label(sk)
    zero(A, KACC, 12); zero(A, QACC, 12)
    A('s_barrier')
    kx_early(A)
    A('s_waitcnt lgkmcnt(0)')
    rt_stamp(A, cfg, 0, 24)
    slow = A.newlabel('qkslow')
    A(f's_cmp_eq_u32 s{sG}, 0')
    A(f's_cbranch_scc1 {slow}')
    qk_loop(A, cfg, '')
    A.label(slow)
    qk_loop(A, cfg, ' sc1')

def done_count(A):
    sk = A.newlabel('dn')
    A(f's_cmp_lg_u32 s{sW}, 0')
    A(f's_cbranch_scc1 {sk}')
    A('v_mov_b32 v24, 1')
    A('s_mov_b64 exec, 1')
    A(f'buffer_atomic_add v24, off, s[{SRD_DBG}:{SRD_DBG+3}], 0 offset:{DBG_PROG+4} sc1')
    A('s_mov_b64 exec, -1')
    A.label(sk)

def kx_early(A):
    sk = A.newlabel('kxe')
    A(f's_cmp_lg_u32 s{sW}, 0')
    A(f's_cbranch_scc1 {sk}')
    for j in range(12):
        if kx_dst(j) < QACC: A(f'ds_read_b128 {v(kx_dst(j),4)}, v{vBUFR} offset:{j*1024}')
    A.label(sk)

def qk_rings(A):
    ring(A, sD, bD, 0, PI_S); ring(A, sE, bE, 0, PI_S)
    ring(A, sD2, bD, 2, PI_S); ring(A, sE2, bE, 2, PI_S)
    ring(A, sML, bML, 0, MI_S); ring(A, sMR, bMR, 0, MI_S)

def kq_dma(A):
    for j in range(6):
        A(f's_add_u32 m0, s{sT2}, {j*4096}')
        A(f's_add_u32 s{sT0}, s{sA}, {j*4096}')
        for i in range(4):
            A(f'buffer_load_dwordx4 v{vL16}, {WS}, s{sT0} offen offset:{i*1024} sc1 lds')
    A(f's_add_u32 s{sA}, s{sA}, {KQ_S}')

def rowred(A, op, regs):
    for sh in (8, 4, 2, 1):
        for r in regs:
            A(f'{op}_dpp v{r}, v{r}, v{r} row_ror:{sh} row_mask:0xf bank_mask:0xf')

def qk_loop(A, cfg, ST):
    lg = Lg(A)
    TOP = A.newlabel('qkloop'); END = A.newlabel('qkend')
    A.label(TOP)
    A('s_barrier', 'B1')
    stamp(A, cfg, 2)
    qk_remote(A, lg, cfg)
    stamp(A, cfg, 3)
    for t in range(3):
        b = KACC + 4 * t
        A(f'v_add_f32 v{b}, v{b}, v{b+2}')
        A(f'v_add_f32 v{b+1}, v{b+1}, v{b+3}')
    for t in range(3):
        b = KACC + 4 * t
        A(f'v_cvt_pk_bf16_f32 v{QAW+t}, v{b}, v{b+1}')
    for t in range(3):
        lg.op(f'ds_write_b32 v{v9}, v{QAW+t} offset:{KIMG + t*1024}')
    zero(A, KACC, 12)
    lg.drain()
    A('s_barrier', 'B3')
    stamp(A, cfg, 4)
    WX = A.newlabel('qkwx'); W3 = A.newlabel('qkw3'); JOIN = A.newlabel('qkjoin')
    A(f's_cmp_lg_u32 s{sW}, 0')
    A(f's_cbranch_scc1 {WX}')
    for k3 in range(3):
        for u in range(2):
            lg.op(f'ds_read_b64_tr_b16 {v(QAW+4*k3+2*u,2)}, v{(vTRA, vTRB)[u]} offset:{QIMG + k3*1024}', ('q', k3))
    for j in range(12):
        if kx_dst(j) >= QACC: lg.op(f'ds_read_b128 {v(kx_dst(j),4)}, v{vBUFR} offset:{j*1024}', ('q', 2))
    def kmrd(k3):
        for rd in range(4):
            lg.op(f'ds_read_b64_tr_b16 {v(QWW+8*k3+2*rd,2)}, v{v10} offset:{KIMG + k3*1024 + (rd>>1)*512 + (rd&1)*64}', ('k', k3))
    kmrd(0)
    cs = QAW + 12
    A(f'v_mov_b32 v{cs}, s{sCSC}')
    A(f'v_xor_b32 v{QAW+15}, 32, v{vAIW}')
    for k3 in range(3):
        lg.wait(('q', k3))
        for kt in range(2):
            A(smf(KACC + 4 * kt, QAW + 4 * k3, v(PRE + 16 * k3 + 8 * kt, 8)))
        if k3 < 2: kmrd(k3 + 1)
    a0, a1, am = KACC, KACC + 4, KACC + 8
    for k3 in range(3):
        lg.wait(('k', k3))
        A(smf(am, QAW + 4 * k3, v(QWW + 8 * k3, 8)))
    stamp(A, cfg, 5)
    m0_, m1_ = QAW + 13, QAW + 14
    for b in (a0, a1):
        A(f'v_add_f32 v{b}, v{b}, v{b+2}')
        A(f'v_add_f32 v{b+1}, v{b+1}, v{b+3}')
    A(f'v_add_f32 v{am}, v{am}, v{am+2}')
    A(f'v_add_f32 v{am+1}, v{am+1}, v{am+3}')
    A(f'v_max3_f32 v{m0_}, v{a0}, v{a1}, v{am}')
    A(f'v_max3_f32 v{m1_}, v{a0+1}, v{a1+1}, v{am+1}')
    rowred(A, 'v_max_f32', (m0_, m1_))
    A(f'v_mul_f32 v{m0_}, v{cs}, v{m0_}')
    A(f'v_mul_f32 v{m1_}, v{cs}, v{m1_}')
    for b in (a0, a1, am):
        A(f'v_fma_f32 v{b}, v{b}, v{cs}, -v{m0_}')
        A(f'v_fma_f32 v{b+1}, v{b+1}, v{cs}, -v{m1_}')
    for b in (am, a0, a1):
        A(f'v_exp_f32 v{b}, v{b}')
        A(f'v_exp_f32 v{b+1}, v{b+1}')
    A(f'v_add_f32 v{m0_}, v{a0}, v{a1}')
    A(f'v_add_f32 v{m1_}, v{a0+1}, v{a1+1}')
    A(f'v_add_f32_dpp v{m0_}, v{am}, v{m0_} quad_perm:[0,1,2,3] row_mask:0xf bank_mask:0x3')
    A(f'v_add_f32_dpp v{m1_}, v{am+1}, v{m1_} quad_perm:[0,1,2,3] row_mask:0xf bank_mask:0x3')
    rowred(A, 'v_add_f32', (m0_, m1_))
    A(f'v_rcp_f32 v{m0_}, v{m0_}')
    A(f'v_rcp_f32 v{m1_}, v{m1_}')
    for b in (a0, a1, am):
        A(f'v_mul_f32 v{b}, v{b}, v{m0_}')
        A(f'v_mul_f32 v{b+1}, v{b+1}, v{m1_}')
    for b in (a0, a1, am):
        A(f'v_cvt_pk_bf16_f32 v{b}, v{b}, v{b+1}')
    for b, off, vo_, so in ((a0, 0, vAIW, sD), (a1, 256, QAW + 15, sD), (am, 0, v11, sE)):
        A(f'buffer_store_dword v{b}, v{vo_}, {WS}, s{so} offen offset:{off}{ST}')
    stamp(A, cfg, 8)
    vSENT = cs
    A(f'v_mov_b32 v{vSENT}, -1')
    A(f'buffer_store_dword v{vSENT}, v{vAIW}, {WS}, s{sD2} offen{ST}')
    A(f'buffer_store_dword v{vSENT}, v{vAIW}, {WS}, s{sD2} offen offset:256{ST}')
    A(f'buffer_store_dword v{vSENT}, v{v11}, {WS}, s{sE2} offen{ST}')
    npg = A.newlabel('npg')
    A(f's_cmp_lg_u32 s{sH}, 0')
    A(f's_cbranch_scc1 {npg}')
    A(f's_max_u32 s{sT0}, s{sS}, 2')
    A(f's_sub_u32 s{sT0}, s{sT0}, 2')
    A(f'v_mov_b32 v{QWW}, s{sT0}')
    A('s_mov_b64 exec, 1')
    A(f'buffer_store_dword v{QWW}, off, s[{SRD_DBG}:{SRD_DBG+3}], 0 offset:{DBG_PROG} sc1')
    A('s_mov_b64 exec, -1')
    A.label(npg)
    A(f's_cmp_eq_u32 s{sS}, 63')
    A(f's_cbranch_scc1 {JOIN}')
    A(f's_add_u32 s{sT3}, s{sS}, 1')
    A(f's_and_b32 s{sT2}, s{sT3}, 1')
    A(f's_mul_i32 s{sT2}, s{sT2}, 24576')
    A(f's_add_u32 s{sT2}, s{sT2}, {BUF}')
    kq_dma(A)
    A(f's_branch {JOIN}')
    A.label(WX)
    A(f's_cmp_eq_u32 s{sW}, 3')
    A(f's_cbranch_scc1 {W3}')
    x_softmax(A, cfg)
    A(f's_branch {JOIN}')
    A.label(W3)
    A(f's_add_u32 s{sT3}, s{sS}, 2')
    A(f's_and_b32 s{sT0}, s{sT3}, 0x43')
    A(f's_cmp_lg_u32 s{sT0}, 0')
    A(f's_cbranch_scc1 {JOIN}')
    A(f's_lshr_b32 s{sT2}, s{sT3}, 2')
    wait_mask(A, cfg, sT2, 0, sF, 12)
    wait_mask(A, cfg, sT2, 1, sH3, 12)
    A.label(JOIN)
    stamp(A, cfg, 6)
    stamp_flush(A, cfg, 9, QWW)
    lg.q = []
    A(f's_mov_b32 s{sB}, s{bB}')
    A(f's_mov_b32 s{sC}, s{sUNIT}')
    A(f's_cmp_eq_u32 s{sS}, 63')
    A(f's_cbranch_scc1 {END}')
    A(f's_add_u32 s{sS}, s{sS}, 1')
    qk_rings(A)
    def f1():
        zero(A, KACC + 2, 10); zero(A, QACC, 12)
        A(f'v_xor_b32 v{vBUFR}, {BUF ^ (BUF+24576)}, v{vBUFR}')
        A(f's_add_u32 s{bB}, s{bB}, {PX_S}')
        A(f's_add_u32 s{sUNIT}, s{sUNIT}, {PXM_S}')
        A(f's_add_u32 s{sH1}, s{sH1}, {VW_S}')
        A(f's_add_u32 s{sH2}, s{sH2}, {VW_S}')
    if cfg.get('trig', 1):
        f1()
        NP = A.newlabel('np'); L = A.newlabel('pr')
        A('s_waitcnt vmcnt(0)')
        A(f's_cmp_lg_u32 s{sW}, 3')
        A(f's_cbranch_scc1 {NP}')
        A(f's_lshl_b32 s{sT1}, s{sX}, 8')
        A(f's_add_u32 s{sT1}, s{sT1}, {TF_OFF}')
        A(f'v_bfe_u32 v{QAW+1}, v{vL16}, 2, 6')
        A(f'v_and_b32 v{QAW+1}, 60, v{QAW+1}')
        for _ in range(2):
            A(f'buffer_load_dword v{QAW}, v{QAW+1}, {WS}, s{sT1} offen sc1')
            A('s_sleep 1')
        A.label(L)
        A(f'buffer_load_dword v{QAW}, v{QAW+1}, {WS}, s{sT1} offen sc1')
        A('s_waitcnt vmcnt(2)')
        A(f'v_cmp_gt_u32 vcc, s{sS}, v{QAW}')
        A(f's_cbranch_vccz {NP}')
        A(f's_sub_u32 s{sBUD}, s{sBUD}, 1')
        A(f's_cbranch_scc0 {L}')
        A(f's_mov_b32 s{sBUD}, 0')
        A.label(NP)
        A('s_barrier', 'B0')
        stamp(A, cfg, 7)
        if cfg.get('qkdelay', 2): A(f's_sleep {cfg.get("qkdelay", 2)}')
        fetch_m(A, cfg, QAW, QAW + 20, QAW + 30, KACC, lambda: kx_early(A), lambda: None, oneshot=True)
    else:
        fetch_m(A, cfg, QAW, QAW + 20, QAW + 30, KACC, f1, lambda: kx_early(A))
    zero(A, KACC, 2)
    A('s_waitcnt lgkmcnt(0)')
    A(f's_branch {TOP}')
    A.label(END)
    A(f'buffer_store_dwordx4 {v(PXR,4)}, v{vL16}, {WS}, s{sB} offen sc1')
    A(f'buffer_store_dwordx2 {v(PXR+4,2)}, v{v11}, {WS}, s{sC} offen sc1')
    A('s_waitcnt vmcnt(0)')
    A('s_barrier')
    done_count(A)
    rt_stamp(A, cfg, 0, 24)
    A('s_endpgm')

def x_softmax(A, cfg):
    lg = Lg(A)
    KM, QF, KX, SX, TMP = 40, 64, 12, 88, 100
    n_, g_, ad = TMP, TMP + 1, TMP + 2
    if cfg.get('xsleep', 3): A(f's_sleep {cfg.get("xsleep", 3)}')
    A(f'v_bfe_u32 v{n_}, v{vL16}, 4, 4')
    A(f'v_lshrrev_b32 v{g_}, 8, v{vL16}')
    A(f's_lshl_b32 s{sT0}, s{sW}, 10')
    A(f's_add_u32 s{sT0}, s{sT0}, {12288 - 1024}')
    A(f'v_add_u32 v{ad}, s{sT0}, v{vBUFR}')
    for st in range(6):
        lg.op(f'ds_read_b128 {v(QF+4*st,4)}, v{ad} offset:{st*2048}', ('q', st))
    for k3 in range(3):
        for rd in range(4):
            lg.op(f'ds_read_b64_tr_b16 {v(KM+8*k3+2*rd,2)}, v{v10} offset:{KIMG + k3*1024 + (rd>>1)*512 + (rd&1)*64}', ('k', 2*k3 + (rd >> 1)))
    A(f'v_sub_u32 v{ad+1}, v{vBUFR}, v{vL16}')
    A(f'v_lshrrev_b32 v{ad+2}, 3, v{n_}')
    A(f'v_lshl_add_u32 v{ad+1}, v{ad+2}, 10, v{ad+1}')
    A(f'v_bfe_u32 v{ad+2}, v{n_}, 2, 1')
    A(f'v_lshl_add_u32 v{ad+1}, v{ad+2}, 7, v{ad+1}')
    A(f'v_and_b32 v{ad+2}, 3, v{n_}')
    A(f'v_lshl_add_u32 v{ad+1}, v{ad+2}, 4, v{ad+1}')
    A(f'v_lshl_add_u32 v{ad+1}, v{g_}, 8, v{ad+1}')
    for st in range(6):
        lg.wait(('q', st)); lg.wait(('k', st))
        c = '0' if st == 0 else v(SX + 8, 4)
        A(f'v_mfma_f32_16x16x32_bf16 {v(SX+8,4)}, {v(KM+4*st,4)}, {v(QF+4*st,4)}, {c}')
    for kt in range(2):
        for st in range(6):
            lg.op(f'ds_read_b128 {v(KX+4*st,4)}, v{ad+1} offset:{st*2048 + kt*64}', ('x', kt, st))
        for st in range(6):
            lg.wait(('x', kt, st))
            c = '0' if st == 0 else v(SX + 4 * kt, 4)
            A(f'v_mfma_f32_16x16x32_bf16 {v(SX+4*kt,4)}, {v(KX+4*st,4)}, {v(QF+4*st,4)}, {c}')
    d_ = ad
    A(f's_lshl_b32 s{sT0}, s{sW}, 4')
    A(f's_sub_u32 s{sT0}, s{sT0}, 16')
    A(f'v_lshlrev_b32 v{d_}, 3, v{g_}')
    A(f'v_sub_u32 v{d_}, v{n_}, v{d_}')
    A(f'v_add_u32 v{d_}, s{sT0}, v{d_}')
    ninf = ad + 1
    A(f'v_mov_b32 v{ninf}, 0xff800000')
    for j in range(8):
        A(f'v_cmp_le_i32 vcc, {j}, v{d_}')
        A(f'v_cndmask_b32 v{SX+j}, v{ninf}, v{SX+j}, vcc')
    A(f'v_cmp_gt_u32 vcc, 2, v{g_}')
    for j in range(4):
        A(f'v_cndmask_b32 v{SX+8+j}, v{ninf}, v{SX+8+j}, vcc')
    mx, t2 = ad + 2, ad + 3
    A(f'v_max3_f32 v{mx}, v{SX}, v{SX+1}, v{SX+2}')
    for j in range(3, 11, 2):
        A(f'v_max3_f32 v{mx}, v{mx}, v{SX+j}, v{SX+j+1}')
    A(f'v_max_f32 v{mx}, v{mx}, v{SX+11}')
    def xred(op):
        for sw in ('v_permlane16_swap_b32', 'v_permlane32_swap_b32'):
            A(f'v_mov_b32 v{t2}, v{mx}')
            A(f'{sw} v{mx}, v{t2}')
            A(f'{op} v{mx}, v{mx}, v{t2}')
    xred('v_max_f32')
    A(f'v_mul_f32 v{mx}, s{sCSC}, v{mx}')
    for j in range(12):
        A(f'v_fma_f32 v{SX+j}, v{SX+j}, s{sCSC}, -v{mx}')
    for j in range(12):
        A(f'v_exp_f32 v{SX+j}, v{SX+j}')
    A(f'v_add_f32 v{mx}, v{SX}, v{SX+1}')
    for j in range(2, 12):
        A(f'v_add_f32 v{mx}, v{mx}, v{SX+j}')
    xred('v_add_f32')
    A(f'v_rcp_f32 v{mx}, v{mx}')
    for j in range(12):
        A(f'v_mul_f32 v{SX+j}, v{SX+j}, v{mx}')
    for j in range(6):
        A(f'v_cvt_pk_bf16_f32 v{PXR+j}, v{SX+2*j}, v{SX+2*j+1}')

ACC2, VAW, TACC, VWW, VACC, BVW, BT = 12, 16, 32, 72, 96, 96, 72
sPH = 68
vPUB, vSN = vBUFR, v11
sEX = 54
def wslot(j): return VWW + 8 * (j % 3)

def vo_role(A, cfg):
    A.comment('==== VO role ====')
    srd(A, SRD_W1, 64, W_BYTES); srd(A, SRD_W2, 66, W_BYTES)
    A(f's_lshl_b32 s{sT0}, s{sW}, 15')
    A(f's_add_u32 s{sT0}, s{sT0}, {WRES}')
    A(f'v_add_u32 v{vWR}, s{sT0}, v{vL16}')
    A(f's_and_b32 s{sT0}, s{sHL}, 1')
    A(f's_lshl_b32 s{sT0}, s{sT0}, 5')
    A(f'v_lshlrev_b32 v{vPUB}, 2, v13')
    A(f'v_xor_b32 v{vPUB}, s{sT0}, v{vPUB}')
    A(f'v_mov_b32 v{vSN}, -1')
    A(f'v_lshlrev_b32 v{v9}, 4, v14')
    A(f'v_mul_u32_u24 v{v10}, 10240, v15')
    A(f'v_add_u32 v{v10}, v{v10}, v{v9}')
    A('v_cmp_gt_u32 vcc, 2, v15')
    A('v_mov_b32 v16, 0x40000000')
    A(f'v_cndmask_b32 v{v9}, v16, v{vL16}, vcc')
    A(f's_lshl_b32 s{sT0}, s{sW}, 4')
    A(f's_add_u32 s{sT0}, s{sT0}, s{sHL}')
    A(f's_cmp_lt_u32 s{sT0}, 40')
    A(f's_cselect_b32 s{sUNIT}, 1, 0')
    A(f's_cselect_b64 s[{sEX}:{sEX+1}], -1, 0')
    def offsets():
        A(f's_lshl_b32 s{sT0}, s{sW}, 4')
        A(f's_add_u32 s{sT0}, s{sT0}, s{sHL}')
        A(f's_mul_i32 s{sD}, s{sX}, {T_X}')
        A(f's_add_u32 s{sD}, s{sD}, {T_OFF}')
        A(f's_mul_i32 s{sT1}, s{sW}, 2560')
        A(f's_add_u32 s{sC}, s{sD}, s{sT1}')
        A(f's_mul_i32 s{sT1}, s{sHL}, 10240')
        A(f's_add_u32 s{sC}, s{sC}, s{sT1}')
        A(f's_and_b32 s{sT1}, s{sT0}, 3')
        A(f's_mul_i32 s{sT1}, s{sT1}, 2560')
        A(f's_add_u32 s{sD}, s{sD}, s{sT1}')
        A(f's_lshr_b32 s{sT1}, s{sT0}, 2')
        A(f's_lshl_b32 s{sT1}, s{sT1}, 8')
        A(f's_add_u32 s{sD}, s{sD}, s{sT1}')
        A(f's_mul_i32 s{sE}, s{sX}, {2*MI_C}')
        A(f's_add_u32 s{sE}, s{sE}, {MI_OFF}')
        A(f's_lshl_b32 s{sT1}, s{sT0}, 8')
        A(f's_add_u32 s{sE}, s{sE}, s{sT1}')
        A(f's_mul_i32 s{sF}, s{sX}, {VW_X}')
        A(f's_lshl_b32 s{sT1}, s{sT0}, 14')
        A(f's_add_u32 s{sF}, s{sF}, s{sT1}')
        A(f's_add_u32 s{sF}, s{sF}, {VW_OFF}')
        A(f's_sub_u32 s{sTP}, s{sC}, {T_OFF - TP_OFF}')
        A(f's_cmp_eq_u32 s{sUNIT}, 0')
        for r_ in (sD, sE, sF): A(f's_cselect_b32 s{r_}, 0x40000000, s{r_}')
    offsets()
    for i in range(4): A(f'v_mov_b32 v{16+i}, -1')
    for st in range(2):
        for cp in range(2):
            A(f's_add_u32 s{sT0}, s{sE}, {(st+1)*MI_S + cp*MI_C}')
            A(f'buffer_store_dword v16, v{vPUB}, {WS}, s{sT0} offen sc1')
    def flag_off(dst):
        A(f's_lshl_b32 s{dst}, s{sX}, 8')
        A(f's_lshl_b32 s{sT0}, s{sHL}, 2')
        A(f's_add_u32 s{dst}, s{dst}, s{sT0}')
        A(f's_add_u32 s{dst}, s{dst}, {TF_OFF}')
        A(f's_cmp_eq_u32 s{sW}, 3')
        A(f's_cselect_b32 s{dst}, s{dst}, 0x40000000')
    flag_off(sT1)
    A('v_mov_b32 v20, 0')
    A('s_mov_b64 exec, 1')
    A(f'buffer_store_dword v20, off, {WS}, s{sT1} sc1')
    A('s_mov_b64 exec, -1')
    for st in range(1):
        A(f's_add_u32 s{sT0}, s{sC}, {st*T_S}')
        for j in range(3):
            A(f'buffer_store_dwordx4 v[16:19], v{vL16 if j < 2 else v9}, {WS}, s{sT0} offen offset:{j*1024} sc1')
    A('s_waitcnt vmcnt(0)')
    load_weights(A, cfg, vo=True)
    rt_stamp(A, cfg, 0, 24)
    init_images(A)
    census(A, cfg, None, None)
    A(f's_cselect_b32 s{sG}, 1, 0')
    offsets()
    A(f's_mov_b32 s{sA}, s{sF}')
    A(f's_mul_i32 s{sB}, s{sX}, 10240')
    A(f's_add_u32 s{sB}, s{sB}, {PI_OFF}')
    A(f's_lshl_b32 s{sT0}, s{sX}, 4')
    A(f's_lshl_b32 s{sF}, 0xffff, s{sT0}')
    for d_, s_ in ((bD, sD), (bE, sE), (bB, sB), (bC, sC), (bML, sML), (bMR, sMR)): A(f's_mov_b32 s{d_}, s{s_}')
    vo_rings(A); vw_offs(A); flag_off(bC)
    wait_mask(A, cfg, sS, 1, sF, 16)
    vw_early(A)
    A(f's_mov_b32 s{sD2}, 0x40000000')
    zero(A, VACC, 12); zero(A, TACC, 40)
    A('s_waitcnt lgkmcnt(0)')
    rt_stamp(A, cfg, 0, 24)
    slow = A.newlabel('voslow')
    A(f's_cmp_eq_u32 s{sG}, 0')
    A(f's_cbranch_scc1 {slow}')
    vo_loop(A, cfg, '')
    A.label(slow)
    vo_loop(A, cfg, ' sc1')

def vwld_text(j):
    return f'buffer_load_dwordx4 {v(BVW+4*j,4)}, v{vL16}, {WS}, s{(sA, sH1, sH2, sH3)[j//4]} offen offset:{(j%4)*1024} sc1{NT}'
NVE = int(os.environ.get('NVE', '10'))
TH = BVW + 12
def vw_early(A):
    for j in range(16 - NVE, 16): A(vwld_text(j))
def w_early(A):
    for j in range(3):
        for f_ in wfrag_fill(j, wslot(j), 0): A(f_.text)
def vw_offs(A):
    A(f's_add_u32 s{sH1}, s{sA}, 4096')
    A(f's_add_u32 s{sH2}, s{sA}, 8192')
    A(f's_add_u32 s{sH3}, s{sA}, 12288')

def vo_rings(A):
    assert NR == 4
    ring(A, sB, bB, 0, PI_S)
    ring(A, sE, bE, 1, MI_S); ring(A, sE2, bE, 2, MI_S)
    A(f's_and_b32 s{sPH}, s{sS}, 1')

def v_items(img, nxt, pre=False):
    items, fl, use = [], [], {}
    for k in range(10):
        for t in range(3):
            need = [('A', k)] if t == 0 else []
            if (k, t) in lds_frags(True):
                j = lds_frags(True).index((k, t)); bop = v(wslot(j), 8); use[j] = len(items)
                if j >= 3 or not pre: need.append(('W', j))
            else:
                f, b = wreg(k, t, True); bop = R(f, b, 8)
            items.append((smf(VACC + 4 * t, VAW + 4 * (k % 4), bop), need))
        fl += atr(-1 if k < 4 else 3 * (k - 4) + 2, VAW + 4 * (k % 4), img + k * 1024, ('A', k))
    for j in range(3 if pre else 0, 6):
        fl += wfrag_fill(j, wslot(j), use[j - 3] + 0.5 if j >= 3 else (0, 3.5, 6.5)[j])
    for n_, j in enumerate(nxt):
        fl += wfrag_fill(j, wslot(n_), use[3 + n_] + 0.5)
    return items, fl

def vo_loop(A, cfg, ST):
    lg = Lg(A)
    TOP = A.newlabel('voloop'); END = A.newlabel('voend')
    A.label(TOP)
    A('s_barrier', 'B1')
    stamp(A, cfg, 2)
    items, fl = v_items(RIMG, [6, 7])
    for j in range(3):
        fl.append(F(4 + 8 * j, f'buffer_store_dwordx4 {v(TH+4*j,4)}, v{vL16 if j < 2 else v9}, {WS}, s{sD2} offen offset:{j*1024} sc1'))
    fl += [F(8 + 8 * n_, vwld_text(j)) for n_, j in enumerate(range(6, 16 - NVE))]
    fl += [F(0, f's_add_u32 s{sT1}, s{sE2}, {MI_C}', id='t1'),
           F(1, f'buffer_store_dword v{vSN}, v{vPUB}, {WS}, s{sT1} offen sc1', after=['t1']),
           F(2, f'buffer_store_dword v{vSN}, v{vPUB}, {WS}, s{sE2} offen{ST}')]
    fl += [F(5, f's_add_u32 s{sT0}, s{sS}, 1'), F(6, f's_and_b32 s{sT0}, s{sT0}, {NR-1}'), F(7, f's_mul_i32 s{sT0}, s{sT0}, {MI_S}'),
           F(8, f's_add_u32 s{sML}, s{bML}, s{sT0}'), F(9, f's_add_u32 s{sMR}, s{bMR}, s{sT0}')]
    run_stream(A, lg, items, fl, cap=dict(lds=1, valu=1, vmem=1, salu=1))
    for t in range(3):
        b = VACC + 4 * t
        A(f'v_add_f32 v{b}, v{b}, v{b+2}')
        A(f'v_add_f32 v{b+1}, v{b+1}, v{b+3}')
    for t in range(3):
        b = VACC + 4 * t
        A(f'v_cvt_pk_bf16_f32 v{b}, v{b}, v{b+1}')
    for t in range(3):
        lg.op(f'ds_write_b32 v{vAIW}, v{VACC+4*t} offset:{QIMG + t*1024}')
    lg.drain()
    A('s_barrier', 'B2')
    stamp(A, cfg, 3)
    items, fl = [], []
    for k3 in range(3): fl += atr(-1, VAW + 4 * k3, QIMG + k3 * 1024, ('A', k3))
    fl += wfrag_fill(8, wslot(8), -1)
    fl += [F(2 * j, vwld_text(j)) for j in range(6)]
    last = {}
    for c0 in range(0, 10, 2):
        for k3 in range(3):
            for c in (c0, c0 + 1):
                need = [('A', k3)] if c == 0 else []
                if k3 == 2:
                    bop = v(wslot(6 + c), 8)
                    if c >= 2: need.append(('W', 6 + c))
                    last[c] = len(items)
                else:
                    f, b = wreg(10 + c, k3, True); bop = R(f, b, 8)
                items.append((smf(TACC + 4 * c, VAW + 4 * k3, bop), need))
    for c in range(10):
        if c >= 3: fl += wfrag_fill(6 + c, wslot(6 + c), last[c - 3])
        b = TACC + 4 * c
        e = last[c] + 3
        gb = ACC2 if c < 4 else (VAW + 12 if c < 8 else TACC)
        fl.append(F(e, f'v_add_f32 v{b}, v{b}, v{b+2}'))
        fl.append(F(e, f'v_add_f32 v{b+1}, v{b+1}, v{b+3}', id=('a', c)))
        fl.append(F(e + 1.5, f'v_cvt_pk_bf16_f32 v{gb + c%4}, v{b}, v{b+1}', id=('c', c), after=[('a', c)]))
        if c % 4 == 3 or c == 9:
            fl.append(F(e + 2, f'v_permlane32_swap_b32 v{gb}, v{gb+2}', after=[('c', c)]))
            fl.append(F(e + 2, f'v_permlane32_swap_b32 v{gb+1}, v{gb+3}', id=('s1', c)))
            fl.append(F(e + 3, f'v_permlane16_swap_b32 v{gb}, v{gb+1}', after=[('s1', c)]))
            fl.append(F(e + 3, f'v_permlane16_swap_b32 v{gb+2}, v{gb+3}', id=('s2', c)))
            fl.append(F(e + 4, f'v_and_or_b32 v{gb}, v{gb}, -2, s{sPH}', id=('tg', c), after=[('s2', c)]))
            vo_ = vL16 if c < 9 else v9
            fl.append(F(e + 5, f'buffer_store_dwordx4 {v(gb,4)}, v{vo_}, {WS}, s{sC} offen offset:{(c//4)*1024}{ST}', after=[('tg', c)]))
    run_stream(A, lg, items, fl, cap=dict(lds=1, valu=cfg.get('tval', 2), vmem=1, salu=2))
    stamp(A, cfg, 4)
    for i in range(2):
        A(f'v_mov_b64 {v(VWW+16+2*i,2)}, {v(ACC2+2*i,2)}')
        A(f'v_mov_b64 {v(VWW+20+2*i,2)}, {v(TACC+2*i,2)}')
    def tcopy():
        for j, (r_, o_) in enumerate(((VWW + 16, vL16), (VAW + 12, vL16), (VWW + 20, v9))):
            A(f'buffer_store_dwordx4 {v(r_,4)}, v{o_}, {WS}, s{sTP} offen offset:{j*1024} sc1')
    A(f's_cmp_eq_u32 s{sS}, 63')
    A(f's_cbranch_scc1 {END}')
    L1 = A.newlabel('tp'); L2 = A.newlabel('pp'); P0 = A.newlabel('pp0'); D = A.newlabel('ppd')
    def tloads():
        for j in range(4):
            A(f'buffer_load_dwordx4 {v(BT+4*j,4)}, v{v10}, {WS}, s{(sD, sH1, sH2, sH3)[j]} offen sc1')
    def tcheck(tmp):
        A(f'v_bitop3_b32 v{tmp}, v{BT}, v{BT+4}, v{BT+8} bitop3:0x7e')
        A(f'v_bitop3_b32 v{tmp+1}, v{BT}, v{BT+12}, s{sPH} bitop3:0x7e')
        A(f'v_bitop3_b32 v{tmp}, v{tmp}, v{tmp+1}, 1 bitop3:0xa8')
        A(f'v_cmp_ne_u32 vcc, 0, v{tmp}')
    for j, r_ in enumerate((sH1, sH2, sH3)): A(f's_add_u32 s{r_}, s{sD}, {(j+1)*40960}')
    ld10(A, sB, VAW)
    A('s_sleep 2')
    A.label(L2)
    ld10(A, sB, VAW)
    chk10(A, VAW, ACC2, behind=3)
    retry_tail(A, ACC2, L2, D)
    A.label(D)
    stamp(A, cfg, 6)
    put10(A, VAW, PIMG)
    tloads()
    zero(A, ACC2, 4)
    lg.drain()
    A('s_barrier', 'B4')
    stamp(A, cfg, 7)
    NU2 = A.newlabel('vonu')
    A(f's_cmp_eq_u32 s{sUNIT}, 0')
    A(f's_cbranch_scc1 {NU2}_f')
    items = [(smf(ACC2, TACC + 4 * k, v(BVW + 8 * k if k < 8 else BT + 8 * (k - 8), 8)), [('A', k)]) for k in range(10)]
    fa = []
    for k in range(10): fa += atr(-1 if k < 7 else 0, TACC + 4 * k, PIMG + k * 1024, ('A', k))
    run_stream(A, lg, items[:8], fa, cap=dict(lds=2, valu=1, vmem=1, salu=2))
    TL = A.newlabel('tl'); TD = A.newlabel('td')
    A('s_waitcnt vmcnt(0)')
    tcheck(VAW + 10)
    A(f's_cbranch_vccnz {TL}')
    A.label(TD)
    for text, need in items[8:]:
        for tg in need: lg.wait(tg)
        A(text)
    A(f's_add_u32 s{sT0}, s{sE}, {MI_C}')
    A(f'v_add_f32 v{ACC2}, v{ACC2}, v{ACC2+2}')
    A(f'v_add_f32 v{ACC2+1}, v{ACC2+1}, v{ACC2+3}')
    A(f'v_cvt_pk_bf16_f32 v{ACC2}, v{ACC2}, v{ACC2+1}')
    A(f'buffer_store_dword v{ACC2}, v{vPUB}, {WS}, s{sT0} offen sc1')
    A(f'buffer_store_dword v{ACC2}, v{vPUB}, {WS}, s{sE} offen{ST}')
    stamp(A, cfg, 8)
    A.label(NU2)
    A(f's_add_u32 s{sA}, s{sA}, {VW_S}')
    vw_offs(A)
    A('s_barrier', 'B5')
    stamp_flush(A, cfg, 9, ACC2)
    NU3 = A.newlabel('vonu3')
    A(f's_cmp_eq_u32 s{sUNIT}, 0')
    A(f's_cbranch_scc1 {NU3}_s')
    vw_early(A)
    A.label(NU3)
    stamp(A, cfg, 5)
    for j, r_ in enumerate((VWW + 16, VAW + 12, VWW + 20)):
        for i in range(2): A(f'v_mov_b64 {v(TH+4*j+2*i,2)}, {v(r_+2*i,2)}')
    def f1():
        zero(A, VACC, 12); zero(A, TACC, 40)
        A(f's_add_u32 s{sS}, s{sS}, 1')
        A(f's_mov_b32 s{sD2}, s{sTP}')
        A(f's_add_u32 s{sTP}, s{sTP}, {T_S}')
        vo_rings(A)
    fetch_m(A, cfg, VWW, ACC2, ACC2 + 10, VWW + 20, f1, lambda: None, oneshot=True)
    A('s_waitcnt lgkmcnt(0)')
    A(f's_branch {TOP}')
    A.label(f'{NU2}_f')
    A(f's_add_u32 s{sT0}, s{sS}, 1')
    A(f'v_mov_b32 v{ACC2}, s{sT0}')
    A('s_mov_b64 exec, 1')
    A(f'buffer_store_dword v{ACC2}, off, {WS}, s{bC}{ST}')
    A('s_mov_b64 exec, -1')
    A(f's_branch {NU2}')
    A.label(TL)
    tloads()
    A('s_waitcnt vmcnt(0)')
    tcheck(VAW + 10)
    A(f's_cbranch_vccz {TD}')
    A(f's_sub_u32 s{sBUD}, s{sBUD}, 1')
    A(f's_cbranch_scc0 {TL}')
    A(f's_mov_b32 s{sBUD}, 0')
    A(f's_branch {TD}')
    A.label(f'{NU3}_s')
    A(f's_sleep {cfg.get("nusleep", 6)}')
    A(f's_branch {NU3}')
    A.label(END)
    tcopy()
    A('s_waitcnt vmcnt(0)')
    A('s_barrier')
    done_count(A)
    rt_stamp(A, cfg, 0, 24)
    A('s_endpgm')

def rec_entry(A, cfg):
    common_setup(A, cfg)
    rt_stamp(A, cfg, 0, 16, first=True)
    VO = A.newlabel('role_vo')
    A('s_lshr_b32 s34, s2, 7')
    A('s_cmp_lg_u32 s34, 0')
    A(f's_cbranch_scc1 {VO}')
    qk_role(A, cfg)
    A.label(VO)
    vo_role(A, cfg)
```

```python
from asmgen import *
from layout import *
from rec import srd, Lg, rt_stamp, f2u, SRD_WS, SRD_DBG, WS
from work import Pipe, mf, sW, sT0, sT1, sT2, sLI, sBUD, sR

SRD_1, SRD_2, SRD_X, SRD_O = 16, 20, 24, 48
sB, sG, sA1, sA2, sA3, sA4, sN = 35, 36, 37, 38, 39, 40, 41
DBG = f's[{SRD_DBG}:{SRD_DBG+3}]'
M_BYTES = 640 * 640 * 2

def wait_bits(A, soff, sbits, vt):
    L = A.newlabel('wb'); D = A.newlabel('wbd')
    A.label(L)
    A(f'buffer_load_dword v{vt}, off, {DBG}, s{soff} sc1')
    A('s_waitcnt vmcnt(0)')
    A(f'v_readfirstlane_b32 s{sT1}, v{vt}')
    A(f's_and_b32 s{sT1}, s{sT1}, s{sbits}')
    A(f's_cmp_eq_u32 s{sT1}, s{sbits}')
    A(f's_cbranch_scc1 {D}')
    A('s_sleep 8')
    A(f's_sub_u32 s{sBUD}, s{sBUD}, 1')
    A(f's_cbranch_scc0 {L}')
    A(f's_mov_b32 s{sBUD}, 0')
    A.label(D)

def set_bit(A, soff, sbit, vt):
    A('s_waitcnt vmcnt(0)')
    A('s_barrier')
    sk = A.newlabel('sb')
    A(f's_cmp_lg_u32 s{sW}, 0')
    A(f's_cbranch_scc1 {sk}')
    A(f'v_mov_b32 v{vt}, s{sbit}')
    A('s_mov_b64 exec, 1')
    A(f'buffer_atomic_or v{vt}, off, {DBG}, s{soff} sc1')
    A('s_mov_b64 exec, -1')
    A.label(sk)

def row_voffs(A, dst, rowmap):
    for j in range(4):
        A('v_lshrrev_b32 v27, 3, v0')
        A(f'v_add_u32 v27, {8*j}, v27')
        A('v_bfe_u32 v29, v27, 1, 3')
        A('v_and_b32 v28, 7, v0')
        A('v_xor_b32 v28, v28, v29')
        rowmap(j)
        A('v_mul_u32_u24 v27, 1280, v27')
        A(f'v_lshl_add_u32 v{dst+j}, v28, 4, v27')

def rd_addrs(A, dst):
    A('v_lshrrev_b32 v26, 5, v0')
    A('v_and_b32 v27, 31, v0')
    A('v_bfe_u32 v28, v0, 1, 3')
    A('v_xor_b32 v28, v28, v26')
    A('v_lshlrev_b32 v27, 7, v27')
    for ks in range(4):
        A(f'v_xor_b32 v29, {2*ks}, v28')
        A(f'v_lshl_add_u32 v{dst+ks}, v29, 4, v27')

def cmul(A, dr, di, ar, ai, br, bi, t):
    A(f'v_mul_f32 v{t}, v{ai}, v{bi}')
    A(f'v_mul_f32 v{t+1}, v{ar}, v{bi}')
    A(f'v_fma_f32 v{t}, v{ar}, v{br}, -v{t}')
    A(f'v_fma_f32 v{di}, v{ai}, v{br}, v{t+1}')
    A(f'v_mov_b32 v{dr}, v{t}')

def ssm(A, cfg):
    A(f's_load_dwordx16 s[64:79], s[0:1], {KA["B_x"]}')
    A(f's_load_dwordx4 s[80:83], s[0:1], {KA["Dsk"]}')
    A(f's_mul_i32 s{sB}, s{sN}, 0x3334')
    A(f's_lshr_b32 s{sB}, s{sB}, 16')
    A(f's_mul_i32 s{sT0}, s{sB}, 5')
    A(f's_sub_u32 s{sG}, s{sN}, s{sT0}')
    A('s_waitcnt lgkmcnt(0)')
    A('s_barrier')
    srd(A, SRD_X, 64, X_BYTES); srd(A, SRD_1, 70, M_BYTES); srd(A, SRD_2, 72, M_BYTES); srd(A, SRD_O, 82, OUT_BYTES)
    SL = 49152
    vXV, vBV, vRD = 1, 5, 9
    def xmap(j):
        A('v_bfe_u32 v29, v27, 2, 1')
        A('v_and_b32 v27, 3, v27')
        A('v_lshl_add_u32 v27, v29, 6, v27')
        A(f'v_add_u32 v27, {4*j}, v27')
    row_voffs(A, vXV, xmap)
    row_voffs(A, vBV, lambda j: None)
    rd_addrs(A, vRD)
    for sl in (1, 2):
        for ks in range(4): A(f'v_add_u32 v{vRD+4*sl+ks}, {sl*SL}, v{vRD+ks}')
    vPR = 21
    A(f's_lshl_b32 s{sT0}, s{sW}, 13')
    A(f's_add_u32 s{sA4}, s{sT0}, 16384')
    A(f's_lshl_b32 s{sA1}, s{sB}, 7')
    A(f's_lshl_b32 s{sT0}, s{sW}, 4')
    A(f's_add_u32 s{sA1}, s{sA1}, s{sT0}')
    A(f's_mul_i32 s{sA1}, s{sA1}, 1280')
    A(f's_lshl_b32 s{sA3}, s{sW}, 12')
    A(f's_lshl_b32 s{sA2}, s{sG}, 7')
    A(f's_lshl_b32 s{sT0}, s{sW}, 5')
    A(f's_add_u32 s{sA2}, s{sA2}, s{sT0}')
    A('v_and_b32 v26, 31, v0')
    A(f'v_add_u32 v26, s{sA2}, v26')
    A('v_lshlrev_b32 v26, 1, v26')
    PAR = 232
    for i, p_ in enumerate((66, 68, 78)):
        srd(A, 52, p_, 1280)
        A(f'buffer_load_ushort v{PAR+i}, v26, s[52:55], 0 offen')
    A(f's_mul_i32 s{sA2}, s{sA2}, 1280')
    ACC = 32
    stages = []
    for kc in range(10):
        slot = kc % 3
        def dma(nxt, kc=kc, slot=slot):
            g = []
            for j in range(4):
                g.append([f's_add_u32 m0, s{sA3}, {slot*SL + j*1024}', f's_add_u32 s{sT0}, s{sA1}, {kc*128}',
                          f'buffer_load_dwordx4 v{vXV+j}, s[{SRD_X}:{SRD_X+3}], s{sT0} offen lds'])
            for part in range(2):
                sr = (SRD_1, SRD_2)[part]
                for j in range(4):
                    g.append([f's_add_u32 m0, s{sA4}, {slot*SL + part*4096 + j*1024}', f's_add_u32 s{sT0}, s{sA2}, {kc*128}',
                              f'buffer_load_dwordx4 v{vBV+j}, s[{sr}:{sr+3}], s{sT0} offen lds'])
            return g
        steps = []
        for ks in range(4):
            fb = 24 * (ks % 2)
            reads = [(f'ds_read_b128 {a(fb+16+4*part,4)}, v{160+4*slot+ks} offset:{part*4096}', ('b', fb)) for part in range(2)]
            reads += [(f'ds_read_b128 {a(fb+4*tt,4)}, v{vRD+4*slot+ks} offset:{tt*4096}', ('x', fb, tt)) for tt in range(4)]
            mfs = []
            for tt in range(4):
                for part in range(2):
                    d = v(ACC + 64 * part + 16 * tt, 16)
                    mfs.append((mf(d, a(fb + 4 * tt, 4), a(fb + 16 + 4 * part, 4), '0' if (kc, ks) == (0, 0) else d), [('x', fb, tt)]))
            steps.append(dict(reads=reads, mf=mfs))
        stages.append(dict(dma=dma, steps=steps))
    for i in range(12): A(f'v_add_u32 v{160+i}, s{sA4}, v{vRD+i}')
    P = Pipe(A, stages, 3, False)
    P.prologue(); P.body()
    Lr, Li, dt = PAR, PAR + 1, PAR + 2
    lr, li, cr, ci, qr, qi, t0 = 236, 237, 238, 239, 240, 241, 242
    for i in range(3): A(f'v_lshlrev_b32 v{PAR+i}, 16, v{PAR+i}')
    A(f'v_mul_f32 v{dt}, {f2u(1.4426950408889634):#x}, v{dt}')
    A(f'v_exp_f32 v{dt}, v{dt}')
    A(f'v_cvt_pk_bf16_f32 v{dt}, v{dt}, v{dt}')
    A(f'v_lshlrev_b32 v{dt}, 16, v{dt}')
    A(f'v_mul_f32 v{t0}, v{dt}, v{Lr}')
    A(f'v_mul_f32 v{t0}, {f2u(1.4426950408889634):#x}, v{t0}')
    A(f'v_exp_f32 v{t0}, v{t0}')
    A(f'v_mul_f32 v{t0+1}, v{dt}, v{Li}')
    A(f'v_mul_f32 v{t0+1}, 0.15915494309189535, v{t0+1}')
    A(f'v_rndne_f32 v{t0+2}, v{t0+1}')
    A(f'v_sub_f32 v{t0+1}, v{t0+1}, v{t0+2}')
    A(f'v_cos_f32 v{lr}, v{t0+1}')
    A(f'v_sin_f32 v{li}, v{t0+1}')
    A(f'v_mul_f32 v{lr}, v{lr}, v{t0}')
    A(f'v_mul_f32 v{li}, v{li}, v{t0}')
    A(f'v_mul_f32 v{t0}, v{Lr}, v{Lr}')
    A(f'v_fma_f32 v{t0}, v{Li}, v{Li}, v{t0}')
    A(f'v_rcp_f32 v{t0}, v{t0}')
    A(f'v_add_f32 v{t0+1}, -1.0, v{lr}')
    A(f'v_add_f32 v{t0}, v{t0}, v{t0}')
    A(f'v_mul_f32 v{cr}, v{t0+1}, v{Lr}')
    A(f'v_fma_f32 v{cr}, v{li}, v{Li}, v{cr}')
    A(f'v_mul_f32 v{ci}, v{li}, v{Lr}')
    A(f'v_fma_f32 v{ci}, -v{t0+1}, v{Li}, v{ci}')
    A(f'v_mul_f32 v{cr}, v{cr}, v{t0}')
    A(f'v_mul_f32 v{ci}, v{ci}, v{t0}')
    A(f'v_mov_b32 v{qr}, v{lr}'); A(f'v_mov_b32 v{qi}, v{li}')
    for _ in range(6): cmul(A, qr, qi, qr, qi, qr, qi, t0)
    UR, UI = ACC, ACC + 64
    er, ei, x1, x2 = 244, 245, 246, 247
    A(f'v_mov_b32 v{er}, v{UR}'); A(f'v_mov_b32 v{ei}, v{UI}')
    for i in range(1, 64):
        A(f'v_fma_f32 v{x1}, v{lr}, v{er}, v{UR+i}')
        A(f'v_fma_f32 v{x2}, v{lr}, v{ei}, v{UI+i}')
        A(f'v_fma_f32 v{x1}, -v{li}, v{ei}, v{x1}')
        A(f'v_fma_f32 v{ei}, v{li}, v{er}, v{x2}')
        er, x1 = x1, er
    if er != 244:
        A(f'v_mov_b32 v244, v{er}'); er, x1 = 244, 246
    A('v_lshlrev_b32 v27, 2, v26') if False else None
    A('v_and_b32 v26, 31, v0')
    A('v_lshlrev_b32 v26, 3, v26')
    A('v_lshrrev_b32 v28, 5, v0')
    A('v_mul_u32_u24 v27, 5120, v28')
    A('v_add_u32 v27, v27, v26')
    A(f's_lshl_b32 s{sA1}, s{sG}, 10')
    A(f's_lshl_b32 s{sT0}, s{sW}, 8')
    A(f's_add_u32 s{sA1}, s{sA1}, s{sT0}')
    A(f's_add_u32 s{sA1}, s{sA1}, {SE_OFF}')
    A(f's_mul_i32 s{sT0}, s{sB}, 10240')
    A(f's_add_u32 s{sT0}, s{sT0}, s{sA1}')
    A(f'buffer_store_dwordx2 v[244:245], v27, {WS}, s{sT0} offen sc1')
    A(f's_lshl_b32 s{sA2}, s{sG}, 2')
    A(f's_add_u32 s{sA2}, s{sA2}, {DBG_SF1}')
    A(f's_lshl_b32 s{sA3}, 1, s{sB}')
    set_bit(A, sA2, sA3, 29)
    A(f's_lshl_b32 s{sA4}, s{sA3}, 1')
    A(f's_sub_u32 s{sA4}, s{sA4}, 1')
    wait_bits(A, sA2, sA4, 29)
    EB = 164
    for j in range(31):
        A(f's_add_u32 s{sT0}, s{sA1}, {j*5120}')
        A(f'buffer_load_dwordx2 {v(EB+2*j,2)}, v26, {WS}, s{sT0} offen sc1')
    A(f's_lshl_b32 s{sT0}, s{sB}, 1')
    A(f'v_add_u32 v28, s{sT0}, v28')
    hr, hi = 244, 245
    A(f'v_mov_b64 v[244:245], 0')
    A('s_waitcnt vmcnt(0)')
    for j in range(31):
        A(f'v_cmp_lt_u32 vcc, {j}, v28')
        A(f'v_fma_f32 v246, v{qr}, v{hr}, v{EB+2*j}')
        A(f'v_fma_f32 v247, v{qr}, v{hi}, v{EB+2*j+1}')
        A(f'v_fma_f32 v246, -v{qi}, v{hi}, v246')
        A(f'v_fma_f32 v247, v{qi}, v{hr}, v247')
        A(f'v_cndmask_b32 v{hr}, v{hr}, v246, vcc')
        A(f'v_cndmask_b32 v{hi}, v{hi}, v247, vcc')
    A('v_bfe_u32 v26, v0, 2, 3')
    A('v_lshlrev_b32 v26, 10, v26')
    A('v_and_b32 v27, 3, v0')
    A('v_lshl_add_u32 v26, v27, 4, v26')
    A('v_lshrrev_b32 v27, 5, v0')
    A('v_lshl_add_u32 v26, v27, 9, v26')
    A(f's_mul_i32 s{sA1}, s{sB}, 327680')
    A(f's_lshl_b32 s{sT0}, s{sG}, 15')
    A(f's_add_u32 s{sA1}, s{sA1}, s{sT0}')
    A(f's_lshl_b32 s{sT0}, s{sW}, 13')
    A(f's_add_u32 s{sA1}, s{sA1}, s{sT0}')
    A(f's_add_u32 s{sA1}, s{sA1}, {HT_OFF}')
    A(f's_add_u32 s{sA4}, s{sA1}, 163840')
    pr, pi_ = hr, hi
    for i in range(64):
        A(f'v_fma_f32 v{UR+i}, v{lr}, v{pr}, v{UR+i}')
        A(f'v_fma_f32 v{UI+i}, v{lr}, v{pi_}, v{UI+i}')
        if i > 0:
            A(f'v_mul_f32 v{EB+16+(i-1)%8}, v{cr}, v{pr}')
            A(f'v_mul_f32 v{EB+24+(i-1)%8}, v{cr}, v{pi_}')
        A(f'v_fma_f32 v{UR+i}, -v{li}, v{pi_}, v{UR+i}')
        A(f'v_fma_f32 v{UI+i}, v{li}, v{pr}, v{UI+i}')
        def fin(k, r_, i_):
            A(f'v_fma_f32 v{EB+16+k%8}, -v{ci}, v{i_}, v{EB+16+k%8}')
            A(f'v_fma_f32 v{EB+24+k%8}, -v{ci}, v{r_}, -v{EB+24+k%8}')
            if k % 8 == 7:
                o = EB + 8 * ((k // 8) % 2) if False else EB
                for q in range(4):
                    A(f'v_cvt_pk_bf16_f32 v{EB+32+8*((k//8)%2)+q}, v{EB+16+2*q}, v{EB+16+2*q+1}')
                    A(f'v_cvt_pk_bf16_f32 v{EB+36+8*((k//8)%2)+q}, v{EB+24+2*q}, v{EB+24+2*q+1}')
                A(f'buffer_store_dwordx4 {v(EB+32+8*((k//8)%2),4)}, v26, {WS}, s{sA1} offen offset:{(k//8)*64} sc1')
                A(f'buffer_store_dwordx4 {v(EB+36+8*((k//8)%2),4)}, v26, {WS}, s{sA4} offen offset:{(k//8)*64} sc1')
        if i > 0: fin(i - 1, pr, pi_)
        pr, pi_ = UR + i, UI + i
    A(f'v_mul_f32 v{EB+16+7}, v{cr}, v{pr}')
    A(f'v_mul_f32 v{EB+24+7}, v{cr}, v{pi_}')
    fin(63, pr, pi_)
    A(f's_add_u32 s{sA2}, s{sA2}, {DBG_SF2 - DBG_SF1}')
    set_bit(A, sA2, sA3, 29)
    rt_stamp(A, cfg, 0, 29)
    srd(A, SRD_1, 74, M_BYTES); srd(A, SRD_2, 76, M_BYTES)
    SL = 32768
    vCV, vHV, vCR, vHR = 5, 1, 9, 21
    A(f'v_lshlrev_b32 v{vHV}, 4, v0')
    rd_addrs(A, vCR)
    A(f's_lshl_b32 s{sT0}, s{sW}, 12')
    A(f's_add_u32 s{sA4}, s{sT0}, 16384')
    A(f's_mov_b32 s{sA3}, s{sT0}')
    for ks in range(4):
        A(f'v_add_u32 v{vCR+ks}, s{sA4}, v{vCR+ks}')
        A(f'v_add_u32 v{vCR+4+ks}, 65536, v{vCR+ks}')
        A(f'v_add_u32 v{vCR+8+ks}, 131072, v{vCR+ks}')
    A('v_lshrrev_b32 v26, 5, v0')
    A(f'v_lshlrev_b32 v{vHR}, 11, v26')
    A('v_bfe_u32 v26, v0, 2, 2')
    A(f'v_lshl_add_u32 v{vHR}, v26, 4, v{vHR}')
    A('v_bfe_u32 v26, v0, 4, 1')
    A(f'v_lshl_add_u32 v{vHR}, v26, 7, v{vHR}')
    A('v_bfe_u32 v26, v0, 1, 1')
    A(f'v_lshl_add_u32 v{vHR}, v26, 6, v{vHR}')
    A('v_and_b32 v26, 1, v0')
    A(f'v_lshl_add_u32 v{vHR}, v26, 3, v{vHR}')
    A(f'v_add_u32 v{vHR+1}, 65536, v{vHR}')
    A(f'v_add_u32 v{vHR+2}, 131072, v{vHR}')
    A(f's_mul_i32 s{sA1}, s{sB}, 327680')
    A(f's_add_u32 s{sA1}, s{sA1}, s{sT0}')
    A(f's_add_u32 s{sA1}, s{sA1}, {HT_OFF}')
    A(f's_lshl_b32 s{sN}, s{sG}, 7')
    A(f's_lshl_b32 s{sT0}, s{sW}, 5')
    A(f's_add_u32 s{sN}, s{sN}, s{sT0}')
    XF, DF = 100, 132
    A('v_and_b32 v26, 31, v0')
    A('v_mul_u32_u24 v27, 1280, v26')
    A('v_lshrrev_b32 v28, 5, v0')
    A('v_lshl_add_u32 v27, v28, 4, v27')
    A(f's_mul_i32 s{sT0}, s{sB}, {128*1280}')
    A(f's_lshl_b32 s{sT1}, s{sN}, 1')
    A(f's_add_u32 s{sT0}, s{sT0}, s{sT1}')
    for tt in range(4):
        A(f's_add_u32 s{sT2}, s{sT0}, {tt*32*1280}')
        for ks in range(2):
            A(f'buffer_load_dwordx4 {v(XF+8*tt+4*ks,4)}, v27, s[{SRD_X}:{SRD_X+3}], s{sT2} offen offset:{ks*32}')
    srd(A, 52, 80, 1280)
    A('v_lshlrev_b32 v27, 1, v26')
    A(f'buffer_load_ushort v29, v27, s[52:55], s{sT1} offen')
    A('v_lshlrev_b32 v28, 3, v28')
    A('v_sub_u32 v26, v26, v28')
    A('s_waitcnt vmcnt(0)')
    A('v_lshlrev_b32 v30, 16, v29')
    for ks in range(2):
        for q in range(4):
            r_ = DF + 4 * ks + q
            A(f'v_cmp_eq_u32 vcc, {16*ks + 2*q}, v26')
            A(f'v_cndmask_b32 v{r_}, 0, v29, vcc')
            A(f'v_cmp_eq_u32 vcc, {16*ks + 2*q + 1}, v26')
            A(f'v_cndmask_b32 v{r_}, v{r_}, v30, vcc')
    for tt in range(4):
        for ks in range(2):
            d = v(ACC + 16 * tt, 16)
            A(mf(d, v(XF + 8 * tt + 4 * ks, 4), v(DF + 4 * ks, 4), '0' if ks == 0 else d))
    A(f's_mul_i32 s{sA2}, s{sN}, 1280')
    A(f's_lshl_b32 s{sT2}, 1, s{sB}')
    for g_ in range(5):
        A(f's_mov_b32 s{sT0}, {DBG_SF2 + 4*g_}')
        wait_bits(A, sT0, sT2, 29)
    stages = []
    for kc in range(20):
        slot = kc % 5
        def dma(nxt, kc=kc, slot=slot):
            g = []
            for j in range(4):
                g.append([f's_add_u32 m0, s{sA3}, {slot*SL + j*1024}', f's_add_u32 s{sT0}, s{sA1}, {kc*16384 + j*1024}',
                          f'buffer_load_dwordx4 v{vHV}, {WS}, s{sT0} offen sc1 lds'])
            sr = SRD_1 if kc < 10 else SRD_2
            for j in range(4):
                g.append([f's_add_u32 m0, s{sA4}, {slot*SL + j*1024}', f's_add_u32 s{sT0}, s{sA2}, {(kc%10)*128}',
                          f'buffer_load_dwordx4 v{vCV+j}, s[{sr}:{sr+3}], s{sT0} offen lds'])
            return g
        steps = []
        for ks in range(4):
            fb = 20 * (ks % 2)
            hb, so = slot >> 1, (slot & 1) * SL
            reads = [(f'ds_read_b128 {a(fb+16,4)}, v{vCR+4*hb+ks} offset:{so}', ('c', fb))]
            for tt in range(4):
                for rd in range(2):
                    reads.append((f'ds_read_b64_tr_b16 {a(fb+4*tt+2*rd,2)}, v{vHR+hb} offset:{so + ks*4096 + rd*1024 + tt*256}', ('h', fb, tt)))
            mfs = []
            for tt in range(4):
                d = v(ACC + 16 * tt, 16)
                mfs.append((mf(d, a(fb + 4 * tt, 4), a(fb + 16, 4), d), [('h', fb, tt)]))
            steps.append(dict(reads=reads, mf=mfs))
        stages.append(dict(dma=dma, steps=steps))
    P = Pipe(A, stages, 5, False)
    P.prologue(); P.body()
    A('v_and_b32 v26, 31, v0')
    A('v_lshlrev_b32 v26, 2, v26')
    A('v_lshrrev_b32 v27, 5, v0')
    A('v_mul_u32_u24 v27, 20480, v27')
    A('v_add_u32 v26, v26, v27')
    A(f's_mul_i32 s{sA1}, s{sB}, {128*5120}')
    A(f's_lshl_b32 s{sT0}, s{sN}, 2')
    A(f's_add_u32 s{sA1}, s{sA1}, s{sT0}')
    A(f's_add_u32 s{sA1}, s{sA1}, 2560')
    for tt in range(4):
        for rg in range(16):
            A(f's_add_u32 s{sT0}, s{sA1}, {(32*tt + 8*(rg>>2) + (rg&3))*5120}')
            A(f'buffer_store_dword v{ACC+16*tt+rg}, v26, s[{SRD_O}:{SRD_O+3}], s{sT0} offen')
    rt_stamp(A, cfg, 0, 29)

def post(A, cfg, first, stride, waitprog=True):
    A(f's_load_dwordx2 s[82:83], s[0:1], {KA["out"]}')
    A(f's_mov_b32 s{sN}, s{first}')
    A('v_lshlrev_b32 v1, 4, v0')
    A('v_lshrrev_b32 v27, 4, v0')
    A('v_and_b32 v26, 15, v0')
    A('v_mul_u32_u24 v2, 10240, v27')
    A('v_lshl_add_u32 v2, v26, 4, v2')
    A('v_mul_u32_u24 v3, 5120, v26')
    A('v_lshl_add_u32 v3, v27, 4, v3')
    A('v_mov_b32 v4, v0')
    A(f's_mul_i32 s{sT0}, s{sW}, 10240')
    A(f'v_add_u32 v5, s{sT0}, v1')
    A('s_waitcnt lgkmcnt(0)')
    srd(A, SRD_O, 82, OUT_BYTES)
    TOP = A.newlabel('ptop'); END = A.newlabel('pend')
    A.label(TOP)
    A(f's_cmp_ge_u32 s{sN}, 512')
    A(f's_cbranch_scc1 {END}')
    A(f's_lshr_b32 s{sB}, s{sN}, 3')
    A(f's_and_b32 s{sG}, s{sN}, 7')
    A(f's_mul_i32 s{sG}, s{sG}, 5')
    PF, ACC, VF = 8, 88, 0
    A(f's_mul_i32 s{sA1}, s{sB}, {VW_S}')
    A(f's_lshr_b32 s{sT0}, s{sW}, 1')
    A(f's_mul_i32 s{sT0}, s{sT0}, {VW_X}')
    A(f's_add_u32 s{sA1}, s{sA1}, s{sT0}')
    A(f's_and_b32 s{sT0}, s{sW}, 1')
    A(f's_lshl_b32 s{sT0}, s{sT0}, 13')
    A(f's_add_u32 s{sA1}, s{sA1}, s{sT0}')
    A(f's_lshl_b32 s{sT0}, s{sG}, 14')
    A(f's_add_u32 s{sA1}, s{sA1}, s{sT0}')
    A(f's_add_u32 s{sA1}, s{sA1}, {VW_OFF}')
    if waitprog:
        L = A.newlabel('pw'); D = A.newlabel('pwd')
        A.label(L)
        A(f'buffer_load_dwordx2 v[6:7], off, {DBG}, 0 offset:{DBG_PROG} sc1')
        A('s_waitcnt vmcnt(0)')
        A('v_and_b32 v7, 64, v7')
        A('v_max_u32 v6, v6, v7')
        A(f'v_cmp_ge_u32 vcc, s{sB}, v6')
        A(f's_cbranch_vccz {D}')
        A('s_sleep 8')
        A(f's_sub_u32 s{sBUD}, s{sBUD}, 1')
        A(f's_cbranch_scc0 {L}')
        A(f's_mov_b32 s{sBUD}, 0')
        A.label(D)
    A(f's_mul_i32 s{sA2}, s{sB}, {PX_S}')
    A(f's_lshl_b32 s{sT0}, s{sW}, 14')
    A(f's_add_u32 s{sA2}, s{sA2}, s{sT0}')
    A(f's_add_u32 s{sA2}, s{sA2}, {PX_OFF}')
    for j in range(16):
        if j % 4 == 0: A(f's_add_u32 s{sT0}, s{sA2}, {j*1024}')
        A(f'buffer_load_dwordx4 {v(PF+4*j,4)}, v1, {WS}, s{sT0} offen offset:{(j%4)*1024} sc1')
    A(f's_mul_i32 s{sA2}, s{sB}, {PXM_S}')
    A(f's_lshl_b32 s{sT0}, s{sW}, 12')
    A(f's_add_u32 s{sA2}, s{sA2}, s{sT0}')
    A(f's_add_u32 s{sA2}, s{sA2}, {PXM_OFF}')
    for j in range(4):
        A(f'buffer_load_dwordx4 {v(PF+64+4*j,4)}, v1, {WS}, s{sA2} offen offset:{j*1024} sc1')
    A(f's_mul_i32 s{sA3}, s{sB}, {T_S}')
    A(f's_mul_i32 s{sT0}, s{sW}, 81920')
    A(f's_add_u32 s{sA3}, s{sA3}, s{sT0}')
    A(f's_add_u32 s{sA3}, s{sA3}, {TP_OFF}')
    def tile_loads(t):
        for hh in range(8):
            if hh % 4 == 0: A(f's_add_u32 s{sT0}, s{sA1}, {t*16384 + hh*1024}')
            A(f'buffer_load_dwordx4 {a(40*t+4*hh,4)}, v1, {WS}, s{sT0} offen offset:{(hh%4)*1024} sc1')
        A(f's_add_u32 s{sT1}, s{sG}, {t}')
        A(f's_and_b32 s{sT0}, s{sT1}, 3')
        A(f's_mul_i32 s{sT0}, s{sT0}, 2560')
        A(f's_lshr_b32 s{sT1}, s{sT1}, 2')
        A(f's_lshl_b32 s{sT1}, s{sT1}, 8')
        A(f's_add_u32 s{sT0}, s{sT0}, s{sT1}')
        A(f's_add_u32 s{sT0}, s{sT0}, s{sA3}')
        A(f'buffer_load_dwordx4 {a(40*t+32,4)}, v2, {WS}, s{sT0} offen sc1')
        A(f's_add_u32 s{sT0}, s{sT0}, 40960')
        A(f'buffer_load_dwordx4 {a(40*t+36,4)}, v2, {WS}, s{sT0} offen sc1')
    for t in range(4): tile_loads(t)
    for t in range(5):
        A(f's_waitcnt vmcnt({30 if t < 2 else 10*(4-t)})')
        if t == 0: tile_loads(4)
        for kk in range(10):
            for qt in range(2):
                d = v(ACC + 8 * t + 4 * qt, 4)
                A(f'v_mfma_f32_16x16x32_bf16 {d}, {a(40*t+4*kk,4)}, {v(PF+8*kk+4*qt,4)}, {"0" if kk == 0 else d}')
    A('s_barrier')
    for i in range(10):
        A(f'ds_write_b128 v5, {v(ACC+4*i,4)} offset:{i*1024}')
    A('s_waitcnt lgkmcnt(0)')
    A('s_barrier')
    A(f's_lshl_b32 s{sT0}, s{sW}, 10')
    A(f'v_add_u32 v6, s{sT0}, v1')
    for k in range(3):
        for p in range(4):
            A(f'ds_read_b128 {v(PF+16*k+4*p,4)}, v6 offset:{p*10240 + k*4096}')
    A(f's_lshl_b32 s{sA1}, s{sB}, 5')
    A(f's_and_b32 s{sT0}, s{sW}, 1')
    A(f's_lshl_b32 s{sT0}, s{sT0}, 4')
    A(f's_add_u32 s{sA1}, s{sA1}, s{sT0}')
    A(f's_mul_i32 s{sA1}, s{sA1}, 5120')
    A(f's_lshr_b32 s{sT0}, s{sW}, 1')
    A(f's_add_u32 s{sT0}, s{sT0}, s{sG}')
    A(f's_lshl_b32 s{sT0}, s{sT0}, 6')
    A(f's_add_u32 s{sA1}, s{sA1}, s{sT0}')
    A(f's_cmp_lt_u32 s{sW}, 2')
    A(f's_cselect_b32 s{sA2}, s{sA1}, 0x40000000')
    A('s_waitcnt lgkmcnt(0)')
    for k in range(3):
        b = PF + 16 * k
        for r in range(4):
            A(f'v_add_f32 v{b+r}, v{b+r}, v{b+4+r}')
            A(f'v_add_f32 v{b+8+r}, v{b+8+r}, v{b+12+r}')
        for r in range(4):
            A(f'v_add_f32 v{b+r}, v{b+r}, v{b+8+r}')
        A(f'buffer_store_dwordx4 {v(b,4)}, v3, s[{SRD_O}:{SRD_O+3}], s{sA1 if k < 2 else sA2} offen offset:{k*128}')
    A(f's_add_u32 s{sN}, s{sN}, {stride}')
    A('s_waitcnt vmcnt(0)')
    rt_stamp(A, cfg, 0, 6)
    A(f's_branch {TOP}')
    A.label(END)
```

```python
from asmgen import *
from layout import *

RIMG = 0
PIMG = 10240
QIMG = 20480
KIMG = 23552
WRES = 26624
BUF = 108544
LDS_REC = 157696

SRD_WS, SRD_DBG, SRD_W1, SRD_W2, SRD_AUX = 8, 12, 16, 20, 24
sW, sX, sHL, sH, sS, sBUD = 28, 29, 30, 31, 32, 33
sT0, sT1, sT2, sT3 = 34, 35, 36, 37
sML, sMR = 38, 39
sA, sB, sC, sD, sE, sF, sG = 40, 41, 42, 43, 44, 45, 46
sCSC = 47
sXCC = 48
sUNIT = 49
sM2 = 50
sSTP = 52
sTM = 54
vTRB, vIDX, vTRA, vP2, vAIW, vL16, vP0, vWR, vBUFR, v9, v10, v11 = range(12)
sH1, sH2, sH3 = 56, 57, 58
bD, bE, bB, bC, bML, bMR, sD2, sE2, sTP = 60, 61, 62, 63, 64, 65, 66, 67, 59
import os
if os.environ.get('NOSTREAM'):
    KQ_S = 0; VW_S = 0
CSC = 192 ** -0.5 * 1.4426950408889634

import struct
def f2u(x): return struct.unpack('<I', struct.pack('<f', x))[0]

def srd(A, d, lo, nbytes):
    A(f's_mov_b32 s{d}, s{lo}')
    A(f's_mov_b32 s{d+1}, s{lo+1}')
    A(f's_mov_b32 s{d+2}, {nbytes:#x}')
    A(f's_mov_b32 s{d+3}, 0x20000')

def lds_frags(vo):
    return ([(c, 2) for c in range(4, 10)] if vo else []) + [(c, 2) for c in range(10, 20)]
def wreg(c, t, vo=False):
    lf = lds_frags(vo)
    regs = [(c_, t_) for c_ in range(20) for t_ in range(3) if (c_, t_) not in lf]
    i = regs.index((c, t))
    return ('a', 8 * i) if i < 32 else ('v', 256 - 8 * (len(regs) - i))
def R(f, base, n): return f'{f}[{base}:{base+n-1}]'

class Lg:
    def __init__(self, A): self.A = A; self.q = []
    def op(self, text, tag=None):
        self.A(text); self.q.append(tag)
    def wait(self, tag):
        idx = [i for i, t in enumerate(self.q) if t == tag]
        if not idx: return
        n = len(self.q) - 1 - idx[-1]
        self.A(f's_waitcnt lgkmcnt({min(n, 15)})')
        self.q = self.q[len(self.q) - min(n, 15):] if n else []
    def drain(self):
        self.A('s_waitcnt lgkmcnt(0)'); self.q = []

class F:
    def __init__(self, e, text, tag=None, id=None, after=()):
        self.e, self.text, self.tag, self.id, self.after = e, text, tag, id, tuple(after)
        mn = text.split()[0]
        self.cls = 'lds' if mn.startswith('ds_') else 'valu' if mn.startswith('v_') else 'vmem' if mn.startswith('buffer_') else 'salu'

def run_stream(A, lg, items, fillers, cap=None):
    cap = cap or dict(lds=1, valu=1, vmem=1, salu=2)
    pend = sorted(fillers, key=lambda f: f.e)
    done = {}
    def issue(f, gap):
        for a_ in f.after:
            assert a_ in done, (f.text, a_)
        if f.cls == 'lds': lg.op(f.text, f.tag)
        else: A(f.text)
        if f.id is not None: done[f.id] = gap
        pend.remove(f)
    for f in [f for f in pend if f.e < 0]: issue(f, -1)
    def gap(i, slack=0):
        n = 0
        for cls in ('lds', 'valu', 'salu', 'vmem'):
            k = 0
            for f in [f for f in pend if f.cls == cls]:
                if k >= cap[cls]: break
                if f.e > i or any(a_ not in done or done[a_] >= i for a_ in f.after): break
                issue(f, i); k += 1; n += 1
        return n
    for i, (text, need) in enumerate(items):
        for tg in need:
            for f in [f for f in pend if f.tag == tg]:
                assert f.e < i, (f.text, f.e, i)
                issue(f, i - 1)
            lg.wait(tg)
        A(text)
        gap(i)
    i = len(items)
    cap = dict(lds=2, valu=2, vmem=2, salu=2)
    while pend:
        gap(i); i += 1
        assert i < 1000

def smf(acc, afr, bop):
    return f'v_smfmac_f32_16x16x64_bf16 {v(acc,4)}, {v(afr,4)}, {bop}, v{vIDX}'

def stamp(A, cfg, idx):
    if not cfg.get('stamps') or idx == 9.5: return
    A(f's_memtime s[{70+2*idx}:{71+2*idx}]')
    if idx == 0: A(f's_memrealtime s[{70+2*11}:{71+2*11}]')
    if idx == 0: A(f's_mov_b32 s{70+2*9}, s{sBUD}')
    if idx == 1: A(f's_sub_u32 s{70+2*10}, s{70+2*9}, s{sBUD}')

def rt_stamp(A, cfg, sidx, vt, first=False):
    if not cfg.get('rt'): return
    if first:
        A('s_lshl_b32 s97, s2, 8')
        A(f's_add_u32 s97, s97, {RT_OFF}')
    A('s_memrealtime s[98:99]')
    A('s_waitcnt lgkmcnt(0)')
    A(f'v_mov_b32 v{vt}, s98')
    A(f'buffer_store_dword v{vt}, off, s[{SRD_WS}:{SRD_WS+3}], s97')
    A('s_add_u32 s97, s97, 4')

def stamp_flush(A, cfg, n, r):
    if not cfg.get('stamps'): return
    A('s_waitcnt lgkmcnt(0)')
    for i in range(12):
        A(f'v_writelane_b32 v{r}, s{70+2*i}, {i}')
    A(f'v_lshrrev_b32 v{r+1}, 2, v{vL16}')
    A(f'buffer_store_dword v{r}, v{r+1}, s[{SRD_WS}:{SRD_WS+3}], s{sSTP} offen')
    A(f's_add_u32 s{sSTP}, s{sSTP}, 256')

WS = f's[{SRD_WS}:{SRD_WS+3}]'

def retry_tail(A, tmp, L, D):
    A(f'v_cmp_eq_u32 vcc, -1, v{tmp}')
    A(f's_cbranch_vccz {D}')
    A(f's_sub_u32 s{sBUD}, s{sBUD}, 1')
    A(f's_cbranch_scc0 {L}')
    A(f's_mov_b32 s{sBUD}, 0')

def ld10(A, soff, rb, skip_first=False):
    if not skip_first: A(f'buffer_load_dwordx4 {v(rb,4)}, v{vP0}, {WS}, s{soff} offen sc1')
    A(f'buffer_load_dwordx4 {v(rb+4,4)}, v{vP0}, {WS}, s{soff} offen offset:1024 sc1')
    A(f'buffer_load_dwordx2 {v(rb+8,2)}, v{vP2}, {WS}, s{soff} offen offset:2048 sc1')

def chk10(A, rb, tmp, behind=0):
    A(f's_waitcnt vmcnt({2+behind})')
    A(f'v_max3_u32 v{tmp}, v{rb}, v{rb+1}, v{rb+2}')
    A(f's_waitcnt vmcnt({1+behind})')
    A(f'v_max3_u32 v{tmp+1}, v{rb+4}, v{rb+5}, v{rb+6}')
    A(f'v_max3_u32 v{tmp}, v{tmp}, v{rb+3}, v{rb+7}')
    A(f's_waitcnt vmcnt({behind})')
    A(f'v_max3_u32 v{tmp+1}, v{tmp+1}, v{rb+8}, v{rb+9}')
    A(f'v_max_u32 v{tmp}, v{tmp}, v{tmp+1}')

def put10(A, rb, img, first=True):
    if first: A(f'ds_write_b128 v{vP0}, {v(rb,4)} offset:{img}')
    A(f'ds_write_b128 v{vP0}, {v(rb+4,4)} offset:{img + 1024}')
    A(f'ds_write_b64 v{vP2}, {v(rb+8,2)} offset:{img + 2048}')

def fetch_m(A, cfg, lf, lr, rem, tmp, filler1, filler2, behind=None, oneshot=False):
    LL = A.newlabel('ml'); LC = A.newlabel('mlc'); LD = A.newlabel('mld')
    RL = A.newlabel('mr'); RC = A.newlabel('mrc'); RR = A.newlabel('mrr'); D = A.newlabel('mrd')
    ld10(A, sML, lr)
    if oneshot:
        A('s_barrier', 'local loads of all waves first')
        ld10(A, sMR, rem)
    filler1()
    if oneshot or not cfg.get('pipe', 1): A(f's_branch {LC}')
    else:
        A('s_waitcnt vmcnt(0)')
        stamp(A, cfg, 7)
        ld10(A, sML, lr)
        A('s_sleep 2')
    A.label(LL)
    ld10(A, sML, lr)
    if oneshot: ld10(A, sMR, rem)
    A.label(LC)
    chk10(A, lr, tmp, behind=3 if (oneshot or cfg.get('pipe', 1)) else 0)
    retry_tail(A, tmp, LL, LD)
    A.label(LD)
    if not oneshot:
        A('s_barrier', 'B0')
        ld10(A, sMR, rem)
        if behind: behind[1]()
    stamp(A, cfg, 0)
    for i in range(10):
        A(f'v_lshlrev_b32 v{lf+2*i}, 16, v{lr+i}')
        A(f'v_and_b32 v{lf+2*i+1}, 0xffff0000, v{lr+i}')
    filler2()
    def process(behind):
        for part, (o, n) in enumerate(((0, 4), (4, 4), (8, 2))):
            A(f's_waitcnt vmcnt({2-part+behind})')
            r = rem + o
            if part == 0:
                A(f'v_cmp_eq_u32 vcc, -1, v{r+3}')
                A(f'v_max3_u32 v{tmp}, v{r}, v{r+1}, v{r+2}')
                A(f's_cbranch_vccnz {RR}')
            elif part == 1:
                A(f'v_max3_u32 v{tmp+1}, v{r}, v{r+1}, v{r+2}')
                A(f'v_max_u32 v{tmp}, v{tmp}, v{r+3}')
            else:
                A(f'v_max3_u32 v{tmp+1}, v{tmp+1}, v{r}, v{r+1}')
            for i in range(n):
                A(f'v_lshlrev_b32 v{lr+2*i}, 16, v{r+i}')
                A(f'v_and_b32 v{lr+2*i+1}, 0xffff0000, v{r+i}')
            if part == 2: A(f'v_max_u32 v{tmp}, v{tmp}, v{tmp+1}')
            for i in range(n):
                A(f'v_pk_add_f32 {v(lr+2*i,2)}, {v(lr+2*i,2)}, {v(lf+2*(o+i),2)}')
            if part == 2: A(f'v_cmp_eq_u32 vcc, -1, v{tmp}')
            for i in range(n):
                A(f'v_cvt_pk_bf16_f32 v{r+i}, v{lr+2*i}, v{lr+2*i+1}')
            if n == 4: A(f'ds_write_b128 v{vP0}, {v(r,4)} offset:{RIMG + part*1024}')
            else: A(f'ds_write_b64 v{vP2}, {v(r,2)} offset:{RIMG + 2048}')
    process(behind[0] if behind else 0)
    A(f's_cbranch_vccz {D}')
    A.label(RR)
    A(f's_sub_u32 s{sBUD}, s{sBUD}, 1')
    A(f's_cbranch_scc0 {RL}')
    A(f's_mov_b32 s{sBUD}, 0')
    A('s_waitcnt vmcnt(0)')
    A(f's_branch {D}')
    A.label(RL)
    ld10(A, sMR, rem)
    A.label(RC)
    process(0)
    A(f's_cbranch_vccnz {RR}')
    A.label(D)
    stamp(A, cfg, 1)

def wait_ready(A, cfg, blk_s, kq, tmpv):
    if cfg.get('noflags'): return
    L = A.newlabel('fl'); D = A.newlabel('fld'); N_ = A.newlabel('fln')
    DB = f's[{SRD_DBG}:{SRD_DBG+3}]'
    A(f's_lshl_b32 s{sT0}, s{blk_s}, 3')
    A(f's_lshl_b32 s{sM2}, s{blk_s}, 1')
    A(f's_add_u32 s{sM2}, s{sM2}, s{sX}')
    A(f's_cmp_eq_u32 s{blk_s}, 0')
    A(f's_cselect_b32 s{sM2+1}, 32, 16')
    A.label(L)
    if kq: A(f'buffer_load_dwordx2 {v(tmpv,2)}, off, {DB}, s{sT0} offset:{DBG_MASK} sc1')
    A(f'buffer_load_ubyte v{tmpv+2}, off, {DB}, s{sM2} offset:{DBG_VCNT} sc1')
    A('s_waitcnt vmcnt(0)')
    if kq:
        A(f'v_and_b32 v{tmpv}, v{tmpv}, v{tmpv+1}')
        A(f'v_readfirstlane_b32 s{sT1}, v{tmpv}')
        A(f's_bitcmp1_b32 s{sT1}, s{sH}')
        A(f's_cbranch_scc0 {N_}')
    A(f'v_readfirstlane_b32 s{sT1}, v{tmpv+2}')
    A(f's_cmp_ge_u32 s{sT1}, s{sM2+1}')
    A(f's_cbranch_scc1 {D}')
    A.label(N_)
    A('s_sleep 3')
    A(f's_sub_u32 s{sBUD}, s{sBUD}, 1')
    A(f's_cbranch_scc0 {L}')
    A(f's_mov_b32 s{sBUD}, 0')
    A.label(D)

def common_setup(A, cfg):
    A(f's_load_dwordx2 s[4:5], s[0:1], {KA["ws"]}')
    A(f's_load_dwordx2 s[6:7], s[0:1], {KA["dbg"]}')
    A(f's_load_dwordx2 s[56:57], s[0:1], {KA["mem0"]}')
    A(f's_load_dwordx8 s[60:67], s[0:1], {KA["Wq"]}')
    A(f'v_lshrrev_b32 v1, 6, v0')
    A(f'v_readfirstlane_b32 s{sW}, v1')
    A(f's_and_b32 s{sX}, s2, 7')
    A(f's_lshr_b32 s{sT0}, s2, 3')
    A(f's_and_b32 s{sHL}, s{sT0}, 15')
    A(f's_lshl_b32 s{sH}, s{sX}, 4')
    A(f's_add_u32 s{sH}, s{sH}, s{sHL}')
    A(f's_mov_b32 s{sS}, 0')
    A(f's_mov_b32 s{sBUD}, 0x10000')
    A(f's_mov_b32 s{sCSC}, {f2u(CSC):#x}')
    A(f's_getreg_b32 s{sXCC}, hwreg(HW_REG_XCC_ID)')
    A(f's_and_b32 s{sXCC}, s{sXCC}, 7')
    A('s_waitcnt lgkmcnt(0)')
    srd(A, SRD_WS, 4, WS_BYTES)
    srd(A, SRD_DBG, 6, 256)
    srd(A, SRD_AUX, 56, 8 * 640 * 2)
    A('v_mov_b32 v12, v0')
    A('v_and_b32 v13, 63, v0')
    A('v_and_b32 v14, 15, v13')
    A('v_lshrrev_b32 v15, 4, v13')
    A('v_bfe_u32 v16, v14, 1, 1')
    A('v_mul_u32_u24 v17, 0x5555, v16')
    A(f'v_add_u32 v{vIDX}, 0x8888, v17')
    A(f'v_lshlrev_b32 v{vTRA}, 8, v15')
    A('v_and_b32 v17, 3, v14')
    A(f'v_lshl_add_u32 v{vTRA}, v17, 6, v{vTRA}')
    A('v_lshrrev_b32 v17, 2, v14')
    A(f'v_lshl_add_u32 v{vTRA}, v17, 3, v{vTRA}')
    A('v_and_b32 v17, 1, v15')
    A(f'v_lshl_add_u32 v{vTRA}, v17, 5, v{vTRA}')
    A(f'v_xor_b32 v{vTRB}, 32, v{vTRA}')
    A(f'v_lshlrev_b32 v{vAIW}, 2, v12')
    A(f's_and_b32 s{sT0}, s{sW}, 1')
    A(f's_lshl_b32 s{sT0}, s{sT0}, 5')
    A(f'v_xor_b32 v{vAIW}, s{sT0}, v{vAIW}')
    A(f'v_lshlrev_b32 v{vL16}, 4, v13')
    A(f's_mul_i32 s{sT0}, s{sW}, 2560')
    A(f'v_add_u32 v{vP0}, s{sT0}, v{vL16}')
    A(f'v_lshl_add_u32 v{vP2}, v13, 3, s{sT0}')
    A(f's_mul_i32 s{sML}, s{sX}, {2*MI_C}')
    A(f's_add_u32 s{sML}, s{sML}, {MI_OFF}')
    A(f's_xor_b32 s{sT1}, s{sX}, 1')
    A(f's_mul_i32 s{sMR}, s{sT1}, {2*MI_C}')
    A(f's_add_u32 s{sMR}, s{sMR}, {MI_OFF + MI_C}')
    A(f's_mul_i32 s{sT0}, s{sW}, 20480')
    A(f's_add_u32 s{sT0}, s{sT0}, {WRES}')
    A(f'v_add_u32 v{vWR}, s{sT0}, v{vL16}')
    if cfg.get('stamps'):
        A(f's_lshl_b32 s{sSTP}, s2, 2')
        A(f's_add_u32 s{sSTP}, s{sSTP}, s{sW}')
        A(f's_lshl_b32 s{sSTP}, s{sSTP}, 14')
        A(f's_add_u32 s{sSTP}, s{sSTP}, {STAMP_OFF}')

def load_weights(A, cfg, vo):
    for j in range(3):
        A(f'v_add_u32 v20, {64*j}, v13')
        A('v_mul_u32_u24 v21, 0xaaab, v20')
        A('v_lshrrev_b32 v21, 20, v21')
        A('v_mul_u32_u24 v22, 24, v21')
        A('v_sub_u32 v22, v20, v22')
        A('v_mul_u32_u24 v21, 12288, v21')
        A(f'v_lshl_add_u32 v{16+j}, v22, 4, v21')
    A(f's_mul_i32 s{sA}, s{sW}, {16*12288}')
    A(f's_mul_i32 s{sT0}, s{sH}, 384')
    A(f's_add_u32 s{sA}, s{sA}, s{sT0}')
    A('v_lshrrev_b32 v21, 3, v13')
    A('v_mul_u32_u24 v21, 1280, v21')
    A('v_and_b32 v22, 7, v13')
    A('v_lshl_add_u32 v19, v22, 4, v21')
    A(f's_mul_i32 s{sB}, s{sW}, {48*1280}')
    A(f's_mul_i32 s{sT0}, s{sH}, {192*1280}')
    A(f's_add_u32 s{sB}, s{sB}, s{sT0}')
    A(f's_mul_i32 s{sC}, s{sW}, 6144')
    A('v_lshrrev_b32 v21, 2, v14')
    A('v_lshl_add_u32 v21, v15, 3, v21')
    A('v_and_b32 v22, 3, v14')
    A('v_lshlrev_b32 v22, 3, v22')
    A(f's_lshl_b32 s{sT0}, s{sW}, 5')
    A(f'v_add_u32 v22, s{sT0}, v22')
    A('v_mul_u32_u24 v23, 384, v21')
    A('v_add_u32 v23, v23, v22')
    A('v_lshl_add_u32 v24, v21, 7, v22')
    def issue(c):
        slot = (c % 6) * 24576
        typeB = vo and c >= 10
        for j in range(6):
            A(f's_add_u32 m0, s{sC}, {slot + j*1024}')
            if typeB:
                A(f's_add_u32 s{sT0}, s{sB}, {(c-10)*128 + j*8*1280}')
                A(f'buffer_load_dwordx4 v19, s[{SRD_W2}:{SRD_W2+3}], s{sT0} offen lds')
            else:
                sr = SRD_W1 if c < 10 else SRD_W2
                A(f's_add_u32 s{sT0}, s{sA}, {((c%10)*64 + (j//3)*8)*12288}')
                A(f'buffer_load_dwordx4 v{16+j%3}, s[{sr}:{sr+3}], s{sT0} offen lds')
    A('v_lshrrev_b32 v26, 6, v12')
    A('v_lshl_add_u32 v26, v26, 4, v14')
    A('v_lshlrev_b32 v26, 1, v26')
    A('v_mul_u32_u24 v27, 2560, v15')
    A('v_add_u32 v27, v26, v27')
    for j in range(10):
        A(f'buffer_load_ushort v{32+2*j}, v27, s[{SRD_AUX}:{SRD_AUX+3}], 0 offen offset:{j*128}')
        A(f'buffer_load_ushort v{33+2*j}, v27, s[{SRD_AUX}:{SRD_AUX+3}], 0 offen offset:{j*128+1280}')
    A(f'v_add_u32 v26, 147456, v{vAIW}')
    for c in range(5): issue(c)
    for c in range(20):
        outstanding = min(20, c + 5) - c - 1
        A(f's_waitcnt vmcnt({6*outstanding}) lgkmcnt(0)')
        A('s_barrier')
        if c == 0:
            census_reg(A)
            for j in range(10):
                A(f'v_lshl_or_b32 v{32+2*j}, v{33+2*j}, 16, v{32+2*j}')
                A(f'ds_write_b32 v26, v{32+2*j} offset:{j*1024}')
        if c + 5 < 20: issue(c + 5)
        slot = (c % 6) * 24576
        typeB = vo and c >= 10
        A(f'v_add_u32 v25, {slot}, v{24 if typeB else 23}')
        for t in range(3):
            f, base = ('v', 32 + 8 * lds_frags(vo).index((c, t))) if (c, t) in lds_frags(vo) else wreg(c, t, vo)
            for rd in range(4):
                krow = 32 * (rd >> 1) + 4 * (rd & 1)
                off = (64 * t + krow) * 128 if typeB else krow * 384 + t * 128
                A(f'ds_read_b64_tr_b16 {R(f, base+2*rd, 2)}, v25 offset:{off}')
    for j in range(10): A(f'ds_read_b32 v{16+j}, v26 offset:{j*1024}')
    A('s_waitcnt lgkmcnt(0)')
    A('s_barrier')
    for j in range(10): A(f'ds_write_b32 v{vAIW}, v{16+j} offset:{RIMG + j*1024}')
    for j in range(len(lds_frags(vo))):
        A(f'ds_write_b128 v{vWR}, {v(32+8*j,4)} offset:{j*2048}')
        A(f'ds_write_b128 v{vWR}, {v(36+8*j,4)} offset:{j*2048+1024}')
    A('s_waitcnt lgkmcnt(0)')

def census_reg(A):
    skip = A.newlabel('cens')
    A(f's_cmp_lg_u32 s{sW}, 0')
    A(f's_cbranch_scc1 {skip}')
    A(f's_lshl_b32 s{sT0}, s{sXCC}, 3')
    A(f's_lshl_b64 s[{sM2}:{sM2+1}], 1, s{sT0}')
    A(f'v_mov_b32 v28, s{sM2}')
    A(f'v_mov_b32 v29, s{sM2+1}')
    A(f's_lshl_b32 s{sT0}, s{sX}, 3')
    A('s_mov_b64 exec, 1')
    A(f'buffer_atomic_add_x2 v[28:29], off, s[{SRD_DBG}:{SRD_DBG+3}], s{sT0} offset:{DBG_CENSUS} sc1')
    A('s_mov_b64 exec, -1')
    A.label(skip)

def census(A, cfg):
    L = A.newlabel('cw'); D = A.newlabel('cwd')
    A('v_mov_b32 v20, 0')
    A.label(L)
    A(f'buffer_load_dwordx4 v[16:19], v20, s[{SRD_DBG}:{SRD_DBG+3}], 0 offen offset:{DBG_CENSUS} sc1')
    A('s_waitcnt vmcnt(0)')
    A('v_sad_u8 v21, v16, 0, 0')
    A('v_sad_u8 v21, v17, 0, v21')
    A('v_sad_u8 v21, v18, 0, v21')
    A('v_sad_u8 v21, v19, 0, v21')
    A(f'v_readfirstlane_b32 s{sT0}, v21')
    A(f's_cmp_eq_u32 s{sT0}, 64')
    A(f's_cbranch_scc1 {D}')
    A('s_sleep 4')
    A(f's_sub_u32 s{sBUD}, s{sBUD}, 1')
    A(f's_cbranch_scc0 {L}')
    A(f's_mov_b32 s{sBUD}, 0')
    A.label(D)
    A(f'v_readfirstlane_b32 s{sA}, v16')
    A(f'v_readfirstlane_b32 s{sB}, v17')
    A(f'v_readfirstlane_b32 s{sC}, v18')
    A(f'v_readfirstlane_b32 s{sD}, v19')
    A(f's_cmp_eq_u32 s{sX}, 0')
    A(f's_cselect_b32 s{sM2}, s{sA}, s{sC}')
    A(f's_cselect_b32 s{sM2+1}, s{sB}, s{sD}')
    A(f's_lshl_b32 s{sT0}, s{sXCC}, 3')
    A(f's_lshr_b64 s[{sM2}:{sM2+1}], s[{sM2}:{sM2+1}], s{sT0}')
    A(f's_and_b32 s{sT0}, s{sM2}, 0xff')
    A(f's_cmp_eq_u32 s{sT0}, {32 if not cfg.get("forceslow") else 77}')

def ring(A, dst, base, ahead, stride):
    if ahead:
        A(f's_add_u32 s{sT0}, s{sS}, {ahead}')
        A(f's_and_b32 s{sT0}, s{sT0}, {NR-1}')
    else:
        A(f's_and_b32 s{sT0}, s{sS}, {NR-1}')
    A(f's_mul_i32 s{sT0}, s{sT0}, {stride}')
    A(f's_add_u32 s{dst}, s{base}, s{sT0}')

def zero(A, base, n):
    i = base
    while i < base + n:
        if i % 2 == 0 and i + 1 < base + n:
            A(f'v_mov_b64 {v(i,2)}, 0'); i += 2
        else:
            A(f'v_mov_b32 v{i}, 0'); i += 1

def atr(e, dst, off, tag):
    return [F(e, f'ds_read_b64_tr_b16 {v(dst+2*u,2)}, v{(vTRA, vTRB)[u]} offset:{off}', tag) for u in range(2)]

def wfrag_fill(j, slot, e):
    return [F(e, f'ds_read_b128 {v(slot,4)}, v{vWR} offset:{j*2048}', ('W', j)),
            F(e, f'ds_read_b128 {v(slot+4,4)}, v{vWR} offset:{j*2048+1024}', ('W', j))]

KACC, QAW, QWW, PRE, QACC, PXR = 12, 24, 40, 64, 100, 64
DUMP = LDS_REC
NT = os.environ.get('NT', ' nt')
VWD = int(os.environ.get('VWD', '1'))
LINK = [1, 3, 5, 7, 8, 9]

def kx_dst(j):
    step, kt = j >> 1, j & 1
    return PRE + 16 * (step >> 1) + 8 * kt + 4 * (step & 1)

def qk_bop(ph, k, t, slot):
    if ph == 1 and t == 2: return v(QWW + 8 * slot, 8)
    f, b = wreg(10 * ph + k, t)
    return R(f, b, 8)

def qk_remote(A, lg, cfg):
    order = [(0, 0), (0, 1)]
    for j in range(8): order += [(0, j + 2), (1, j)]
    order += [(1, 8), (1, 9)]
    items, kend = [], {}
    for ph, k in order:
        for t in range(3):
            need = [('A', k)] if (ph, t) == (0, 0) else []
            if (ph, t) == (1, 2): need.append(('W', k))
            items.append((smf((QACC if ph == 0 else KACC) + 4 * t, QAW + 4 * (k % 4), qk_bop(ph, k, t, k % 3)), need))
        if ph == 1: kend[k] = len(items) - 1
    fl = []
    for k in range(10):
        fl += atr(-1 if k < 3 else (0 if k == 3 else kend[k - 4]), QAW + 4 * (k % 4), RIMG + k * 1024, ('A', k))
        fl += wfrag_fill(k, QWW + 8 * (k % 3), kend[k - 3] + 1 if k >= 3 else 2 + 2 * k)
    fl.append(F(-1, f'buffer_store_dwordx4 {v(PXR,4)}, v{vL16}, {WS}, s{sB} offen sc1'))
    fl.append(F(-1, f'buffer_store_dwordx2 {v(PXR+4,2)}, v{v11}, {WS}, s{sC} offen sc1'))
    fl.append(F(-1, f's_mov_b32 m0, {DUMP}'))
    fl.append(F(-1, f'v_lshlrev_b32 v{QWW+23}, 3, v{vL16}'))
    fl.append(F(0, f'buffer_load_dword v{QWW+23}, {WS}, s{sH1} offen sc1 lds'))
    fl.append(F(2, f'buffer_load_dword v{QWW+23}, {WS}, s{sH2} offen sc1 lds'))
    for t in range(3):
        b = QACC + 4 * t
        fl.append(F(52 + t, f'v_add_f32 v{b}, v{b}, v{b+2}'))
        fl.append(F(52 + t, f'v_add_f32 v{b+1}, v{b+1}, v{b+3}', id=('a', t)))
    for t in range(3):
        b = QACC + 4 * t
        fl.append(F(55, f'v_cvt_pk_bf16_f32 v{b}, v{b}, v{b+1}', id=('c', t), after=[('a', t)]))
        fl.append(F(55, f'ds_write_b32 v{vAIW}, v{b} offset:{QIMG + t*1024}', id=('w', t), after=[('c', t)]))
    run_stream(A, lg, items, fl, cap=dict(lds=1, valu=2, vmem=1, salu=2))

def qk_role(A, cfg):
    A.comment('==== QK role ====')
    srd(A, SRD_W1, 60, W_BYTES); srd(A, SRD_W2, 62, W_BYTES)
    A(f'v_add_u32 v{vBUFR}, {BUF}, v{vL16}')
    A(f's_lshl_b32 s{sT0}, s{sW}, 8')
    A(f'v_lshlrev_b32 v{v9}, 4, v14')
    A(f'v_lshl_add_u32 v{v9}, v15, 2, v{v9}')
    A(f'v_add_u32 v{v9}, s{sT0}, v{v9}')
    A('v_lshrrev_b32 v16, 2, v14')
    A('v_lshl_add_u32 v16, v15, 3, v16')
    A('v_and_b32 v17, 1, v14')
    A('v_lshlrev_b32 v17, 3, v17')
    A(f'v_lshl_add_u32 v{v10}, v16, 4, v17')
    A('v_cmp_gt_u32 vcc, 8, v14')
    A('v_mov_b32 v16, 0x40000000')
    A(f'v_cndmask_b32 v{v11}, v16, v{vAIW}, vcc')
    sk0 = A.newlabel('v11')
    A(f's_cmp_eq_u32 s{sW}, 0')
    A(f's_cbranch_scc1 {sk0}')
    A('v_lshlrev_b32 v17, 4, v14')
    A('v_lshl_add_u32 v17, v15, 3, v17')
    A('v_cmp_gt_u32 vcc, 2, v15')
    A(f'v_cndmask_b32 v{v11}, v16, v17, vcc')
    A.label(sk0)
    def p_offsets():
        A(f's_mul_i32 s{sD}, s{sX}, 10240')
        A(f's_add_u32 s{sD}, s{sD}, {PI_OFF}')
        A(f's_lshr_b32 s{sT0}, s{sHL}, 1')
        A(f's_lshl_b32 s{sT0}, s{sT0}, 8')
        A(f's_add_u32 s{sE}, s{sD}, s{sT0}')
        A(f's_add_u32 s{sE}, s{sE}, 8192')
        A(f's_lshr_b32 s{sT0}, s{sHL}, 1')
        A(f's_xor_b32 s{sT0}, s{sT0}, s{sHL}')
        A(f's_and_b32 s{sT0}, s{sT0}, 1')
        A(f's_lshl_b32 s{sT0}, s{sT0}, 5')
        A(f's_add_u32 s{sE}, s{sE}, s{sT0}')
        A(f's_lshl_b32 s{sT0}, s{sHL}, 9')
        A(f's_add_u32 s{sD}, s{sD}, s{sT0}')
    p_offsets()
    sk = A.newlabel('qkclr')
    A(f's_cmp_lg_u32 s{sW}, 0')
    A(f's_cbranch_scc1 {sk}')
    vSENT = 16
    A('v_mov_b32 v16, -1')
    for st in range(2):
        A(f's_add_u32 s{sT0}, s{sD}, {st*PI_S}')
        A(f's_add_u32 s{sT1}, s{sE}, {st*PI_S}')
        A(f'buffer_store_dword v{vSENT}, v{vAIW}, {WS}, s{sT0} offen sc1')
        A(f'buffer_store_dword v{vSENT}, v{vAIW}, {WS}, s{sT0} offen offset:256 sc1')
        A(f'buffer_store_dword v{vSENT}, v{v11}, {WS}, s{sT1} offen sc1')
    A.label(sk)
    load_weights(A, cfg, vo=False)
    rt_stamp(A, cfg, 0, 24)
    census(A, cfg)
    A(f's_cselect_b32 s{sG}, 1, 0')
    p_offsets()
    for d_, s_ in ((bD, sD), (bE, sE), (bML, sML), (bMR, sMR)): A(f's_mov_b32 s{d_}, s{s_}')
    qk_rings(A)
    A(f's_mul_i32 s{sA}, s{sH}, {KQ_SH}')
    A(f's_add_u32 s{sA}, s{sA}, {KQ_OFF}')
    A(f's_lshl_b32 s{sB}, s{sH}, 11')
    A(f's_sub_u32 s{sT0}, s{sW}, 1')
    A(f's_lshl_b32 s{sT1}, s{sT0}, 10')
    A(f's_add_u32 s{sB}, s{sB}, s{sT1}')
    A(f's_add_u32 s{sB}, s{sB}, {PX_OFF}')
    A(f's_lshr_b32 s{sC}, s{sH}, 2')
    A(f's_lshl_b32 s{sC}, s{sC}, 11')
    A(f's_add_u32 s{sC}, s{sC}, s{sT1}')
    A(f's_and_b32 s{sT0}, s{sH}, 3')
    A(f's_lshl_b32 s{sT0}, s{sT0}, 8')
    A(f's_add_u32 s{sC}, s{sC}, s{sT0}')
    A(f's_add_u32 s{sC}, s{sC}, {PXM_OFF}')
    A(f's_lshl_b32 s{sF}, 1, s{sH}')
    A(f's_lshl_b32 s{sT0}, s{sX}, 4')
    A(f's_lshl_b32 s{sH3}, 0xffff, s{sT0}')
    A(f's_mul_i32 s{sH1}, s{sX}, {VW_X}')
    A(f's_mul_i32 s{sT0}, s{sHL}, 40960')
    A(f's_add_u32 s{sH1}, s{sH1}, s{sT0}')
    A(f's_lshl_b32 s{sT0}, s{sW}, 13')
    A(f's_add_u32 s{sH1}, s{sH1}, s{sT0}')
    A(f's_add_u32 s{sH1}, s{sH1}, {VW_OFF + VWD*VW_S}')
    A(f's_add_u32 s{sH2}, s{sH1}, {4*8192}')
    A(f's_cmp_eq_u32 s{sW}, 0')
    A(f's_cselect_b32 s{sH2}, s{sH2}, 0x40000000')
    A(f's_sub_u32 s{sT0}, s{sW}, 1')
    A(f's_cmp_lt_u32 s{sT0}, 2')
    A(f's_cselect_b32 s{bB}, s{sB}, 0x40000000')
    A(f's_cselect_b32 s{sUNIT}, s{sC}, 0x40000000')
    A(f's_mov_b32 s{sB}, 0x40000000')
    A(f's_mov_b32 s{sC}, 0x40000000')
    sk = A.newlabel('qkpre')
    A(f's_cmp_lg_u32 s{sW}, 0')
    A(f's_cbranch_scc1 {sk}')
    wait_ready(A, cfg, sS, True, 16)
    A(f's_mov_b32 s{sT2}, {BUF}')
    kq_dma(A)
    A('s_waitcnt vmcnt(0)')
    A.label(sk)
    zero(A, KACC, 12); zero(A, QACC, 12)
    A('s_barrier')
    kx_early(A)
    A('s_waitcnt lgkmcnt(0)')
    rt_stamp(A, cfg, 0, 24)
    slow = A.newlabel('qkslow')
    A(f's_cmp_eq_u32 s{sG}, 0')
    A(f's_cbranch_scc1 {slow}')
    qk_loop(A, cfg, '')
    A.label(slow)
    qk_loop(A, cfg, ' sc1')

def done_count(A):
    sk = A.newlabel('dn')
    A(f's_cmp_lg_u32 s{sW}, 0')
    A(f's_cbranch_scc1 {sk}')
    A('v_mov_b32 v24, 1')
    A('s_mov_b64 exec, 1')
    A(f'buffer_atomic_add v24, off, s[{SRD_DBG}:{SRD_DBG+3}], 0 offset:{DBG_PROG+4} sc1')
    A('s_mov_b64 exec, -1')
    A.label(sk)

def kx_early(A):
    sk = A.newlabel('kxe')
    A(f's_cmp_lg_u32 s{sW}, 0')
    A(f's_cbranch_scc1 {sk}')
    for j in range(12):
        if kx_dst(j) < QACC: A(f'ds_read_b128 {v(kx_dst(j),4)}, v{vBUFR} offset:{j*1024}')
    A.label(sk)

def qk_rings(A):
    ring(A, sD, bD, 0, PI_S); ring(A, sE, bE, 0, PI_S)
    ring(A, sD2, bD, 2, PI_S); ring(A, sE2, bE, 2, PI_S)
    ring(A, sML, bML, 0, MI_S); ring(A, sMR, bMR, 0, MI_S)

def kq_dma(A):
    for j in range(6):
        A(f's_add_u32 m0, s{sT2}, {j*4096}')
        A(f's_add_u32 s{sT0}, s{sA}, {j*4096}')
        for i in range(4):
            A(f'buffer_load_dwordx4 v{vL16}, {WS}, s{sT0} offen offset:{i*1024} sc1 lds')
    A(f's_add_u32 s{sA}, s{sA}, {KQ_S}')

def rowred(A, op, regs):
    for sh in (8, 4, 2, 1):
        for r in regs:
            A(f'{op}_dpp v{r}, v{r}, v{r} row_ror:{sh} row_mask:0xf bank_mask:0xf')

def qk_loop(A, cfg, ST):
    lg = Lg(A)
    TOP = A.newlabel('qkloop'); END = A.newlabel('qkend')
    A.label(TOP)
    A('s_barrier', 'B1')
    stamp(A, cfg, 2)
    qk_remote(A, lg, cfg)
    stamp(A, cfg, 3)
    for t in range(3):
        b = KACC + 4 * t
        A(f'v_add_f32 v{b}, v{b}, v{b+2}')
        A(f'v_add_f32 v{b+1}, v{b+1}, v{b+3}')
    for t in range(3):
        b = KACC + 4 * t
        A(f'v_cvt_pk_bf16_f32 v{QAW+t}, v{b}, v{b+1}')
    for t in range(3):
        lg.op(f'ds_write_b32 v{v9}, v{QAW+t} offset:{KIMG + t*1024}')
    zero(A, KACC, 12)
    lg.drain()
    A('s_barrier', 'B3')
    stamp(A, cfg, 4)
    WX = A.newlabel('qkwx'); W3 = A.newlabel('qkw3'); JOIN = A.newlabel('qkjoin')
    A(f's_cmp_lg_u32 s{sW}, 0')
    A(f's_cbranch_scc1 {WX}')
    for k3 in range(3):
        for u in range(2):
            lg.op(f'ds_read_b64_tr_b16 {v(QAW+4*k3+2*u,2)}, v{(vTRA, vTRB)[u]} offset:{QIMG + k3*1024}', ('q', k3))
    for j in range(12):
        if kx_dst(j) >= QACC: lg.op(f'ds_read_b128 {v(kx_dst(j),4)}, v{vBUFR} offset:{j*1024}', ('q', 2))
    def kmrd(k3):
        for rd in range(4):
            lg.op(f'ds_read_b64_tr_b16 {v(QWW+8*k3+2*rd,2)}, v{v10} offset:{KIMG + k3*1024 + (rd>>1)*512 + (rd&1)*64}', ('k', k3))
    kmrd(0)
    cs = QAW + 12
    A(f'v_mov_b32 v{cs}, s{sCSC}')
    A(f'v_xor_b32 v{QAW+15}, 32, v{vAIW}')
    for k3 in range(3):
        lg.wait(('q', k3))
        for kt in range(2):
            A(smf(KACC + 4 * kt, QAW + 4 * k3, v(PRE + 16 * k3 + 8 * kt, 8)))
        if k3 < 2: kmrd(k3 + 1)
    a0, a1, am = KACC, KACC + 4, KACC + 8
    for k3 in range(3):
        lg.wait(('k', k3))
        A(smf(am, QAW + 4 * k3, v(QWW + 8 * k3, 8)))
    stamp(A, cfg, 5)
    m0_, m1_ = QAW + 13, QAW + 14
    for b in (a0, a1):
        A(f'v_add_f32 v{b}, v{b}, v{b+2}')
        A(f'v_add_f32 v{b+1}, v{b+1}, v{b+3}')
    A(f'v_add_f32 v{am}, v{am}, v{am+2}')
    A(f'v_add_f32 v{am+1}, v{am+1}, v{am+3}')
    A(f'v_max3_f32 v{m0_}, v{a0}, v{a1}, v{am}')
    A(f'v_max3_f32 v{m1_}, v{a0+1}, v{a1+1}, v{am+1}')
    rowred(A, 'v_max_f32', (m0_, m1_))
    A(f'v_mul_f32 v{m0_}, v{cs}, v{m0_}')
    A(f'v_mul_f32 v{m1_}, v{cs}, v{m1_}')
    for b in (a0, a1, am):
        A(f'v_fma_f32 v{b}, v{b}, v{cs}, -v{m0_}')
        A(f'v_fma_f32 v{b+1}, v{b+1}, v{cs}, -v{m1_}')
    for b in (am, a0, a1):
        A(f'v_exp_f32 v{b}, v{b}')
        A(f'v_exp_f32 v{b+1}, v{b+1}')
    A(f'v_add_f32 v{m0_}, v{a0}, v{a1}')
    A(f'v_add_f32 v{m1_}, v{a0+1}, v{a1+1}')
    A(f'v_add_f32_dpp v{m0_}, v{am}, v{m0_} quad_perm:[0,1,2,3] row_mask:0xf bank_mask:0x3')
    A(f'v_add_f32_dpp v{m1_}, v{am+1}, v{m1_} quad_perm:[0,1,2,3] row_mask:0xf bank_mask:0x3')
    rowred(A, 'v_add_f32', (m0_, m1_))
    A(f'v_rcp_f32 v{m0_}, v{m0_}')
    A(f'v_rcp_f32 v{m1_}, v{m1_}')
    for b in (a0, a1, am):
        A(f'v_mul_f32 v{b}, v{b}, v{m0_}')
        A(f'v_mul_f32 v{b+1}, v{b+1}, v{m1_}')
    for b in (a0, a1, am):
        A(f'v_cvt_pk_bf16_f32 v{b}, v{b}, v{b+1}')
    for b, off, vo_, so in ((a0, 0, vAIW, sD), (a1, 256, QAW + 15, sD), (am, 0, v11, sE)):
        A(f'buffer_store_dword v{b}, v{vo_}, {WS}, s{so} offen offset:{off}{ST}')
    stamp(A, cfg, 8)
    vSENT = cs
    A(f'v_mov_b32 v{vSENT}, -1')
    A(f'buffer_store_dword v{vSENT}, v{vAIW}, {WS}, s{sD2} offen{ST}')
    A(f'buffer_store_dword v{vSENT}, v{vAIW}, {WS}, s{sD2} offen offset:256{ST}')
    A(f'buffer_store_dword v{vSENT}, v{v11}, {WS}, s{sE2} offen{ST}')
    npg = A.newlabel('npg')
    A(f's_cmp_lg_u32 s{sH}, 0')
    A(f's_cbranch_scc1 {npg}')
    A(f's_max_u32 s{sT0}, s{sS}, 2')
    A(f's_sub_u32 s{sT0}, s{sT0}, 2')
    A(f'v_mov_b32 v{QWW}, s{sT0}')
    A('s_mov_b64 exec, 1')
    A(f'buffer_store_dword v{QWW}, off, s[{SRD_DBG}:{SRD_DBG+3}], 0 offset:{DBG_PROG} sc1')
    A('s_mov_b64 exec, -1')
    A.label(npg)
    A(f's_cmp_eq_u32 s{sS}, 63')
    A(f's_cbranch_scc1 {JOIN}')
    A(f's_add_u32 s{sT3}, s{sS}, 1')
    A(f's_and_b32 s{sT2}, s{sT3}, 1')
    A(f's_mul_i32 s{sT2}, s{sT2}, 24576')
    A(f's_add_u32 s{sT2}, s{sT2}, {BUF}')
    kq_dma(A)
    A(f's_branch {JOIN}')
    A.label(WX)
    A(f's_cmp_eq_u32 s{sW}, 3')
    A(f's_cbranch_scc1 {W3}')
    x_softmax(A, cfg)
    A(f's_branch {JOIN}')
    A.label(W3)
    A(f's_add_u32 s{sT3}, s{sS}, 2')
    A(f's_and_b32 s{sT0}, s{sT3}, 0x43')
    A(f's_cmp_lg_u32 s{sT0}, 0')
    A(f's_cbranch_scc1 {JOIN}')
    A(f's_lshr_b32 s{sT2}, s{sT3}, 2')
    wait_ready(A, cfg, sT2, True, 12)
    A.label(JOIN)
    stamp(A, cfg, 6)
    stamp_flush(A, cfg, 9, QWW)
    lg.q = []
    A(f's_mov_b32 s{sB}, s{bB}')
    A(f's_mov_b32 s{sC}, s{sUNIT}')
    A(f's_cmp_eq_u32 s{sS}, 63')
    A(f's_cbranch_scc1 {END}')
    A(f's_add_u32 s{sS}, s{sS}, 1')
    qk_rings(A)
    def f1():
        zero(A, KACC + 2, 10); zero(A, QACC, 12)
        A(f'v_xor_b32 v{vBUFR}, {BUF ^ (BUF+24576)}, v{vBUFR}')
        A(f's_add_u32 s{bB}, s{bB}, {PX_S}')
        A(f's_add_u32 s{sUNIT}, s{sUNIT}, {PXM_S}')
        A(f's_add_u32 s{sH1}, s{sH1}, {VW_S}')
        A(f's_add_u32 s{sH2}, s{sH2}, {VW_S}')
    if cfg.get('trig', 1):
        f1()
        NP = A.newlabel('np'); L = A.newlabel('pr')
        A('s_waitcnt vmcnt(0)')
        A(f's_cmp_lg_u32 s{sW}, 3')
        A(f's_cbranch_scc1 {NP}')
        A(f's_lshl_b32 s{sT1}, s{sX}, 8')
        A(f's_add_u32 s{sT1}, s{sT1}, {TF_OFF}')
        A(f'v_bfe_u32 v{QAW+1}, v{vL16}, 2, 6')
        A(f'v_and_b32 v{QAW+1}, 60, v{QAW+1}')
        for _ in range(2):
            A(f'buffer_load_dword v{QAW}, v{QAW+1}, {WS}, s{sT1} offen sc1')
            A('s_sleep 1')
        A.label(L)
        A(f'buffer_load_dword v{QAW}, v{QAW+1}, {WS}, s{sT1} offen sc1')
        A('s_waitcnt vmcnt(2)')
        A(f'v_cmp_gt_u32 vcc, s{sS}, v{QAW}')
        A(f's_cbranch_vccz {NP}')
        A(f's_sub_u32 s{sBUD}, s{sBUD}, 1')
        A(f's_cbranch_scc0 {L}')
        A(f's_mov_b32 s{sBUD}, 0')
        A.label(NP)
        A('s_barrier', 'B0')
        stamp(A, cfg, 7)
        if cfg.get('qkdelay', 2): A(f's_sleep {cfg.get("qkdelay", 2)}')
        fetch_m(A, cfg, QAW, QAW + 20, QAW + 30, KACC, lambda: kx_early(A), lambda: None, oneshot=True)
    else:
        fetch_m(A, cfg, QAW, QAW + 20, QAW + 30, KACC, f1, lambda: kx_early(A))
    zero(A, KACC, 2)
    A('s_waitcnt lgkmcnt(0)')
    A(f's_branch {TOP}')
    A.label(END)
    A(f'buffer_store_dwordx4 {v(PXR,4)}, v{vL16}, {WS}, s{sB} offen sc1')
    A(f'buffer_store_dwordx2 {v(PXR+4,2)}, v{v11}, {WS}, s{sC} offen sc1')
    A('s_waitcnt vmcnt(0)')
    A('s_barrier')
    done_count(A)
    rt_stamp(A, cfg, 0, 24)
    A('s_endpgm')

def x_softmax(A, cfg):
    lg = Lg(A)
    KM, QF, KX, SX, TMP = 40, 64, 12, 88, 100
    n_, g_, ad = TMP, TMP + 1, TMP + 2
    if cfg.get('xsleep', 3): A(f's_sleep {cfg.get("xsleep", 3)}')
    A(f'v_bfe_u32 v{n_}, v{vL16}, 4, 4')
    A(f'v_lshrrev_b32 v{g_}, 8, v{vL16}')
    A(f's_lshl_b32 s{sT0}, s{sW}, 10')
    A(f's_add_u32 s{sT0}, s{sT0}, {12288 - 1024}')
    A(f'v_add_u32 v{ad}, s{sT0}, v{vBUFR}')
    for st in range(6):
        lg.op(f'ds_read_b128 {v(QF+4*st,4)}, v{ad} offset:{st*2048}', ('q', st))
    for k3 in range(3):
        for rd in range(4):
            lg.op(f'ds_read_b64_tr_b16 {v(KM+8*k3+2*rd,2)}, v{v10} offset:{KIMG + k3*1024 + (rd>>1)*512 + (rd&1)*64}', ('k', 2*k3 + (rd >> 1)))
    A(f'v_sub_u32 v{ad+1}, v{vBUFR}, v{vL16}')
    A(f'v_lshrrev_b32 v{ad+2}, 3, v{n_}')
    A(f'v_lshl_add_u32 v{ad+1}, v{ad+2}, 10, v{ad+1}')
    A(f'v_bfe_u32 v{ad+2}, v{n_}, 2, 1')
    A(f'v_lshl_add_u32 v{ad+1}, v{ad+2}, 7, v{ad+1}')
    A(f'v_and_b32 v{ad+2}, 3, v{n_}')
    A(f'v_lshl_add_u32 v{ad+1}, v{ad+2}, 4, v{ad+1}')
    A(f'v_lshl_add_u32 v{ad+1}, v{g_}, 8, v{ad+1}')
    for st in range(6):
        lg.wait(('q', st)); lg.wait(('k', st))
        c = '0' if st == 0 else v(SX + 8, 4)
        A(f'v_mfma_f32_16x16x32_bf16 {v(SX+8,4)}, {v(KM+4*st,4)}, {v(QF+4*st,4)}, {c}')
    for kt in range(2):
        for st in range(6):
            lg.op(f'ds_read_b128 {v(KX+4*st,4)}, v{ad+1} offset:{st*2048 + kt*64}', ('x', kt, st))
        for st in range(6):
            lg.wait(('x', kt, st))
            c = '0' if st == 0 else v(SX + 4 * kt, 4)
            A(f'v_mfma_f32_16x16x32_bf16 {v(SX+4*kt,4)}, {v(KX+4*st,4)}, {v(QF+4*st,4)}, {c}')
    d_ = ad
    A(f's_lshl_b32 s{sT0}, s{sW}, 4')
    A(f's_sub_u32 s{sT0}, s{sT0}, 16')
    A(f'v_lshlrev_b32 v{d_}, 3, v{g_}')
    A(f'v_sub_u32 v{d_}, v{n_}, v{d_}')
    A(f'v_add_u32 v{d_}, s{sT0}, v{d_}')
    ninf = ad + 1
    A(f'v_mov_b32 v{ninf}, 0xff800000')
    for j in range(8):
        A(f'v_cmp_le_i32 vcc, {j}, v{d_}')
        A(f'v_cndmask_b32 v{SX+j}, v{ninf}, v{SX+j}, vcc')
    A(f'v_cmp_gt_u32 vcc, 2, v{g_}')
    for j in range(4):
        A(f'v_cndmask_b32 v{SX+8+j}, v{ninf}, v{SX+8+j}, vcc')
    mx, t2 = ad + 2, ad + 3
    A(f'v_max3_f32 v{mx}, v{SX}, v{SX+1}, v{SX+2}')
    for j in range(3, 11, 2):
        A(f'v_max3_f32 v{mx}, v{mx}, v{SX+j}, v{SX+j+1}')
    A(f'v_max_f32 v{mx}, v{mx}, v{SX+11}')
    def xred(op):
        for sw in ('v_permlane16_swap_b32', 'v_permlane32_swap_b32'):
            A(f'v_mov_b32 v{t2}, v{mx}')
            A(f'{sw} v{mx}, v{t2}')
            A(f'{op} v{mx}, v{mx}, v{t2}')
    xred('v_max_f32')
    A(f'v_mul_f32 v{mx}, s{sCSC}, v{mx}')
    for j in range(12):
        A(f'v_fma_f32 v{SX+j}, v{SX+j}, s{sCSC}, -v{mx}')
    for j in range(12):
        A(f'v_exp_f32 v{SX+j}, v{SX+j}')
    A(f'v_add_f32 v{mx}, v{SX}, v{SX+1}')
    for j in range(2, 12):
        A(f'v_add_f32 v{mx}, v{mx}, v{SX+j}')
    xred('v_add_f32')
    A(f'v_rcp_f32 v{mx}, v{mx}')
    for j in range(12):
        A(f'v_mul_f32 v{SX+j}, v{SX+j}, v{mx}')
    for j in range(6):
        A(f'v_cvt_pk_bf16_f32 v{PXR+j}, v{SX+2*j}, v{SX+2*j+1}')

ACC2, VAW, TACC, VWW, VACC, BVW, BT = 12, 16, 32, 72, 96, 96, 72
sPH = 68
vPUB, vSN = vBUFR, v11
sEX = 54
def wslot(j): return VWW + 8 * (j % 3)

def vo_role(A, cfg):
    A.comment('==== VO role ====')
    srd(A, SRD_W1, 64, W_BYTES); srd(A, SRD_W2, 66, W_BYTES)
    A(f's_lshl_b32 s{sT0}, s{sW}, 15')
    A(f's_add_u32 s{sT0}, s{sT0}, {WRES}')
    A(f'v_add_u32 v{vWR}, s{sT0}, v{vL16}')
    A(f's_and_b32 s{sT0}, s{sHL}, 1')
    A(f's_lshl_b32 s{sT0}, s{sT0}, 5')
    A(f'v_lshlrev_b32 v{vPUB}, 2, v13')
    A(f'v_xor_b32 v{vPUB}, s{sT0}, v{vPUB}')
    A(f'v_mov_b32 v{vSN}, -1')
    A(f'v_lshlrev_b32 v{v9}, 4, v14')
    A(f'v_mul_u32_u24 v{v10}, 10240, v15')
    A(f'v_add_u32 v{v10}, v{v10}, v{v9}')
    A('v_cmp_gt_u32 vcc, 2, v15')
    A('v_mov_b32 v16, 0x40000000')
    A(f'v_cndmask_b32 v{v9}, v16, v{vL16}, vcc')
    A(f's_lshl_b32 s{sT0}, s{sW}, 4')
    A(f's_add_u32 s{sT0}, s{sT0}, s{sHL}')
    A(f's_cmp_lt_u32 s{sT0}, 40')
    A(f's_cselect_b32 s{sUNIT}, 1, 0')
    A(f's_cselect_b64 s[{sEX}:{sEX+1}], -1, 0')
    def offsets():
        A(f's_lshl_b32 s{sT0}, s{sW}, 4')
        A(f's_add_u32 s{sT0}, s{sT0}, s{sHL}')
        A(f's_mul_i32 s{sD}, s{sX}, {T_X}')
        A(f's_add_u32 s{sD}, s{sD}, {T_OFF}')
        A(f's_mul_i32 s{sT1}, s{sW}, 2560')
        A(f's_add_u32 s{sC}, s{sD}, s{sT1}')
        A(f's_mul_i32 s{sT1}, s{sHL}, 10240')
        A(f's_add_u32 s{sC}, s{sC}, s{sT1}')
        A(f's_and_b32 s{sT1}, s{sT0}, 3')
        A(f's_mul_i32 s{sT1}, s{sT1}, 2560')
        A(f's_add_u32 s{sD}, s{sD}, s{sT1}')
        A(f's_lshr_b32 s{sT1}, s{sT0}, 2')
        A(f's_lshl_b32 s{sT1}, s{sT1}, 8')
        A(f's_add_u32 s{sD}, s{sD}, s{sT1}')
        A(f's_mul_i32 s{sE}, s{sX}, {2*MI_C}')
        A(f's_add_u32 s{sE}, s{sE}, {MI_OFF}')
        A(f's_lshl_b32 s{sT1}, s{sT0}, 8')
        A(f's_add_u32 s{sE}, s{sE}, s{sT1}')
        A(f's_mul_i32 s{sF}, s{sX}, {VW_X}')
        A(f's_lshl_b32 s{sT1}, s{sT0}, 14')
        A(f's_add_u32 s{sF}, s{sF}, s{sT1}')
        A(f's_add_u32 s{sF}, s{sF}, {VW_OFF}')
        A(f's_sub_u32 s{sTP}, s{sC}, {T_OFF - TP_OFF}')
        A(f's_cmp_eq_u32 s{sUNIT}, 0')
        for r_ in (sD, sE, sF): A(f's_cselect_b32 s{r_}, 0x40000000, s{r_}')
    offsets()
    for i in range(4): A(f'v_mov_b32 v{16+i}, -1')
    for st in range(2):
        for cp in range(2):
            A(f's_add_u32 s{sT0}, s{sE}, {(st+1)*MI_S + cp*MI_C}')
            A(f'buffer_store_dword v16, v{vPUB}, {WS}, s{sT0} offen sc1')
    def flag_off(dst):
        A(f's_lshl_b32 s{dst}, s{sX}, 8')
        A(f's_lshl_b32 s{sT0}, s{sHL}, 2')
        A(f's_add_u32 s{dst}, s{dst}, s{sT0}')
        A(f's_add_u32 s{dst}, s{dst}, {TF_OFF}')
        A(f's_cmp_eq_u32 s{sW}, 3')
        A(f's_cselect_b32 s{dst}, s{dst}, 0x40000000')
    flag_off(sT1)
    A('v_mov_b32 v20, 0')
    A('s_mov_b64 exec, 1')
    A(f'buffer_store_dword v20, off, {WS}, s{sT1} sc1')
    A('s_mov_b64 exec, -1')
    for st in range(1):
        A(f's_add_u32 s{sT0}, s{sC}, {st*T_S}')
        for j in range(3):
            A(f'buffer_store_dwordx4 v[16:19], v{vL16 if j < 2 else v9}, {WS}, s{sT0} offen offset:{j*1024} sc1')
    load_weights(A, cfg, vo=True)
    rt_stamp(A, cfg, 0, 24)
    census(A, cfg)
    A(f's_cselect_b32 s{sG}, 1, 0')
    offsets()
    A(f's_mov_b32 s{sA}, s{sF}')
    A(f's_mul_i32 s{sB}, s{sX}, 10240')
    A(f's_add_u32 s{sB}, s{sB}, {PI_OFF}')
    A(f's_lshl_b32 s{sT0}, s{sX}, 4')
    A(f's_lshl_b32 s{sF}, 0xffff, s{sT0}')
    for d_, s_ in ((bD, sD), (bE, sE), (bB, sB), (bC, sC), (bML, sML), (bMR, sMR)): A(f's_mov_b32 s{d_}, s{s_}')
    vo_rings(A); vw_offs(A); flag_off(bC)
    wait_ready(A, cfg, sS, False, 16)
    vw_early(A)
    A(f's_mov_b32 s{sD2}, 0x40000000')
    zero(A, VACC, 12); zero(A, TACC, 40)
    A('s_waitcnt lgkmcnt(0)')
    rt_stamp(A, cfg, 0, 24)
    slow = A.newlabel('voslow')
    A(f's_cmp_eq_u32 s{sG}, 0')
    A(f's_cbranch_scc1 {slow}')
    vo_loop(A, cfg, '')
    A.label(slow)
    vo_loop(A, cfg, ' sc1')

def vwld_text(j):
    return f'buffer_load_dwordx4 {v(BVW+4*j,4)}, v{vL16}, {WS}, s{(sA, sH1, sH2, sH3)[j//4]} offen offset:{(j%4)*1024} sc1{NT}'
NVE = int(os.environ.get('NVE', '10'))
TH = BVW + 12
def vw_early(A):
    for j in range(16 - NVE, 16): A(vwld_text(j))
def w_early(A):
    for j in range(3):
        for f_ in wfrag_fill(j, wslot(j), 0): A(f_.text)
def vw_offs(A):
    A(f's_add_u32 s{sH1}, s{sA}, 4096')
    A(f's_add_u32 s{sH2}, s{sA}, 8192')
    A(f's_add_u32 s{sH3}, s{sA}, 12288')

def vo_rings(A):
    assert NR == 4
    ring(A, sB, bB, 0, PI_S)
    ring(A, sE, bE, 1, MI_S); ring(A, sE2, bE, 2, MI_S)
    A(f's_and_b32 s{sPH}, s{sS}, 1')

def v_items(img, nxt, pre=False):
    items, fl, use = [], [], {}
    for k in range(10):
        for t in range(3):
            need = [('A', k)] if t == 0 else []
            if (k, t) in lds_frags(True):
                j = lds_frags(True).index((k, t)); bop = v(wslot(j), 8); use[j] = len(items)
                if j >= 3 or not pre: need.append(('W', j))
            else:
                f, b = wreg(k, t, True); bop = R(f, b, 8)
            items.append((smf(VACC + 4 * t, VAW + 4 * (k % 4), bop), need))
        fl += atr(-1 if k < 4 else 3 * (k - 4) + 2, VAW + 4 * (k % 4), img + k * 1024, ('A', k))
    for j in range(3 if pre else 0, 6):
        fl += wfrag_fill(j, wslot(j), use[j - 3] + 0.5 if j >= 3 else (0, 3.5, 6.5)[j])
    for n_, j in enumerate(nxt):
        fl += wfrag_fill(j, wslot(n_), use[3 + n_] + 0.5)
    return items, fl

def vo_loop(A, cfg, ST):
    lg = Lg(A)
    TOP = A.newlabel('voloop'); END = A.newlabel('voend')
    A.label(TOP)
    A('s_barrier', 'B1')
    stamp(A, cfg, 2)
    items, fl = v_items(RIMG, [6, 7])
    for j in range(3):
        fl.append(F(4 + 8 * j, f'buffer_store_dwordx4 {v(TH+4*j,4)}, v{vL16 if j < 2 else v9}, {WS}, s{sD2} offen offset:{j*1024} sc1'))
    fl += [F(8 + 8 * n_, vwld_text(j)) for n_, j in enumerate(range(6, 16 - NVE))]
    fl += [F(0, f's_add_u32 s{sT1}, s{sE2}, {MI_C}', id='t1'),
           F(1, f'buffer_store_dword v{vSN}, v{vPUB}, {WS}, s{sT1} offen sc1', after=['t1']),
           F(2, f'buffer_store_dword v{vSN}, v{vPUB}, {WS}, s{sE2} offen{ST}')]
    fl += [F(5, f's_add_u32 s{sT0}, s{sS}, 1'), F(6, f's_and_b32 s{sT0}, s{sT0}, {NR-1}'), F(7, f's_mul_i32 s{sT0}, s{sT0}, {MI_S}'),
           F(8, f's_add_u32 s{sML}, s{bML}, s{sT0}'), F(9, f's_add_u32 s{sMR}, s{bMR}, s{sT0}')]
    run_stream(A, lg, items, fl, cap=dict(lds=1, valu=1, vmem=1, salu=1))
    for t in range(3):
        b = VACC + 4 * t
        A(f'v_add_f32 v{b}, v{b}, v{b+2}')
        A(f'v_add_f32 v{b+1}, v{b+1}, v{b+3}')
    for t in range(3):
        b = VACC + 4 * t
        A(f'v_cvt_pk_bf16_f32 v{b}, v{b}, v{b+1}')
    for t in range(3):
        lg.op(f'ds_write_b32 v{vAIW}, v{VACC+4*t} offset:{QIMG + t*1024}')
    lg.drain()
    A('s_barrier', 'B2')
    stamp(A, cfg, 3)
    items, fl = [], []
    for k3 in range(3): fl += atr(-1, VAW + 4 * k3, QIMG + k3 * 1024, ('A', k3))
    fl += wfrag_fill(8, wslot(8), -1)
    fl += [F(2 * j, vwld_text(j)) for j in range(6)]
    last = {}
    for c0 in range(0, 10, 2):
        for k3 in range(3):
            for c in (c0, c0 + 1):
                need = [('A', k3)] if c == 0 else []
                if k3 == 2:
                    bop = v(wslot(6 + c), 8)
                    if c >= 2: need.append(('W', 6 + c))
                    last[c] = len(items)
                else:
                    f, b = wreg(10 + c, k3, True); bop = R(f, b, 8)
                items.append((smf(TACC + 4 * c, VAW + 4 * k3, bop), need))
    for c in range(10):
        if c >= 3: fl += wfrag_fill(6 + c, wslot(6 + c), last[c - 3])
        b = TACC + 4 * c
        e = last[c] + 3
        gb = ACC2 if c < 4 else (VAW + 12 if c < 8 else TACC)
        fl.append(F(e, f'v_add_f32 v{b}, v{b}, v{b+2}'))
        fl.append(F(e, f'v_add_f32 v{b+1}, v{b+1}, v{b+3}', id=('a', c)))
        fl.append(F(e + 1.5, f'v_cvt_pk_bf16_f32 v{gb + c%4}, v{b}, v{b+1}', id=('c', c), after=[('a', c)]))
        if c % 4 == 3 or c == 9:
            fl.append(F(e + 2, f'v_permlane32_swap_b32 v{gb}, v{gb+2}', after=[('c', c)]))
            fl.append(F(e + 2, f'v_permlane32_swap_b32 v{gb+1}, v{gb+3}', id=('s1', c)))
            fl.append(F(e + 3, f'v_permlane16_swap_b32 v{gb}, v{gb+1}', after=[('s1', c)]))
            fl.append(F(e + 3, f'v_permlane16_swap_b32 v{gb+2}, v{gb+3}', id=('s2', c)))
            fl.append(F(e + 4, f'v_and_or_b32 v{gb}, v{gb}, -2, s{sPH}', id=('tg', c), after=[('s2', c)]))
            vo_ = vL16 if c < 9 else v9
            fl.append(F(e + 5, f'buffer_store_dwordx4 {v(gb,4)}, v{vo_}, {WS}, s{sC} offen offset:{(c//4)*1024}{ST}', after=[('tg', c)]))
    run_stream(A, lg, items, fl, cap=dict(lds=1, valu=cfg.get('tval', 2), vmem=1, salu=2))
    stamp(A, cfg, 4)
    for i in range(2):
        A(f'v_mov_b64 {v(VWW+16+2*i,2)}, {v(ACC2+2*i,2)}')
        A(f'v_mov_b64 {v(VWW+20+2*i,2)}, {v(TACC+2*i,2)}')
    def tcopy():
        for j, (r_, o_) in enumerate(((VWW + 16, vL16), (VAW + 12, vL16), (VWW + 20, v9))):
            A(f'buffer_store_dwordx4 {v(r_,4)}, v{o_}, {WS}, s{sTP} offen offset:{j*1024} sc1')
    A(f's_cmp_eq_u32 s{sS}, 63')
    A(f's_cbranch_scc1 {END}')
    L1 = A.newlabel('tp'); L2 = A.newlabel('pp'); P0 = A.newlabel('pp0'); D = A.newlabel('ppd')
    def tloads():
        for j in range(4):
            A(f'buffer_load_dwordx4 {v(BT+4*j,4)}, v{v10}, {WS}, s{(sD, sH1, sH2, sH3)[j]} offen sc1')
    def tcheck(tmp):
        A(f'v_bitop3_b32 v{tmp}, v{BT}, v{BT+4}, v{BT+8} bitop3:0x7e')
        A(f'v_bitop3_b32 v{tmp+1}, v{BT}, v{BT+12}, s{sPH} bitop3:0x7e')
        A(f'v_bitop3_b32 v{tmp}, v{tmp}, v{tmp+1}, 1 bitop3:0xa8')
        A(f'v_cmp_ne_u32 vcc, 0, v{tmp}')
    for j, r_ in enumerate((sH1, sH2, sH3)): A(f's_add_u32 s{r_}, s{sD}, {(j+1)*40960}')
    ld10(A, sB, VAW)
    A('s_sleep 2')
    A.label(L2)
    ld10(A, sB, VAW)
    chk10(A, VAW, ACC2, behind=3)
    retry_tail(A, ACC2, L2, D)
    A.label(D)
    stamp(A, cfg, 6)
    put10(A, VAW, PIMG)
    tloads()
    zero(A, ACC2, 4)
    lg.drain()
    A('s_barrier', 'B4')
    stamp(A, cfg, 7)
    NU2 = A.newlabel('vonu')
    A(f's_cmp_eq_u32 s{sUNIT}, 0')
    A(f's_cbranch_scc1 {NU2}_f')
    items = [(smf(ACC2, TACC + 4 * k, v(BVW + 8 * k if k < 8 else BT + 8 * (k - 8), 8)), [('A', k)]) for k in range(10)]
    fa = []
    for k in range(10): fa += atr(-1 if k < 7 else 0, TACC + 4 * k, PIMG + k * 1024, ('A', k))
    run_stream(A, lg, items[:8], fa, cap=dict(lds=2, valu=1, vmem=1, salu=2))
    TL = A.newlabel('tl'); TD = A.newlabel('td')
    A('s_waitcnt vmcnt(0)')
    tcheck(VAW + 10)
    A(f's_cbranch_vccnz {TL}')
    A.label(TD)
    for text, need in items[8:]:
        for tg in need: lg.wait(tg)
        A(text)
    A(f's_add_u32 s{sT0}, s{sE}, {MI_C}')
    A(f'v_add_f32 v{ACC2}, v{ACC2}, v{ACC2+2}')
    A(f'v_add_f32 v{ACC2+1}, v{ACC2+1}, v{ACC2+3}')
    A(f'v_cvt_pk_bf16_f32 v{ACC2}, v{ACC2}, v{ACC2+1}')
    A(f'buffer_store_dword v{ACC2}, v{vPUB}, {WS}, s{sT0} offen sc1')
    A(f'buffer_store_dword v{ACC2}, v{vPUB}, {WS}, s{sE} offen{ST}')
    stamp(A, cfg, 8)
    A.label(NU2)
    A(f's_add_u32 s{sA}, s{sA}, {VW_S}')
    vw_offs(A)
    A('s_barrier', 'B5')
    stamp_flush(A, cfg, 9, ACC2)
    NU3 = A.newlabel('vonu3')
    A(f's_cmp_eq_u32 s{sUNIT}, 0')
    A(f's_cbranch_scc1 {NU3}_s')
    vw_early(A)
    A.label(NU3)
    stamp(A, cfg, 5)
    for j, r_ in enumerate((VWW + 16, VAW + 12, VWW + 20)):
        for i in range(2): A(f'v_mov_b64 {v(TH+4*j+2*i,2)}, {v(r_+2*i,2)}')
    def f1():
        zero(A, VACC, 12); zero(A, TACC, 40)
        A(f's_add_u32 s{sS}, s{sS}, 1')
        A(f's_mov_b32 s{sD2}, s{sTP}')
        A(f's_add_u32 s{sTP}, s{sTP}, {T_S}')
        vo_rings(A)
    fetch_m(A, cfg, VWW, ACC2, ACC2 + 10, VWW + 20, f1, lambda: None, oneshot=True)
    A('s_waitcnt lgkmcnt(0)')
    A(f's_branch {TOP}')
    A.label(f'{NU2}_f')
    A(f's_add_u32 s{sT0}, s{sS}, 1')
    A(f'v_mov_b32 v{ACC2}, s{sT0}')
    A('s_mov_b64 exec, 1')
    A(f'buffer_store_dword v{ACC2}, off, {WS}, s{bC}{ST}')
    A('s_mov_b64 exec, -1')
    A(f's_branch {NU2}')
    A.label(TL)
    tloads()
    A('s_waitcnt vmcnt(0)')
    tcheck(VAW + 10)
    A(f's_cbranch_vccz {TD}')
    A(f's_sub_u32 s{sBUD}, s{sBUD}, 1')
    A(f's_cbranch_scc0 {TL}')
    A(f's_mov_b32 s{sBUD}, 0')
    A(f's_branch {TD}')
    A.label(f'{NU3}_s')
    A(f's_sleep {cfg.get("nusleep", 6)}')
    A(f's_branch {NU3}')
    A.label(END)
    tcopy()
    A('s_waitcnt vmcnt(0)')
    A('s_barrier')
    done_count(A)
    rt_stamp(A, cfg, 0, 24)
    A('s_endpgm')

def rec_entry(A, cfg):
    common_setup(A, cfg)
    rt_stamp(A, cfg, 0, 16, first=True)
    VO = A.newlabel('role_vo')
    A('s_lshr_b32 s34, s2, 7')
    A('s_cmp_lg_u32 s34, 0')
    A(f's_cbranch_scc1 {VO}')
    qk_role(A, cfg)
    A.label(VO)
    vo_role(A, cfg)
```

```python
from asmgen import *
from layout import *
from rec import srd, Lg, rt_stamp, f2u, SRD_WS, SRD_DBG, WS
from work import Pipe, mf, sW, sT0, sT1, sT2, sLI, sBUD, sR

SRD_1, SRD_2, SRD_X, SRD_O = 16, 20, 24, 48
sB, sG, sA1, sA2, sA3, sA4, sN = 35, 36, 37, 38, 39, 40, 41
DBG = f's[{SRD_DBG}:{SRD_DBG+3}]'
M_BYTES = 640 * 640 * 2

def wait_bits(A, soff, sbits, vt):
    L = A.newlabel('wb'); D = A.newlabel('wbd')
    A.label(L)
    A(f'buffer_load_dword v{vt}, off, {DBG}, s{soff} sc1')
    A('s_waitcnt vmcnt(0)')
    A(f'v_readfirstlane_b32 s{sT1}, v{vt}')
    A(f's_and_b32 s{sT1}, s{sT1}, s{sbits}')
    A(f's_cmp_eq_u32 s{sT1}, s{sbits}')
    A(f's_cbranch_scc1 {D}')
    A('s_sleep 8')
    A(f's_sub_u32 s{sBUD}, s{sBUD}, 1')
    A(f's_cbranch_scc0 {L}')
    A(f's_mov_b32 s{sBUD}, 0')
    A.label(D)

def set_bit(A, soff, sbit, vt):
    A('s_waitcnt vmcnt(0)')
    A('s_barrier')
    sk = A.newlabel('sb')
    A(f's_cmp_lg_u32 s{sW}, 0')
    A(f's_cbranch_scc1 {sk}')
    A(f'v_mov_b32 v{vt}, s{sbit}')
    A('s_mov_b64 exec, 1')
    A(f'buffer_atomic_or v{vt}, off, {DBG}, s{soff} sc1')
    A('s_mov_b64 exec, -1')
    A.label(sk)

def row_voffs(A, dst, rowmap):
    for j in range(4):
        A('v_lshrrev_b32 v27, 3, v0')
        A(f'v_add_u32 v27, {8*j}, v27')
        A('v_bfe_u32 v29, v27, 1, 3')
        A('v_and_b32 v28, 7, v0')
        A('v_xor_b32 v28, v28, v29')
        rowmap(j)
        A('v_mul_u32_u24 v27, 1280, v27')
        A(f'v_lshl_add_u32 v{dst+j}, v28, 4, v27')

def rd_addrs(A, dst):
    A('v_lshrrev_b32 v26, 5, v0')
    A('v_and_b32 v27, 31, v0')
    A('v_bfe_u32 v28, v0, 1, 3')
    A('v_xor_b32 v28, v28, v26')
    A('v_lshlrev_b32 v27, 7, v27')
    for ks in range(4):
        A(f'v_xor_b32 v29, {2*ks}, v28')
        A(f'v_lshl_add_u32 v{dst+ks}, v29, 4, v27')

def cmul(A, dr, di, ar, ai, br, bi, t):
    A(f'v_mul_f32 v{t}, v{ai}, v{bi}')
    A(f'v_mul_f32 v{t+1}, v{ar}, v{bi}')
    A(f'v_fma_f32 v{t}, v{ar}, v{br}, -v{t}')
    A(f'v_fma_f32 v{di}, v{ai}, v{br}, v{t+1}')
    A(f'v_mov_b32 v{dr}, v{t}')

def ssm(A, cfg):
    A(f's_load_dwordx16 s[64:79], s[0:1], {KA["B_x"]}')
    A(f's_load_dwordx4 s[80:83], s[0:1], {KA["Dsk"]}')
    A(f's_mul_i32 s{sB}, s{sN}, 0x3334')
    A(f's_lshr_b32 s{sB}, s{sB}, 16')
    A(f's_mul_i32 s{sT0}, s{sB}, 5')
    A(f's_sub_u32 s{sG}, s{sN}, s{sT0}')
    A('s_waitcnt lgkmcnt(0)')
    A('s_barrier')
    srd(A, SRD_X, 64, X_BYTES); srd(A, SRD_1, 70, M_BYTES); srd(A, SRD_2, 72, M_BYTES); srd(A, SRD_O, 82, OUT_BYTES)
    SL = 49152
    vXV, vBV, vRD = 1, 5, 9
    def xmap(j):
        A('v_bfe_u32 v29, v27, 2, 1')
        A('v_and_b32 v27, 3, v27')
        A('v_lshl_add_u32 v27, v29, 6, v27')
        A(f'v_add_u32 v27, {4*j}, v27')
    row_voffs(A, vXV, xmap)
    row_voffs(A, vBV, lambda j: None)
    rd_addrs(A, vRD)
    for sl in (1, 2):
        for ks in range(4): A(f'v_add_u32 v{vRD+4*sl+ks}, {sl*SL}, v{vRD+ks}')
    vPR = 21
    A(f's_lshl_b32 s{sT0}, s{sW}, 13')
    A(f's_add_u32 s{sA4}, s{sT0}, 16384')
    A(f's_lshl_b32 s{sA1}, s{sB}, 7')
    A(f's_lshl_b32 s{sT0}, s{sW}, 4')
    A(f's_add_u32 s{sA1}, s{sA1}, s{sT0}')
    A(f's_mul_i32 s{sA1}, s{sA1}, 1280')
    A(f's_lshl_b32 s{sA3}, s{sW}, 12')
    A(f's_lshl_b32 s{sA2}, s{sG}, 7')
    A(f's_lshl_b32 s{sT0}, s{sW}, 5')
    A(f's_add_u32 s{sA2}, s{sA2}, s{sT0}')
    A('v_and_b32 v26, 31, v0')
    A(f'v_add_u32 v26, s{sA2}, v26')
    A('v_lshlrev_b32 v26, 1, v26')
    PAR = 232
    for i, p_ in enumerate((66, 68, 78)):
        srd(A, 52, p_, 1280)
        A(f'buffer_load_ushort v{PAR+i}, v26, s[52:55], 0 offen')
    A(f's_mul_i32 s{sA2}, s{sA2}, 1280')
    ACC = 32
    stages = []
    for kc in range(10):
        slot = kc % 3
        def dma(nxt, kc=kc, slot=slot):
            g = []
            for j in range(4):
                g.append([f's_add_u32 m0, s{sA3}, {slot*SL + j*1024}', f's_add_u32 s{sT0}, s{sA1}, {kc*128}',
                          f'buffer_load_dwordx4 v{vXV+j}, s[{SRD_X}:{SRD_X+3}], s{sT0} offen lds'])
            for part in range(2):
                sr = (SRD_1, SRD_2)[part]
                for j in range(4):
                    g.append([f's_add_u32 m0, s{sA4}, {slot*SL + part*4096 + j*1024}', f's_add_u32 s{sT0}, s{sA2}, {kc*128}',
                              f'buffer_load_dwordx4 v{vBV+j}, s[{sr}:{sr+3}], s{sT0} offen lds'])
            return g
        steps = []
        for ks in range(4):
            fb = 24 * (ks % 2)
            reads = [(f'ds_read_b128 {a(fb+16+4*part,4)}, v{160+4*slot+ks} offset:{part*4096}', ('b', fb)) for part in range(2)]
            reads += [(f'ds_read_b128 {a(fb+4*tt,4)}, v{vRD+4*slot+ks} offset:{tt*4096}', ('x', fb, tt)) for tt in range(4)]
            mfs = []
            for tt in range(4):
                for part in range(2):
                    d = v(ACC + 64 * part + 16 * tt, 16)
                    mfs.append((mf(d, a(fb + 4 * tt, 4), a(fb + 16 + 4 * part, 4), '0' if (kc, ks) == (0, 0) else d), [('x', fb, tt)]))
            steps.append(dict(reads=reads, mf=mfs))
        stages.append(dict(dma=dma, steps=steps))
    for i in range(12): A(f'v_add_u32 v{160+i}, s{sA4}, v{vRD+i}')
    P = Pipe(A, stages, 3, False)
    P.prologue(); P.body()
    Lr, Li, dt = PAR, PAR + 1, PAR + 2
    lr, li, cr, ci, qr, qi, t0 = 236, 237, 238, 239, 240, 241, 242
    for i in range(3): A(f'v_lshlrev_b32 v{PAR+i}, 16, v{PAR+i}')
    A(f'v_mul_f32 v{dt}, {f2u(1.4426950408889634):#x}, v{dt}')
    A(f'v_exp_f32 v{dt}, v{dt}')
    A(f'v_cvt_pk_bf16_f32 v{dt}, v{dt}, v{dt}')
    A(f'v_lshlrev_b32 v{dt}, 16, v{dt}')
    A(f'v_mul_f32 v{t0}, v{dt}, v{Lr}')
    A(f'v_mul_f32 v{t0}, {f2u(1.4426950408889634):#x}, v{t0}')
    A(f'v_exp_f32 v{t0}, v{t0}')
    A(f'v_mul_f32 v{t0+1}, v{dt}, v{Li}')
    A(f'v_mul_f32 v{t0+1}, 0.15915494309189535, v{t0+1}')
    A(f'v_rndne_f32 v{t0+2}, v{t0+1}')
    A(f'v_sub_f32 v{t0+1}, v{t0+1}, v{t0+2}')
    A(f'v_cos_f32 v{lr}, v{t0+1}')
    A(f'v_sin_f32 v{li}, v{t0+1}')
    A(f'v_mul_f32 v{lr}, v{lr}, v{t0}')
    A(f'v_mul_f32 v{li}, v{li}, v{t0}')
    A(f'v_mul_f32 v{t0}, v{Lr}, v{Lr}')
    A(f'v_fma_f32 v{t0}, v{Li}, v{Li}, v{t0}')
    A(f'v_rcp_f32 v{t0}, v{t0}')
    A(f'v_add_f32 v{t0+1}, -1.0, v{lr}')
    A(f'v_add_f32 v{t0}, v{t0}, v{t0}')
    A(f'v_mul_f32 v{cr}, v{t0+1}, v{Lr}')
    A(f'v_fma_f32 v{cr}, v{li}, v{Li}, v{cr}')
    A(f'v_mul_f32 v{ci}, v{li}, v{Lr}')
    A(f'v_fma_f32 v{ci}, -v{t0+1}, v{Li}, v{ci}')
    A(f'v_mul_f32 v{cr}, v{cr}, v{t0}')
    A(f'v_mul_f32 v{ci}, v{ci}, v{t0}')
    A(f'v_mov_b32 v{qr}, v{lr}'); A(f'v_mov_b32 v{qi}, v{li}')
    for _ in range(6): cmul(A, qr, qi, qr, qi, qr, qi, t0)
    UR, UI = ACC, ACC + 64
    er, ei, x1, x2 = 244, 245, 246, 247
    A(f'v_mov_b32 v{er}, v{UR}'); A(f'v_mov_b32 v{ei}, v{UI}')
    for i in range(1, 64):
        A(f'v_fma_f32 v{x1}, v{lr}, v{er}, v{UR+i}')
        A(f'v_fma_f32 v{x2}, v{lr}, v{ei}, v{UI+i}')
        A(f'v_fma_f32 v{x1}, -v{li}, v{ei}, v{x1}')
        A(f'v_fma_f32 v{ei}, v{li}, v{er}, v{x2}')
        er, x1 = x1, er
    if er != 244:
        A(f'v_mov_b32 v244, v{er}'); er, x1 = 244, 246
    A('v_lshlrev_b32 v27, 2, v26') if False else None
    A('v_and_b32 v26, 31, v0')
    A('v_lshlrev_b32 v26, 3, v26')
    A('v_lshrrev_b32 v28, 5, v0')
    A('v_mul_u32_u24 v27, 5120, v28')
    A('v_add_u32 v27, v27, v26')
    A(f's_lshl_b32 s{sA1}, s{sG}, 10')
    A(f's_lshl_b32 s{sT0}, s{sW}, 8')
    A(f's_add_u32 s{sA1}, s{sA1}, s{sT0}')
    A(f's_add_u32 s{sA1}, s{sA1}, {SE_OFF}')
    A(f's_mul_i32 s{sT0}, s{sB}, 10240')
    A(f's_add_u32 s{sT0}, s{sT0}, s{sA1}')
    A(f'buffer_store_dwordx2 v[244:245], v27, {WS}, s{sT0} offen sc1')
    A(f's_lshl_b32 s{sA2}, s{sG}, 2')
    A(f's_add_u32 s{sA2}, s{sA2}, {DBG_SF1}')
    A(f's_lshl_b32 s{sA3}, 1, s{sB}')
    set_bit(A, sA2, sA3, 29)
    A(f's_lshl_b32 s{sA4}, s{sA3}, 1')
    A(f's_sub_u32 s{sA4}, s{sA4}, 1')
    wait_bits(A, sA2, sA4, 29)
    EB = 164
    for j in range(31):
        A(f's_add_u32 s{sT0}, s{sA1}, {j*5120}')
        A(f'buffer_load_dwordx2 {v(EB+2*j,2)}, v26, {WS}, s{sT0} offen sc1')
    A(f's_lshl_b32 s{sT0}, s{sB}, 1')
    A(f'v_add_u32 v28, s{sT0}, v28')
    hr, hi = 244, 245
    A(f'v_mov_b64 v[244:245], 0')
    A('s_waitcnt vmcnt(0)')
    for j in range(31):
        A(f'v_cmp_lt_u32 vcc, {j}, v28')
        A(f'v_fma_f32 v246, v{qr}, v{hr}, v{EB+2*j}')
        A(f'v_fma_f32 v247, v{qr}, v{hi}, v{EB+2*j+1}')
        A(f'v_fma_f32 v246, -v{qi}, v{hi}, v246')
        A(f'v_fma_f32 v247, v{qi}, v{hr}, v247')
        A(f'v_cndmask_b32 v{hr}, v{hr}, v246, vcc')
        A(f'v_cndmask_b32 v{hi}, v{hi}, v247, vcc')
    A('v_bfe_u32 v26, v0, 2, 3')
    A('v_lshlrev_b32 v26, 10, v26')
    A('v_and_b32 v27, 3, v0')
    A('v_lshl_add_u32 v26, v27, 4, v26')
    A('v_lshrrev_b32 v27, 5, v0')
    A('v_lshl_add_u32 v26, v27, 9, v26')
    A(f's_mul_i32 s{sA1}, s{sB}, 327680')
    A(f's_lshl_b32 s{sT0}, s{sG}, 15')
    A(f's_add_u32 s{sA1}, s{sA1}, s{sT0}')
    A(f's_lshl_b32 s{sT0}, s{sW}, 13')
    A(f's_add_u32 s{sA1}, s{sA1}, s{sT0}')
    A(f's_add_u32 s{sA1}, s{sA1}, {HT_OFF}')
    A(f's_add_u32 s{sA4}, s{sA1}, 163840')
    pr, pi_ = hr, hi
    for i in range(64):
        A(f'v_fma_f32 v{UR+i}, v{lr}, v{pr}, v{UR+i}')
        A(f'v_fma_f32 v{UI+i}, v{lr}, v{pi_}, v{UI+i}')
        if i > 0:
            A(f'v_mul_f32 v{EB+16+(i-1)%8}, v{cr}, v{pr}')
            A(f'v_mul_f32 v{EB+24+(i-1)%8}, v{cr}, v{pi_}')
        A(f'v_fma_f32 v{UR+i}, -v{li}, v{pi_}, v{UR+i}')
        A(f'v_fma_f32 v{UI+i}, v{li}, v{pr}, v{UI+i}')
        def fin(k, r_, i_):
            A(f'v_fma_f32 v{EB+16+k%8}, -v{ci}, v{i_}, v{EB+16+k%8}')
            A(f'v_fma_f32 v{EB+24+k%8}, -v{ci}, v{r_}, -v{EB+24+k%8}')
            if k % 8 == 7:
                o = EB + 8 * ((k // 8) % 2) if False else EB
                for q in range(4):
                    A(f'v_cvt_pk_bf16_f32 v{EB+32+8*((k//8)%2)+q}, v{EB+16+2*q}, v{EB+16+2*q+1}')
                    A(f'v_cvt_pk_bf16_f32 v{EB+36+8*((k//8)%2)+q}, v{EB+24+2*q}, v{EB+24+2*q+1}')
                A(f'buffer_store_dwordx4 {v(EB+32+8*((k//8)%2),4)}, v26, {WS}, s{sA1} offen offset:{(k//8)*64} sc1')
                A(f'buffer_store_dwordx4 {v(EB+36+8*((k//8)%2),4)}, v26, {WS}, s{sA4} offen offset:{(k//8)*64} sc1')
        if i > 0: fin(i - 1, pr, pi_)
        pr, pi_ = UR + i, UI + i
    A(f'v_mul_f32 v{EB+16+7}, v{cr}, v{pr}')
    A(f'v_mul_f32 v{EB+24+7}, v{cr}, v{pi_}')
    fin(63, pr, pi_)
    A(f's_add_u32 s{sA2}, s{sA2}, {DBG_SF2 - DBG_SF1}')
    set_bit(A, sA2, sA3, 29)
    rt_stamp(A, cfg, 0, 29)
    srd(A, SRD_1, 74, M_BYTES); srd(A, SRD_2, 76, M_BYTES)
    SL = 32768
    vCV, vHV, vCR, vHR = 5, 1, 9, 21
    A(f'v_lshlrev_b32 v{vHV}, 4, v0')
    rd_addrs(A, vCR)
    A(f's_lshl_b32 s{sT0}, s{sW}, 12')
    A(f's_add_u32 s{sA4}, s{sT0}, 16384')
    A(f's_mov_b32 s{sA3}, s{sT0}')
    for ks in range(4):
        A(f'v_add_u32 v{vCR+ks}, s{sA4}, v{vCR+ks}')
        A(f'v_add_u32 v{vCR+4+ks}, 65536, v{vCR+ks}')
        A(f'v_add_u32 v{vCR+8+ks}, 131072, v{vCR+ks}')
    A('v_lshrrev_b32 v26, 5, v0')
    A(f'v_lshlrev_b32 v{vHR}, 11, v26')
    A('v_bfe_u32 v26, v0, 2, 2')
    A(f'v_lshl_add_u32 v{vHR}, v26, 4, v{vHR}')
    A('v_bfe_u32 v26, v0, 4, 1')
    A(f'v_lshl_add_u32 v{vHR}, v26, 7, v{vHR}')
    A('v_bfe_u32 v26, v0, 1, 1')
    A(f'v_lshl_add_u32 v{vHR}, v26, 6, v{vHR}')
    A('v_and_b32 v26, 1, v0')
    A(f'v_lshl_add_u32 v{vHR}, v26, 3, v{vHR}')
    A(f'v_add_u32 v{vHR+1}, 65536, v{vHR}')
    A(f'v_add_u32 v{vHR+2}, 131072, v{vHR}')
    A(f's_mul_i32 s{sA1}, s{sB}, 327680')
    A(f's_add_u32 s{sA1}, s{sA1}, s{sT0}')
    A(f's_add_u32 s{sA1}, s{sA1}, {HT_OFF}')
    A(f's_lshl_b32 s{sN}, s{sG}, 7')
    A(f's_lshl_b32 s{sT0}, s{sW}, 5')
    A(f's_add_u32 s{sN}, s{sN}, s{sT0}')
    XF, DF = 100, 132
    A('v_and_b32 v26, 31, v0')
    A('v_mul_u32_u24 v27, 1280, v26')
    A('v_lshrrev_b32 v28, 5, v0')
    A('v_lshl_add_u32 v27, v28, 4, v27')
    A(f's_mul_i32 s{sT0}, s{sB}, {128*1280}')
    A(f's_lshl_b32 s{sT1}, s{sN}, 1')
    A(f's_add_u32 s{sT0}, s{sT0}, s{sT1}')
    for tt in range(4):
        A(f's_add_u32 s{sT2}, s{sT0}, {tt*32*1280}')
        for ks in range(2):
            A(f'buffer_load_dwordx4 {v(XF+8*tt+4*ks,4)}, v27, s[{SRD_X}:{SRD_X+3}], s{sT2} offen offset:{ks*32}')
    srd(A, 52, 80, 1280)
    A('v_lshlrev_b32 v27, 1, v26')
    A(f'buffer_load_ushort v29, v27, s[52:55], s{sT1} offen')
    A('v_lshlrev_b32 v28, 3, v28')
    A('v_sub_u32 v26, v26, v28')
    A('s_waitcnt vmcnt(0)')
    A('v_lshlrev_b32 v30, 16, v29')
    for ks in range(2):
        for q in range(4):
            r_ = DF + 4 * ks + q
            A(f'v_cmp_eq_u32 vcc, {16*ks + 2*q}, v26')
            A(f'v_cndmask_b32 v{r_}, 0, v29, vcc')
            A(f'v_cmp_eq_u32 vcc, {16*ks + 2*q + 1}, v26')
            A(f'v_cndmask_b32 v{r_}, v{r_}, v30, vcc')
    for tt in range(4):
        for ks in range(2):
            d = v(ACC + 16 * tt, 16)
            A(mf(d, v(XF + 8 * tt + 4 * ks, 4), v(DF + 4 * ks, 4), '0' if ks == 0 else d))
    A(f's_mul_i32 s{sA2}, s{sN}, 1280')
    A(f's_lshl_b32 s{sT2}, 1, s{sB}')
    for g_ in range(5):
        A(f's_mov_b32 s{sT0}, {DBG_SF2 + 4*g_}')
        wait_bits(A, sT0, sT2, 29)
    stages = []
    for kc in range(20):
        slot = kc % 5
        def dma(nxt, kc=kc, slot=slot):
            g = []
            for j in range(4):
                g.append([f's_add_u32 m0, s{sA3}, {slot*SL + j*1024}', f's_add_u32 s{sT0}, s{sA1}, {kc*16384 + j*1024}',
                          f'buffer_load_dwordx4 v{vHV}, {WS}, s{sT0} offen sc1 lds'])
            sr = SRD_1 if kc < 10 else SRD_2
            for j in range(4):
                g.append([f's_add_u32 m0, s{sA4}, {slot*SL + j*1024}', f's_add_u32 s{sT0}, s{sA2}, {(kc%10)*128}',
                          f'buffer_load_dwordx4 v{vCV+j}, s[{sr}:{sr+3}], s{sT0} offen lds'])
            return g
        steps = []
        for ks in range(4):
            fb = 20 * (ks % 2)
            hb, so = slot >> 1, (slot & 1) * SL
            reads = [(f'ds_read_b128 {a(fb+16,4)}, v{vCR+4*hb+ks} offset:{so}', ('c', fb))]
            for tt in range(4):
                for rd in range(2):
                    reads.append((f'ds_read_b64_tr_b16 {a(fb+4*tt+2*rd,2)}, v{vHR+hb} offset:{so + ks*4096 + rd*1024 + tt*256}', ('h', fb, tt)))
            mfs = []
            for tt in range(4):
                d = v(ACC + 16 * tt, 16)
                mfs.append((mf(d, a(fb + 4 * tt, 4), a(fb + 16, 4), d), [('h', fb, tt)]))
            steps.append(dict(reads=reads, mf=mfs))
        stages.append(dict(dma=dma, steps=steps))
    P = Pipe(A, stages, 5, False)
    P.prologue(); P.body()
    A('v_and_b32 v26, 31, v0')
    A('v_lshlrev_b32 v26, 2, v26')
    A('v_lshrrev_b32 v27, 5, v0')
    A('v_mul_u32_u24 v27, 20480, v27')
    A('v_add_u32 v26, v26, v27')
    A(f's_mul_i32 s{sA1}, s{sB}, {128*5120}')
    A(f's_lshl_b32 s{sT0}, s{sN}, 2')
    A(f's_add_u32 s{sA1}, s{sA1}, s{sT0}')
    A(f's_add_u32 s{sA1}, s{sA1}, 2560')
    for tt in range(4):
        for rg in range(16):
            A(f's_add_u32 s{sT0}, s{sA1}, {(32*tt + 8*(rg>>2) + (rg&3))*5120}')
            A(f'buffer_store_dword v{ACC+16*tt+rg}, v26, s[{SRD_O}:{SRD_O+3}], s{sT0} offen')
    rt_stamp(A, cfg, 0, 29)

def post(A, cfg, first, stride, waitprog=True):
    A(f's_load_dwordx2 s[82:83], s[0:1], {KA["out"]}')
    A(f's_mov_b32 s{sN}, s{first}')
    A('v_lshlrev_b32 v1, 4, v0')
    A('v_lshrrev_b32 v27, 4, v0')
    A('v_and_b32 v26, 15, v0')
    A('v_mul_u32_u24 v2, 10240, v27')
    A('v_lshl_add_u32 v2, v26, 4, v2')
    A('v_mul_u32_u24 v3, 5120, v26')
    A('v_lshl_add_u32 v3, v27, 4, v3')
    A('v_mov_b32 v4, v0')
    A(f's_mul_i32 s{sT0}, s{sW}, 10240')
    A(f'v_add_u32 v5, s{sT0}, v1')
    A('s_waitcnt lgkmcnt(0)')
    srd(A, SRD_O, 82, OUT_BYTES)
    TOP = A.newlabel('ptop'); END = A.newlabel('pend')
    A.label(TOP)
    A(f's_cmp_ge_u32 s{sN}, 512')
    A(f's_cbranch_scc1 {END}')
    A(f's_lshr_b32 s{sB}, s{sN}, 3')
    A(f's_and_b32 s{sG}, s{sN}, 7')
    A(f's_mul_i32 s{sG}, s{sG}, 5')
    PF, ACC, VF = 8, 88, 0
    A(f's_mul_i32 s{sA1}, s{sB}, {VW_S}')
    A(f's_lshr_b32 s{sT0}, s{sW}, 1')
    A(f's_mul_i32 s{sT0}, s{sT0}, {VW_X}')
    A(f's_add_u32 s{sA1}, s{sA1}, s{sT0}')
    A(f's_and_b32 s{sT0}, s{sW}, 1')
    A(f's_lshl_b32 s{sT0}, s{sT0}, 13')
    A(f's_add_u32 s{sA1}, s{sA1}, s{sT0}')
    A(f's_lshl_b32 s{sT0}, s{sG}, 14')
    A(f's_add_u32 s{sA1}, s{sA1}, s{sT0}')
    A(f's_add_u32 s{sA1}, s{sA1}, {VW_OFF}')
    A(f's_lshr_b32 s{sT0}, s{sB}, 2')
    A(f's_cmp_eq_u32 s{sT0}, 0')
    A(f's_cselect_b32 s{sT2}, 2, 1')
    A(f's_mul_i32 s{sT2}, s{sT2}, 0x1010')
    A(f's_and_b32 s{sT1}, s{sT0}, 1')
    A(f's_lshl_b32 s{sT1}, s{sT1}, 4')
    A(f's_lshl_b32 s{sT2}, s{sT2}, s{sT1}')
    A(f's_lshr_b32 s{sT0}, s{sT0}, 1')
    A(f's_lshl_b32 s{sT0}, s{sT0}, 2')
    A(f's_add_u32 s{sT0}, s{sT0}, {DBG_VCNT}')
    wait_bits(A, sT0, sT2, 6)
    for t in range(5):
        for hh in range(8):
            if hh % 4 == 0: A(f's_add_u32 s{sT0}, s{sA1}, {t*16384 + hh*1024}')
            A(f'buffer_load_dwordx4 {a(40*t+4*hh,4)}, v1, {WS}, s{sT0} offen offset:{(hh%4)*1024} sc1')
    if waitprog:
        L = A.newlabel('pw'); D = A.newlabel('pwd')
        A.label(L)
        A(f'buffer_load_dwordx2 v[6:7], off, {DBG}, 0 offset:{DBG_PROG} sc1')
        A('s_waitcnt vmcnt(0)')
        A('v_and_b32 v7, 64, v7')
        A('v_max_u32 v6, v6, v7')
        A(f'v_cmp_ge_u32 vcc, s{sB}, v6')
        A(f's_cbranch_vccz {D}')
        A('s_sleep 3')
        A(f's_sub_u32 s{sBUD}, s{sBUD}, 1')
        A(f's_cbranch_scc0 {L}')
        A(f's_mov_b32 s{sBUD}, 0')
        A.label(D)
    A(f's_mul_i32 s{sA2}, s{sB}, {PX_S}')
    A(f's_lshl_b32 s{sT0}, s{sW}, 14')
    A(f's_add_u32 s{sA2}, s{sA2}, s{sT0}')
    A(f's_add_u32 s{sA2}, s{sA2}, {PX_OFF}')
    for j in range(16):
        if j % 4 == 0: A(f's_add_u32 s{sT0}, s{sA2}, {j*1024}')
        A(f'buffer_load_dwordx4 {v(PF+4*j,4)}, v1, {WS}, s{sT0} offen offset:{(j%4)*1024} sc1')
    A(f's_mul_i32 s{sA2}, s{sB}, {PXM_S}')
    A(f's_lshl_b32 s{sT0}, s{sW}, 12')
    A(f's_add_u32 s{sA2}, s{sA2}, s{sT0}')
    A(f's_add_u32 s{sA2}, s{sA2}, {PXM_OFF}')
    for j in range(4):
        A(f'buffer_load_dwordx4 {v(PF+64+4*j,4)}, v1, {WS}, s{sA2} offen offset:{j*1024} sc1')
    A(f's_mul_i32 s{sA3}, s{sB}, {T_S}')
    A(f's_mul_i32 s{sT0}, s{sW}, 81920')
    A(f's_add_u32 s{sA3}, s{sA3}, s{sT0}')
    A(f's_add_u32 s{sA3}, s{sA3}, {TP_OFF}')
    def tile_loads(t):
        A(f's_add_u32 s{sT1}, s{sG}, {t}')
        A(f's_and_b32 s{sT0}, s{sT1}, 3')
        A(f's_mul_i32 s{sT0}, s{sT0}, 2560')
        A(f's_lshr_b32 s{sT1}, s{sT1}, 2')
        A(f's_lshl_b32 s{sT1}, s{sT1}, 8')
        A(f's_add_u32 s{sT0}, s{sT0}, s{sT1}')
        A(f's_add_u32 s{sT0}, s{sT0}, s{sA3}')
        A(f'buffer_load_dwordx4 {a(40*t+32,4)}, v2, {WS}, s{sT0} offen sc1')
        A(f's_add_u32 s{sT0}, s{sT0}, 40960')
        A(f'buffer_load_dwordx4 {a(40*t+36,4)}, v2, {WS}, s{sT0} offen sc1')
    for t in range(5): tile_loads(t)
    for kk in range(10):
        A(f's_waitcnt vmcnt({28 - 2*kk if kk < 8 else 0})')
        for t in range(5):
            for qt in range(2):
                d = v(ACC + 8 * t + 4 * qt, 4)
                A(f'v_mfma_f32_16x16x32_bf16 {d}, {a(40*t+4*kk,4)}, {v(PF+8*kk+4*qt,4)}, {"0" if kk == 0 else d}')
    A('s_barrier')
    for i in range(10):
        A(f'ds_write_b128 v5, {v(ACC+4*i,4)} offset:{i*1024}')
    A('s_waitcnt lgkmcnt(0)')
    A('s_barrier')
    A(f's_lshl_b32 s{sT0}, s{sW}, 10')
    A(f'v_add_u32 v6, s{sT0}, v1')
    for k in range(3):
        for p in range(4):
            A(f'ds_read_b128 {v(PF+16*k+4*p,4)}, v6 offset:{p*10240 + k*4096}')
    A(f's_lshl_b32 s{sA1}, s{sB}, 5')
    A(f's_and_b32 s{sT0}, s{sW}, 1')
    A(f's_lshl_b32 s{sT0}, s{sT0}, 4')
    A(f's_add_u32 s{sA1}, s{sA1}, s{sT0}')
    A(f's_mul_i32 s{sA1}, s{sA1}, 5120')
    A(f's_lshr_b32 s{sT0}, s{sW}, 1')
    A(f's_add_u32 s{sT0}, s{sT0}, s{sG}')
    A(f's_lshl_b32 s{sT0}, s{sT0}, 6')
    A(f's_add_u32 s{sA1}, s{sA1}, s{sT0}')
    A(f's_cmp_lt_u32 s{sW}, 2')
    A(f's_cselect_b32 s{sA2}, s{sA1}, 0x40000000')
    A('s_waitcnt lgkmcnt(0)')
    for k in range(3):
        b = PF + 16 * k
        for r in range(4):
            A(f'v_add_f32 v{b+r}, v{b+r}, v{b+4+r}')
            A(f'v_add_f32 v{b+8+r}, v{b+8+r}, v{b+12+r}')
        for r in range(4):
            A(f'v_add_f32 v{b+r}, v{b+r}, v{b+8+r}')
        A(f'buffer_store_dwordx4 {v(b,4)}, v3, s[{SRD_O}:{SRD_O+3}], s{sA1 if k < 2 else sA2} offen offset:{k*128}')
    A(f's_add_u32 s{sN}, s{sN}, {stride}')
    A('s_waitcnt vmcnt(0)')
    rt_stamp(A, cfg, 0, 6)
    A(f's_branch {TOP}')
    A.label(END)
```

```python
from asmgen import *
from layout import *
from rec import rt_stamp, srd, Lg, SRD_WS, SRD_DBG, SRD_W1, SRD_W2, WS

SRD_X = 24
sW, sH, sR, sBLK, sT0, sT1, sT2 = 28, 29, 30, 31, 32, 33, 34
sM0W, sM0X = 35, 36
sWA, sWB = 37, 38
sXC, sXN = 39, 40
sOUT = 41
sBIT = 42
sLI, sBUD = 43, 44
sXB, sOUTB, sFIRST, sWB0 = 46, 47, 58, 59
SLOT = 40960
NS = 4
vA0, vB, vX0, vWE, vXR, vOE, vST = 1, 4, 5, 9, 13, 21, 25
ACCA, ACCB, STG = 32, 128, 224

def mf(d, a_, b_, c): return f'v_mfma_f32_32x32x16_bf16 {d}, {a_}, {b_}, {c}'

class Pipe:
    def __init__(self, A, stages, ns, loop):
        self.A, self.stages, self.ns, self.loop = A, stages, ns, loop
    def prologue(self):
        A = self.A
        for st in self.stages[:self.ns]:
            for grp in st['dma'](False):
                for t in grp: A(t)
        n_after = sum(len(st['dma'](False)) for st in self.stages[1:self.ns])
        A(f's_waitcnt vmcnt({n_after})')
        A('s_barrier')
        for t, _ in self.stages[0]['steps'][0]['reads']: A(t)
    def body(self):
        A = self.A; S = self.stages; n = len(S); NS_ = self.ns
        flat = [(si, k) for si, st in enumerate(S) for k in range(len(st['steps']))]
        vq = [('dma', i) for i in range(1, NS_) for _ in S[i]['dma'](False)]
        pend = []
        lg = Lg(A)
        lg.q = [tg for _, tg in S[0]['steps'][0]['reads']]
        for j, (si, k) in enumerate(flat):
            step = S[si]['steps'][k]
            last = j + 1 == len(flat)
            nsi, nk = flat[(j + 1) % len(flat)]
            if nk == 0 and (self.loop or not last):
                idx = max(i for i, tg in enumerate(vq) if tg == ('dma', nsi))
                hook = S[nsi].get('hook')
                if hook:
                    idx = max([idx] + [i for i, tg in enumerate(vq) if tg == 'st'])
                lg.drain()
                A(f's_waitcnt vmcnt({min(63, len(vq) - 1 - idx)})')
                vq = [tg for tg in vq[:idx + 1] if tg not in ('st', ('dma', nsi))] + vq[idx + 1:]
                A('s_barrier')
                if hook: hook()
                tgt = si + NS_
                assert not pend
                if self.loop or tgt < n:
                    pend = [(grp, ('dma', tgt % n)) for grp in S[tgt % n]['dma'](tgt >= n)]
                    nmf = sum(len(S[a_]['steps'][b_]['mf']) for a_, b_ in [flat[(j + d) % len(flat)] for d in range(len(S[nsi]['steps']))])
                    dper = max(1, nmf // len(pend)); dcnt = 0
            reads = list(S[nsi]['steps'][nk]['reads']) if (self.loop or not last) else []
            extra = list(step.get('fill', []))
            nm = len(step['mf'])
            rper = -(-len(reads) // max(1, nm - 1))
            eper = -(-len(extra) // nm)
            for i, (text, need) in enumerate(step['mf']):
                for tg in need: lg.wait(tg)
                A(text)
                for _ in range(rper):
                    if reads:
                        t, tg = reads.pop(0); lg.op(t, tg)
                if pend:
                    dcnt += 1
                    if dcnt % dper == 0:
                        grp, tg = pend.pop(0)
                        for t in grp: A(t)
                        vq.append(tg)
                for _ in range(eper):
                    if extra:
                        t = extra.pop(0); A(t)
                        if t.startswith('buffer_'): vq.append('st')
            for t in step.get('post', []):
                A(t)
                if t.startswith('buffer_'): vq.append('st')
        for grp, tg in pend:
            for t in grp: A(t)

def setup(A, vw):
    A(f's_load_dwordx2 s[4:5], s[0:1], {KA["ws"]}')
    A(f's_load_dwordx2 s[6:7], s[0:1], {KA["dbg"]}')
    A(f's_load_dwordx2 s[56:57], s[0:1], {KA["A_x"]}')
    A(f's_load_dwordx8 s[60:67], s[0:1], {KA["Wq"]}')
    A('v_lshrrev_b32 v30, 6, v0')
    A(f'v_readfirstlane_b32 s{sW}, v30')
    A('v_and_b32 v0, 63, v0')
    A('s_waitcnt lgkmcnt(0)')
    srd(A, SRD_WS, 4, WS_BYTES); srd(A, SRD_DBG, 6, 256); srd(A, SRD_X, 56, X_BYTES)
    if vw: srd(A, SRD_W1, 64, W_BYTES); srd(A, SRD_W2, 66, W_BYTES)
    else:
        A(f's_cmp_eq_u32 s{sR}, 1')
        A('s_cselect_b64 s[64:65], s[60:61], s[62:63]')
        A('s_cselect_b64 s[66:67], s[62:63], s[60:61]')
        srd(A, SRD_W1, 64, W_BYTES); srd(A, SRD_W2, 66, W_BYTES)
    for j in range(3):
        A(f'v_add_u32 v26, {64*j}, v0')
        A('v_mul_u32_u24 v27, 0xaaab, v26')
        A('v_lshrrev_b32 v27, 20, v27')
        A('v_mul_u32_u24 v28, 24, v27')
        A('v_sub_u32 v28, v26, v28')
        A('v_bfe_u32 v29, v27, 1, 1')
        A('v_lshlrev_b32 v29, 2, v29')
        A('v_xor_b32 v28, v28, v29')
        A('v_mul_u32_u24 v27, 12288, v27')
        A(f'v_lshl_add_u32 v{vA0+j}, v28, 4, v27')
    A('v_lshrrev_b32 v27, 3, v0')
    A('v_and_b32 v28, 7, v0')
    A('v_bfe_u32 v29, v27, 1, 1')
    A('v_lshlrev_b32 v29, 2, v29')
    A('v_xor_b32 v28, v28, v29')
    A('v_mul_u32_u24 v27, 1280, v27')
    A(f'v_lshl_add_u32 v{vB}, v28, 4, v27')
    for j in range(4):
        A('v_lshrrev_b32 v27, 3, v0')
        A(f'v_add_u32 v27, {8*j}, v27')
        A('v_bfe_u32 v29, v27, 1, 3')
        A('v_and_b32 v28, 7, v0')
        A('v_xor_b32 v28, v28, v29')
        if vw:
            A('v_bfe_u32 v29, v27, 2, 1')
            A('v_and_b32 v27, 3, v27')
            A('v_lshl_add_u32 v27, v29, 4, v27')
            A(f'v_add_u32 v27, {8*(j>>1) + 4*(j&1)}, v27')
        A('v_mul_u32_u24 v27, 1280, v27')
        A(f'v_lshl_add_u32 v{vX0+j}, v28, 4, v27')
    A('v_lshrrev_b32 v26, 5, v0')
    A('v_bfe_u32 v27, v0, 2, 2')
    A('v_bfe_u32 v28, v0, 4, 1')
    A('v_and_b32 v29, 3, v0')
    A('v_lshl_add_u32 v30, v26, 3, v27')
    A('v_mul_u32_u24 v30, 384, v30')
    A('v_and_b32 v31, 1, v29')
    A('v_lshl_add_u32 v30, v31, 5, v30')
    A('v_lshl_add_u32 v30, v28, 4, v30')
    A('v_lshrrev_b32 v31, 1, v29')
    A('v_lshl_add_u32 v30, v31, 3, v30')
    A('v_lshrrev_b32 v31, 1, v27')
    A('v_lshlrev_b32 v31, 6, v31')
    A(f'v_add_u32 v{vWE}, v30, v31')
    A('v_sub_u32 v30, v30, v31')
    A(f'v_add_u32 v{vWE+1}, 64, v30')
    A(f'v_add_u32 v{vWE+2}, {2*SLOT}, v{vWE}')
    A(f'v_add_u32 v{vWE+3}, {2*SLOT}, v{vWE+1}')
    A('v_lshl_add_u32 v30, v26, 4, v27')
    A('v_lshlrev_b32 v30, 7, v30')
    A('v_lshl_add_u32 v30, v28, 5, v30')
    A('v_lshl_add_u32 v30, v29, 3, v30')
    A(f'v_add_u32 v{vOE}, v30, v31')
    A('v_sub_u32 v30, v30, v31')
    A(f'v_add_u32 v{vOE+1}, 64, v30')
    A(f'v_add_u32 v{vOE+2}, {2*SLOT}, v{vOE}')
    A(f'v_add_u32 v{vOE+3}, {2*SLOT}, v{vOE+1}')
    A(f's_lshl_b32 s{sM0X}, s{sW}, 12')
    A(f's_add_u32 s{sM0X}, s{sM0X}, 24576')
    A(f's_mul_i32 s{sM0W}, s{sW}, 6144')
    A('v_and_b32 v27, 31, v0')
    A('v_bfe_u32 v28, v0, 1, 3')
    A('v_xor_b32 v28, v28, v26')
    A('v_lshlrev_b32 v27, 7, v27')
    A(f'v_add_u32 v27, s{sM0X}, v27')
    for ks in range(4):
        A(f'v_xor_b32 v29, {2*ks}, v28')
        A(f'v_lshl_add_u32 v{vXR+ks}, v29, 4, v27')
        A(f'v_add_u32 v{vXR+4+ks}, {2*SLOT}, v{vXR+ks}')
    A('v_bfe_u32 v28, v0, 4, 1')
    A(f'v_lshlrev_b32 v{vST}, {14 if vw else 10}, v28')
    A('v_and_b32 v28, 15, v0')
    A(f'v_lshl_add_u32 v{vST}, v28, 4, v{vST}')
    A(f'v_lshl_add_u32 v{vST}, v26, 9, v{vST}')
    A(f's_mul_i32 s{sWA}, s{sW}, {16*12288}')
    A(f's_mul_i32 s{sT0}, s{sH}, 384')
    A(f's_add_u32 s{sWA}, s{sWA}, s{sT0}')
    A(f's_mul_i32 s{sWB}, s{sW}, {48*1280}')
    A(f's_mul_i32 s{sT0}, s{sH}, {192*1280}')
    A(f's_add_u32 s{sWB}, s{sWB}, s{sT0}')
    A(f's_lshl_b32 s{sBIT}, 1, s{sH}')
    A(f's_mov_b32 s{sBLK}, s{sR}')

def seg_of(A, blk):
    A(f's_lshl_b32 s{sT0}, s{blk}, 2')
    A(f's_add_u32 s{sT0}, s{sT0}, s{sW}')

def vw_offsets(A):
    seg_of(A, sBLK)
    A(f's_mul_i32 s{sXC}, s{sT0}, {32*1280}')
    A(f's_add_u32 s{sXN}, s{sXC}, {3*128*1280}')
    A(f's_mul_i32 s{sOUT}, s{sT0}, {VW_S}')
    A(f's_lshr_b32 s{sT1}, s{sH}, 4')
    A(f's_mul_i32 s{sT1}, s{sT1}, {VW_X}')
    A(f's_add_u32 s{sOUT}, s{sOUT}, s{sT1}')
    A(f's_and_b32 s{sT1}, s{sH}, 15')
    A(f's_lshl_b32 s{sT1}, s{sT1}, 10')
    A(f's_add_u32 s{sOUT}, s{sOUT}, s{sT1}')
    A(f's_add_u32 s{sOUT}, s{sOUT}, {VW_OFF}')

def kq_offsets(A):
    for d, sx, so in ((0, sXC, sOUT), (3, sXB, sOUTB)):
        A(f's_add_u32 s{sT2}, s{sBLK}, {d}')
        A(f's_lshr_b32 s{sT1}, s{sT2}, 1')
        seg_of(A, sT1)
        A(f's_mul_i32 s{sx}, s{sT0}, {32*1280}')
        A(f's_mul_i32 s{so}, s{sT0}, {KQ_S}')
        A(f's_mul_i32 s{sT1}, s{sH}, {KQ_SH}')
        A(f's_add_u32 s{so}, s{so}, s{sT1}')
        A(f's_and_b32 s{sT1}, s{sT2}, 1')
        A(f's_mul_i32 s{sT1}, s{sT1}, 12288')
        A(f's_add_u32 s{so}, s{so}, s{sT1}')
    A(f's_add_u32 s{sXN}, s{sXC}, {3*128*1280}')

def proj_stages(first_slot, first_step, srdw, acc, sx=sXC):
    stages = []
    for kc in range(10):
        slot = (first_slot + kc) % NS
        def dma(nxt, kc=kc, slot=slot):
            g = []
            for j in range(6):
                g.append([f's_add_u32 m0, s{sM0W}, {slot*SLOT + j*1024}',
                          f's_add_u32 s{sT0}, s{sWA}, {(kc*64 + (j//3)*8)*12288}',
                          f'buffer_load_dwordx4 v{vA0+j%3}, s[{srdw}:{srdw+3}], s{sT0} offen lds'])
            for j in range(4):
                g.append([f's_add_u32 m0, s{sM0X}, {slot*SLOT + j*1024}',
                          f's_add_u32 s{sT0}, s{sXN if nxt else sx}, {kc*128}',
                          f'buffer_load_dwordx4 v{vX0+j}, s[{SRD_X}:{SRD_X+3}], s{sT0} offen lds'])
            return g
        steps = []
        for ks in range(4):
            fb = 28 * ((first_step + 4 * kc + ks) % 2)
            so = (slot & 1) * SLOT; hi = slot >> 1
            reads = [(f'ds_read_b128 {a(fb+24,4)}, v{vXR+4*hi+ks} offset:{so}', ('x', fb))]
            for T in range(6):
                for rd in range(2):
                    reads.append((f'ds_read_b64_tr_b16 {a(fb+4*T+2*rd,2)}, v{vWE+2*hi+(T&1)} offset:{so + (16*ks+4*rd)*384 + (T>>1)*128}', ('w', fb, T)))
            mfs = []
            for T in range(6):
                d = v(acc + 16 * T, 16)
                mfs.append((mf(d, a(fb + 4 * T, 4), a(fb + 24, 4), '0' if (kc, ks) == (0, 0) else d), [('w', fb, T)]))
            steps.append(dict(reads=reads, mf=mfs))
        stages.append(dict(dma=dma, steps=steps))
    return stages

def pack_store(acc16, stg, u, soff, imm):
    out = [f'v_cvt_pk_bf16_f32 v{stg+i}, v{acc16+8*u+2*i}, v{acc16+8*u+2*i+1}' for i in range(4)]
    out.append(f'buffer_store_dwordx4 {v(stg,4)}, v{vST}, {WS}, s{soff} offen offset:{imm} sc1')
    return out

def kq_epilogue(acc, sout, sreg):
    out = []
    for T in range(6):
        for u in range(2):
            pre = [f's_add_u32 s{sreg}, s{sout}, {(T>>1)*4096}'] if (T % 2 == 0 and u == 0) else []
            out.append(pre + pack_store(acc + 16 * T, STG + 4 * ((2 * T + u) % 8), u, sreg, u * 256 + (T & 1) * 2048))
    return out

def signal(A, vw, d=0):
    sk = A.newlabel('pub')
    A(f's_cmp_lg_u32 s{sW}, 0')
    A(f's_cbranch_scc1 {sk}')
    if vw:
        A(f's_lshr_b32 s{sT0}, s{sH}, 4')
        A(f's_lshl_b32 s{sT1}, s{sBLK}, 1')
        A(f's_add_u32 s{sT0}, s{sT0}, s{sT1}')
        A(f's_and_b32 s{sT1}, s{sT0}, 3')
        A(f's_lshl_b32 s{sT1}, s{sT1}, 3')
        A(f's_lshl_b32 s{sT1}, 1, s{sT1}')
        A(f's_and_b32 s{sT0}, s{sT0}, 0xfc')
        A(f's_add_u32 s{sT0}, s{sT0}, {DBG_VCNT}')
        A(f'v_mov_b32 v26, s{sT1}')
    else:
        A(f's_add_u32 s{sT0}, s{sBLK}, {d}')
        A(f's_lshl_b32 s{sT0}, s{sT0}, 2')
        A(f's_add_u32 s{sT0}, s{sT0}, {DBG_MASK}')
        A(f'v_mov_b32 v26, s{sBIT}')
    A('s_mov_b64 exec, 1')
    A(f'buffer_atomic_add v26, off, s[{SRD_DBG}:{SRD_DBG+3}], s{sT0} sc1')
    A('s_mov_b64 exec, -1')
    A.label(sk)

def worker(A, cfg, vw, done_label, nrep=3):
    setup(A, vw)
    rt_stamp(A, cfg, 0, 26, first=True)
    EXIT = A.newlabel('wexit'); PRO = A.newlabel('wpro')
    if vw:
        st = proj_stages(0, 0, SRD_W1, ACCA)
        VP, PACC = ACCB, ACCB + 48
        st[-1]['steps'][-1]['post'] = [f'v_cvt_pk_bf16_f32 v{VP+i}, v{ACCA+2*i}, v{ACCA+2*i+1}' for i in range(48)]
        pend_epi = []
        for c in range(10):
            slot = (10 + c) % NS
            def dma(nxt, c=c, slot=slot):
                return [[f's_add_u32 m0, s{sM0W}, {slot*SLOT + j*1024}',
                         f's_add_u32 s{sT0}, s{sWB}, {c*128 + j*8*1280}',
                         f'buffer_load_dwordx4 v{vB}, s[{SRD_W2}:{SRD_W2+3}], s{sT0} offen lds'] for j in range(6)]
            steps = []
            for q in range(4):
                ct, half = q >> 1, q & 1
                fb = 28 * (q % 2)
                so = (slot & 1) * SLOT; hi = slot >> 1
                d = v(PACC + 16 * ct, 16)
                reads, mfs = [], []
                for i in range(6):
                    kk = 6 * half + i; T, u = kk >> 1, kk & 1
                    for rd in range(2):
                        reads.append((f'ds_read_b64_tr_b16 {a(fb+4*i+2*rd,2)}, v{vOE+2*hi+ct} offset:{so + (32*T+8*u+4*rd)*128}', ('w', fb, i)))
                    mfs.append((mf(d, v(VP + 4 * kk, 4), a(fb + 4 * i, 4), '0' if kk == 0 else d), [('w', fb, i)]))
                step = dict(reads=reads, mf=mfs)
                if half == 1 and pend_epi: pass
                steps.append(step)
            st.append(dict(dma=dma, steps=steps))
        flat = [(c, q) for c in range(10) for q in range(4)]
        for n in range(20):
            epi = [f's_add_u32 s{sT2}, s{sOUT}, {n*32768}']
            for u in range(2): epi += pack_store(PACC + 16 * (n & 1), STG + 4 * ((2 * n + u) % 8), u, sT2, u * 256)
            if n < 19:
                c, q = flat[2 * (n + 1) + 1]
                st[10 + c]['steps'][q]['fill'] = epi
            else:
                st[19]['steps'][3]['post'] = epi
        st[15]['steps'][1]['post'] = [f's_cmp_lg_u32 s{sFIRST}, 0', f's_cbranch_scc1 {EXIT}']
        A(f's_lshr_b32 s{sBLK}, s{sR}, 1')
        A(f's_xor_b32 s{sFIRST}, s{sBLK}, 1')
        vw_offsets(A)
        A(f's_mov_b32 s{sWB0}, s{sWB}')
        A(f's_and_b32 s{sT1}, s{sR}, 1')
        A(f's_mul_i32 s{sT0}, s{sT1}, {5*128}')
        A(f's_add_u32 s{sWB}, s{sWB}, s{sT0}')
        A(f's_mul_i32 s{sT0}, s{sT1}, {10*32768}')
        A(f's_add_u32 s{sOUT}, s{sOUT}, s{sT0}')
    else:
        st = proj_stages(0, 0, SRD_W1, ACCA) + proj_stages(10, 40, SRD_W2, ACCB, sXB)
        epi = kq_epilogue(ACCA, sOUT, sT2)
        for i in range(6):
            st[10 + (i + 1) // 4]['steps'][(i + 1) % 4]['fill'] = epi[2 * i] + epi[2 * i + 1]
        st[19]['steps'][3]['post'] = [t for e in kq_epilogue(ACCB, sOUTB, sT2) for t in e]
        def hookA():
            signal(A, False, 0)
            rt_stamp(A, cfg, 0, 26)
            A(f's_cmp_ge_u32 s{sBLK}, 29')
            A(f's_cbranch_scc1 {EXIT}')
        st[13]['hook'] = hookA
        kq_offsets(A)
    P = Pipe(A, st, NS, True)
    A.label(PRO)
    P.prologue()
    TOP = A.newlabel('wtop')
    A.label(TOP)
    P.body()
    A('s_waitcnt vmcnt(0)')
    A('s_barrier')
    signal(A, vw, 3)
    rt_stamp(A, cfg, 0, 26)
    A(f's_add_u32 s{sBLK}, s{sBLK}, {3 if vw else 6}')
    (vw_offsets if vw else kq_offsets)(A)
    A(f's_cmp_lt_u32 s{sBLK}, {16 if vw else 32}')
    A(f's_cbranch_scc1 {TOP}')
    A('s_waitcnt lgkmcnt(0)')
    A(f's_branch {done_label}')
    A.label(EXIT)
    A('s_waitcnt vmcnt(0) lgkmcnt(0)')
    A('s_barrier')
    if vw:
        signal(A, True)
        rt_stamp(A, cfg, 0, 26)
        A(f's_mov_b32 s{sFIRST}, 0')
        A(f's_mov_b32 s{sWB}, s{sWB0}')
        A(f's_add_u32 s{sBLK}, s{sR}, 2')
        vw_offsets(A)
        A(f's_branch {PRO}')
    else:
        A(f's_branch {done_label}')

def worker_entry(A, cfg, done_label):
    A('s_and_b32 s32, s2, 7')
    A('s_sub_u32 s32, s32, 2')
    A('s_lshl_b32 s32, s32, 5')
    A('s_lshr_b32 s33, s2, 3')
    A('s_add_u32 s32, s32, s33')
    A(f's_mov_b32 s{sLI}, s32')
    A(f's_mov_b32 s{sBUD}, 0x40000')
    A('s_mul_i32 s33, s32, 0xaaab')
    A('s_lshr_b32 s33, s33, 17')
    A('s_mul_i32 s34, s33, 3')
    A(f's_sub_u32 s{sR}, s32, s34')
    A(f's_lshr_b32 s{sH}, s33, 1')
    VW = A.newlabel('role_vw')
    A('s_bitcmp1_b32 s33, 0')
    A(f's_cbranch_scc1 {VW}')
    worker(A, cfg, False, done_label)
    A.label(VW)
    worker(A, cfg, True, done_label)
```

```python
import sys, json
from asmgen import *
from layout import *
import rec, work, tailw

NAME = 'concat_heads__memory_aug_recurrent_mem_tr__ssm_conv_s5__prompt'
REF = f'cdna_kernels/{NAME}.s.ref'

def header(launches):
    lines = [l for l in open(REF).read().split('\n') if l.startswith(';') and '@launch' not in l and 'Override' not in l and 'grid=ceil' not in l]
    lines = [l for l in lines if l.startswith('; Kernarg') or l.startswith(';   offset')]
    return '\n'.join(lines + launches) + '\n.amdgcn_target "amdgcn-amd-amdhsa--gfx950"\n.text\n'

def kernel_text(name, A):
    n = A.fix_hazards()
    return f'.globl {name}\n.p2align 8\n.type {name},@function\n{name}:\n' + A.text()

def kd(name, vgpr=512, acc=256, sgpr=102):
    return (f'.p2align 6\n.amdhsa_kernel {name}\n  .amdhsa_next_free_vgpr {vgpr}\n  .amdhsa_next_free_sgpr {sgpr}\n'
            f'  .amdhsa_accum_offset {acc}\n  .amdhsa_group_segment_fixed_size 0\n  .amdhsa_kernarg_size 152\n'
            f'  .amdhsa_user_sgpr_count 2\n  .amdhsa_user_sgpr_kernarg_segment_ptr 1\n  .amdhsa_system_sgpr_workgroup_id_x 1\n'
            f'.end_amdhsa_kernel\n')

def build_rec_only(cfg):
    A = Asm()
    A('s_cmp_ge_u32 s2, 256')
    A('s_cbranch_scc1 L_exit')
    A('s_and_b32 s3, s2, 7')
    A('s_cmp_lt_u32 s3, 2')
    A('s_cbranch_scc1 L_rec')
    A.label('L_exit')
    A('s_endpgm')
    A.label('L_rec')
    rec.rec_entry(A, cfg)
    k = NAME + '_kernel'
    return header([f'; @launch grid=(256,1,1) block=(256,1,1) lds=163840']) + kernel_text(k, A) + '.section .rodata,"a"\n' + kd(k)

def build_work_only(cfg):
    A = Asm()
    A('s_cmp_ge_u32 s2, 256')
    A('s_cbranch_scc1 L_exit')
    A('s_and_b32 s3, s2, 7')
    A('s_cmp_ge_u32 s3, 2')
    A('s_cbranch_scc1 L_work')
    A.label('L_exit')
    A('s_endpgm')
    A.label('L_work')
    work.worker_entry(A, cfg, 'L_exit')
    k = NAME + '_kernel'
    return header([f'; @launch grid=(256,1,1) block=(256,1,1) lds=163840']) + kernel_text(k, A) + '.section .rodata,"a"\n' + kd(k)

def build_full(cfg):
    A = Asm()
    A('s_cmp_ge_u32 s2, 256')
    A('s_cbranch_scc1 L_exit')
    A('s_and_b32 s3, s2, 7')
    A('s_cmp_ge_u32 s3, 2')
    A('s_cbranch_scc1 L_work')
    A('s_branch L_rec')
    A.label('L_exit')
    A('s_endpgm')
    A.label('L_work')
    work.worker_entry(A, cfg, 'L_tail')
    A.label('L_tail')
    A(f's_mul_i32 s32, s{work.sLI}, 0xaaab')
    A('s_lshr_b32 s32, s32, 17')
    A('s_bitcmp1_b32 s32, 0')
    A('s_cbranch_scc1 L_post')
    A(f's_mul_i32 s{tailw.sN}, s{work.sH}, 3')
    A(f's_add_u32 s{tailw.sN}, s{tailw.sN}, s{work.sR}')
    A(f's_cmp_ge_u32 s{tailw.sN}, 80')
    A('s_cbranch_scc1 L_post')
    tailw.ssm(A, cfg)
    A.label('L_post')
    A(f's_and_b32 s32, s{work.sLI}, 31')
    A('s_mul_i32 s32, s32, 6')
    A(f's_lshr_b32 s33, s{work.sLI}, 5')
    A('s_add_u32 s45, s32, s33')
    tailw.post(A, cfg, 45, 192)
    A('s_endpgm')
    A.label('L_rec')
    rec.rec_entry(A, cfg)
    k = NAME + '_kernel'
    return header([f'; @launch grid=(256,1,1) block=(256,1,1) lds=163840']) + kernel_text(k, A) + '.section .rodata,"a"\n' + kd(k)

if __name__ == '__main__':
    mode = sys.argv[1]; out = sys.argv[2]
    cfg = json.loads(sys.argv[3]) if len(sys.argv) > 3 else {}
    txt = globals()['build_' + mode](cfg)
    open(out, 'w').write(txt)
    print(out, len(txt), 'bytes', txt.count('\n'), 'lines', txt.count('auto hazard pad'), 'pads')
```

```python
from asmgen import *
from layout import *

RIMG = 0
PIMG = 10240
QIMG = 20480
KIMG = 23552
WRES = 26624
BUF = 108544
LDS_REC = 157696

SRD_WS, SRD_DBG, SRD_W1, SRD_W2, SRD_AUX = 8, 12, 16, 20, 24
sW, sX, sHL, sH, sS, sBUD = 28, 29, 30, 31, 32, 33
sT0, sT1, sT2, sT3 = 34, 35, 36, 37
sML, sMR = 38, 39
sA, sB, sC, sD, sE, sF, sG = 40, 41, 42, 43, 44, 45, 46
sCSC = 47
sXCC = 48
sUNIT = 49
sM2 = 50
sSTP = 52
sTM = 54
vTRB, vIDX, vTRA, vP2, vAIW, vL16, vP0, vWR, vBUFR, v9, v10, v11 = range(12)
sH1, sH2, sH3 = 56, 57, 58
bD, bE, bB, bC, bML, bMR, sD2, sE2, sTP = 60, 61, 62, 63, 64, 65, 66, 67, 59
import os
if os.environ.get('NOSTREAM'):
    KQ_S = 0; VW_S = 0
CSC = 192 ** -0.5 * 1.4426950408889634

import struct
def f2u(x): return struct.unpack('<I', struct.pack('<f', x))[0]

def srd(A, d, lo, nbytes):
    A(f's_mov_b32 s{d}, s{lo}')
    A(f's_mov_b32 s{d+1}, s{lo+1}')
    A(f's_mov_b32 s{d+2}, {nbytes:#x}')
    A(f's_mov_b32 s{d+3}, 0x20000')

def lds_frags(vo):
    return ([(c, 2) for c in range(4, 10)] if vo else []) + [(c, 2) for c in range(10, 20)]
def wreg(c, t, vo=False):
    lf = lds_frags(vo)
    regs = [(c_, t_) for c_ in range(20) for t_ in range(3) if (c_, t_) not in lf]
    i = regs.index((c, t))
    return ('a', 8 * i) if i < 32 else ('v', 256 - 8 * (len(regs) - i))
def R(f, base, n): return f'{f}[{base}:{base+n-1}]'

class Lg:
    def __init__(self, A): self.A = A; self.q = []
    def op(self, text, tag=None):
        self.A(text); self.q.append(tag)
    def wait(self, tag):
        idx = [i for i, t in enumerate(self.q) if t == tag]
        if not idx: return
        n = len(self.q) - 1 - idx[-1]
        self.A(f's_waitcnt lgkmcnt({min(n, 15)})')
        self.q = self.q[len(self.q) - min(n, 15):] if n else []
    def drain(self):
        self.A('s_waitcnt lgkmcnt(0)'); self.q = []

class F:
    def __init__(self, e, text, tag=None, id=None, after=()):
        self.e, self.text, self.tag, self.id, self.after = e, text, tag, id, tuple(after)
        mn = text.split()[0]
        self.cls = 'lds' if mn.startswith('ds_') else 'valu' if mn.startswith('v_') else 'vmem' if mn.startswith('buffer_') else 'salu'

def run_stream(A, lg, items, fillers, cap=None):
    cap = cap or dict(lds=1, valu=1, vmem=1, salu=2)
    pend = sorted(fillers, key=lambda f: f.e)
    done = {}
    def issue(f, gap):
        for a_ in f.after:
            assert a_ in done, (f.text, a_)
        if f.cls == 'lds': lg.op(f.text, f.tag)
        else: A(f.text)
        if f.id is not None: done[f.id] = gap
        pend.remove(f)
    for f in [f for f in pend if f.e < 0]: issue(f, -1)
    def gap(i, slack=0):
        n = 0
        for cls in ('lds', 'valu', 'salu', 'vmem'):
            k = 0
            for f in [f for f in pend if f.cls == cls]:
                if k >= cap[cls]: break
                if f.e > i or any(a_ not in done or done[a_] >= i for a_ in f.after): break
                issue(f, i); k += 1; n += 1
        return n
    for i, (text, need) in enumerate(items):
        for tg in need:
            for f in [f for f in pend if f.tag == tg]:
                assert f.e < i, (f.text, f.e, i)
                issue(f, i - 1)
            lg.wait(tg)
        A(text)
        gap(i)
    i = len(items)
    cap = dict(lds=2, valu=2, vmem=2, salu=2)
    while pend:
        gap(i); i += 1
        assert i < 1000

def smf(acc, afr, bop):
    return f'v_smfmac_f32_16x16x64_bf16 {v(acc,4)}, {v(afr,4)}, {bop}, v{vIDX}'

def stamp(A, cfg, idx):
    if not cfg.get('stamps') or idx == 9.5: return
    A(f's_memtime s[{70+2*idx}:{71+2*idx}]')
    if idx == 0: A(f's_memrealtime s[{70+2*11}:{71+2*11}]')
    if idx == 0: A(f's_mov_b32 s{70+2*9}, s{sBUD}')
    if idx == 1: A(f's_sub_u32 s{70+2*10}, s{70+2*9}, s{sBUD}')

def rt_stamp(A, cfg, sidx, vt, first=False):
    if not cfg.get('rt'): return
    if first:
        A('s_lshl_b32 s97, s2, 8')
        A(f's_add_u32 s97, s97, {RT_OFF}')
    A('s_memrealtime s[98:99]')
    A('s_waitcnt lgkmcnt(0)')
    A(f'v_mov_b32 v{vt}, s98')
    A(f'buffer_store_dword v{vt}, off, s[{SRD_WS}:{SRD_WS+3}], s97')
    A('s_memtime s[98:99]')
    A('s_waitcnt lgkmcnt(0)')
    A(f'v_mov_b32 v{vt}, s98')
    A(f'buffer_store_dword v{vt}, off, s[{SRD_WS}:{SRD_WS+3}], s97 offset:128')
    A('s_add_u32 s97, s97, 4')

def stamp_flush(A, cfg, n, r):
    if not cfg.get('stamps'): return
    A('s_waitcnt lgkmcnt(0)')
    for i in range(12):
        A(f'v_writelane_b32 v{r}, s{70+2*i}, {i}')
    A(f'v_lshrrev_b32 v{r+1}, 2, v{vL16}')
    A(f'buffer_store_dword v{r}, v{r+1}, s[{SRD_WS}:{SRD_WS+3}], s{sSTP} offen')
    A(f's_add_u32 s{sSTP}, s{sSTP}, 256')

WS = f's[{SRD_WS}:{SRD_WS+3}]'

def retry_tail(A, tmp, L, D):
    A(f'v_cmp_eq_u32 vcc, -1, v{tmp}')
    A(f's_cbranch_vccz {D}')
    A(f's_sub_u32 s{sBUD}, s{sBUD}, 1')
    A(f's_cbranch_scc0 {L}')
    A(f's_mov_b32 s{sBUD}, 0')

def ld10(A, soff, rb, skip_first=False):
    if not skip_first: A(f'buffer_load_dwordx4 {v(rb,4)}, v{vP0}, {WS}, s{soff} offen sc1')
    A(f'buffer_load_dwordx4 {v(rb+4,4)}, v{vP0}, {WS}, s{soff} offen offset:1024 sc1')
    A(f'buffer_load_dwordx2 {v(rb+8,2)}, v{vP2}, {WS}, s{soff} offen offset:2048 sc1')

def chk10(A, rb, tmp, behind=0):
    A(f's_waitcnt vmcnt({2+behind})')
    A(f'v_max3_u32 v{tmp}, v{rb}, v{rb+1}, v{rb+2}')
    A(f's_waitcnt vmcnt({1+behind})')
    A(f'v_max3_u32 v{tmp+1}, v{rb+4}, v{rb+5}, v{rb+6}')
    A(f'v_max3_u32 v{tmp}, v{tmp}, v{rb+3}, v{rb+7}')
    A(f's_waitcnt vmcnt({behind})')
    A(f'v_max3_u32 v{tmp+1}, v{tmp+1}, v{rb+8}, v{rb+9}')
    A(f'v_max_u32 v{tmp}, v{tmp}, v{tmp+1}')

def put10(A, rb, img, first=True):
    if first: A(f'ds_write_b128 v{vP0}, {v(rb,4)} offset:{img}')
    A(f'ds_write_b128 v{vP0}, {v(rb+4,4)} offset:{img + 1024}')
    A(f'ds_write_b64 v{vP2}, {v(rb+8,2)} offset:{img + 2048}')

def ident16(A, r):
    A(f'v_bfe_u32 v{r-2}, v{vL16}, 4, 4')
    A(f'v_lshrrev_b32 v{r-1}, 8, v{vL16}')
    A(f'v_lshlrev_b32 v{r-1}, 2, v{r-1}')
    A(f'v_sub_u32 v{r-2}, v{r-2}, v{r-1}')
    A(f'v_lshlrev_b32 v{r-1}, 4, v{r-2}')
    A(f'v_mov_b32 v{r}, 0x3f80')
    A(f'v_mov_b32 v{r+1}, 0')
    A(f'v_lshlrev_b64 {v(r,2)}, v{r-1}, {v(r,2)}')
    A(f'v_cmp_gt_u32 vcc, 4, v{r-2}')
    A(f'v_cndmask_b32 v{r}, 0, v{r}, vcc')
    A(f'v_cndmask_b32 v{r+1}, 0, v{r+1}, vcc')

def fetch_m(A, cfg, lf, lr, rem, tmp, filler1):
    LL = A.newlabel('ml'); LC = A.newlabel('mlc'); LD = A.newlabel('mld')
    RL = A.newlabel('mr'); RR = A.newlabel('mrr'); D = A.newlabel('mrd')
    idn = v(tmp + 2, 2)
    ld10(A, sML, lr)
    A('s_barrier', 'local loads of all waves first')
    ld10(A, sMR, rem)
    filler1()
    A.label(LC)
    chk10(A, lr, tmp, behind=3)
    A(f'v_cmp_eq_u32 vcc, -1, v{tmp}')
    A(f's_cbranch_vccnz {LL}')
    A.label(LD)
    stamp(A, cfg, 0)
    for p in range(5):
        A(f'v_mfma_f32_16x16x16_bf16 {v(lf+4*p,4)}, {idn}, {v(lr+2*p,2)}, 0')
    def acc(p): A(f'v_mfma_f32_16x16x16_bf16 {v(lf+4*p,4)}, {idn}, {v(rem+2*p,2)}, {v(lf+4*p,4)}')
    def pack(p):
        A(f'v_cvt_pk_bf16_f32 v{lf+2*p}, v{lf+4*p}, v{lf+4*p+1}')
        A(f'v_cvt_pk_bf16_f32 v{lf+2*p+1}, v{lf+4*p+2}, v{lf+4*p+3}')
    A('s_waitcnt vmcnt(2)')
    acc(0)
    A(f'v_max3_u32 v{tmp}, v{rem}, v{rem+1}, v{rem+2}')
    acc(1)
    A('s_waitcnt vmcnt(1)')
    acc(2)
    A(f'v_max3_u32 v{tmp+1}, v{rem+4}, v{rem+5}, v{rem+6}')
    acc(3)
    A(f'v_max3_u32 v{tmp}, v{tmp}, v{rem+3}, v{rem+7}')
    A('s_waitcnt vmcnt(0)')
    acc(4)
    A(f'v_max3_u32 v{tmp+1}, v{tmp+1}, v{rem+8}, v{rem+9}')
    pack(0); pack(1)
    A(f'ds_write_b128 v{vP0}, {v(lf,4)} offset:{RIMG}')
    A(f'v_max_u32 v{tmp}, v{tmp}, v{tmp+1}')
    pack(2); pack(3)
    A(f'ds_write_b128 v{vP0}, {v(lf+4,4)} offset:{RIMG + 1024}')
    A(f'v_cmp_eq_u32 vcc, -1, v{tmp}')
    pack(4)
    A(f'ds_write_b64 v{vP2}, {v(lf+8,2)} offset:{RIMG + 2048}')
    A(f's_cbranch_vccnz {RL}')
    A.label(D)
    stamp(A, cfg, 1)
    def cold():
        A.label(LL)
        A(f's_sub_u32 s{sBUD}, s{sBUD}, 1')
        A(f's_cbranch_scc1 {LL}_t')
        ld10(A, sML, lr)
        ld10(A, sMR, rem)
        A(f's_branch {LC}')
        A.label(f'{LL}_t')
        A(f's_mov_b32 s{sBUD}, 0')
        A(f's_branch {LD}')
        A.label(RL)
        A(f's_sub_u32 s{sBUD}, s{sBUD}, 1')
        A(f's_cbranch_scc1 {RL}_t')
        ld10(A, sMR, rem)
        chk10(A, rem, tmp)
        A(f'v_cmp_eq_u32 vcc, -1, v{tmp}')
        A(f's_cbranch_vccnz {RL}')
        A(f's_branch {LD}')
        A.label(f'{RL}_t')
        A(f's_mov_b32 s{sBUD}, 0')
        A(f's_branch {D}')
    return cold

def wait_ready(A, cfg, blk_s, kq, tmpv):
    if cfg.get('noflags'): return
    L = A.newlabel('fl'); D = A.newlabel('fld'); N_ = A.newlabel('fln')
    DB = f's[{SRD_DBG}:{SRD_DBG+3}]'
    A(f's_lshl_b32 s{sT0}, s{blk_s}, 3')
    A(f's_lshl_b32 s{sM2}, s{blk_s}, 1')
    A(f's_add_u32 s{sM2}, s{sM2}, s{sX}')
    A(f's_cmp_eq_u32 s{blk_s}, 0')
    A(f's_cselect_b32 s{sM2+1}, 32, 16')
    A.label(L)
    if kq: A(f'buffer_load_dwordx2 {v(tmpv,2)}, off, {DB}, s{sT0} offset:{DBG_MASK} sc1')
    A(f'buffer_load_ubyte v{tmpv+2}, off, {DB}, s{sM2} offset:{DBG_VCNT} sc1')
    A('s_waitcnt vmcnt(0)')
    if kq:
        A(f'v_and_b32 v{tmpv}, v{tmpv}, v{tmpv+1}')
        A(f'v_readfirstlane_b32 s{sT1}, v{tmpv}')
        A(f's_bitcmp1_b32 s{sT1}, s{sH}')
        A(f's_cbranch_scc0 {N_}')
    A(f'v_readfirstlane_b32 s{sT1}, v{tmpv+2}')
    A(f's_cmp_ge_u32 s{sT1}, s{sM2+1}')
    A(f's_cbranch_scc1 {D}')
    A.label(N_)
    A('s_sleep 3')
    A(f's_sub_u32 s{sBUD}, s{sBUD}, 1')
    A(f's_cbranch_scc0 {L}')
    A(f's_mov_b32 s{sBUD}, 0')
    A.label(D)

def common_setup(A, cfg):
    A(f's_load_dwordx2 s[4:5], s[0:1], {KA["ws"]}')
    A(f's_load_dwordx2 s[6:7], s[0:1], {KA["dbg"]}')
    A(f's_load_dwordx2 s[56:57], s[0:1], {KA["mem0"]}')
    A(f's_load_dwordx8 s[60:67], s[0:1], {KA["Wq"]}')
    A(f'v_lshrrev_b32 v1, 6, v0')
    A(f'v_readfirstlane_b32 s{sW}, v1')
    A(f's_and_b32 s{sX}, s2, 7')
    A(f's_lshr_b32 s{sT0}, s2, 3')
    A(f's_and_b32 s{sHL}, s{sT0}, 15')
    A(f's_lshl_b32 s{sH}, s{sX}, 4')
    A(f's_add_u32 s{sH}, s{sH}, s{sHL}')
    A(f's_mov_b32 s{sS}, 0')
    A(f's_mov_b32 s{sBUD}, 0x10000')
    A(f's_mov_b32 s{sCSC}, {f2u(CSC):#x}')
    A(f's_getreg_b32 s{sXCC}, hwreg(HW_REG_XCC_ID)')
    A(f's_and_b32 s{sXCC}, s{sXCC}, 7')
    A('s_waitcnt lgkmcnt(0)')
    srd(A, SRD_WS, 4, WS_BYTES)
    srd(A, SRD_DBG, 6, 256)
    srd(A, SRD_AUX, 56, 8 * 640 * 2)
    A('v_mov_b32 v12, v0')
    A('v_and_b32 v13, 63, v0')
    A('v_and_b32 v14, 15, v13')
    A('v_lshrrev_b32 v15, 4, v13')
    A('v_bfe_u32 v16, v14, 1, 1')
    A('v_mul_u32_u24 v17, 0x5555, v16')
    A(f'v_add_u32 v{vIDX}, 0x8888, v17')
    A(f'v_lshlrev_b32 v{vTRA}, 8, v15')
    A('v_and_b32 v17, 3, v14')
    A(f'v_lshl_add_u32 v{vTRA}, v17, 6, v{vTRA}')
    A('v_lshrrev_b32 v17, 2, v14')
    A(f'v_lshl_add_u32 v{vTRA}, v17, 3, v{vTRA}')
    A('v_and_b32 v17, 1, v15')
    A(f'v_lshl_add_u32 v{vTRA}, v17, 5, v{vTRA}')
    A(f'v_xor_b32 v{vTRB}, 32, v{vTRA}')
    A(f'v_lshlrev_b32 v{vAIW}, 2, v12')
    A(f's_and_b32 s{sT0}, s{sW}, 1')
    A(f's_lshl_b32 s{sT0}, s{sT0}, 5')
    A(f'v_xor_b32 v{vAIW}, s{sT0}, v{vAIW}')
    A(f'v_lshlrev_b32 v{vL16}, 4, v13')
    A(f's_mul_i32 s{sT0}, s{sW}, 2560')
    A(f'v_add_u32 v{vP0}, s{sT0}, v{vL16}')
    A(f'v_lshl_add_u32 v{vP2}, v13, 3, s{sT0}')
    A(f's_lshr_b32 s{sT0}, s{sW}, 1')
    A(f's_lshl_b32 s{sT0}, s{sT0}, 14')
    A(f's_and_b32 s{sT1}, s{sW}, 1')
    A(f's_lshl_b32 s{sT1}, s{sT1}, 12')
    A(f's_add_u32 s{sT0}, s{sT0}, s{sT1}')
    A(f's_mul_i32 s{sT1}, s{sW}, 2560')
    A(f's_sub_u32 s{sT0}, s{sT0}, s{sT1}')
    A(f's_add_u32 s{sT0}, s{sT0}, {MI_OFF}')
    A(f's_lshl_b32 s{sML}, s{sX}, 15')
    A(f's_xor_b32 s{sMR}, s{sML}, 32768')
    A(f's_add_u32 s{sML}, s{sML}, s{sT0}')
    A(f's_add_u32 s{sMR}, s{sMR}, s{sT0}')
    A(f's_mul_i32 s{sT0}, s{sW}, 20480')
    A(f's_add_u32 s{sT0}, s{sT0}, {WRES}')
    A(f'v_add_u32 v{vWR}, s{sT0}, v{vL16}')
    if cfg.get('stamps'):
        A(f's_lshl_b32 s{sSTP}, s2, 2')
        A(f's_add_u32 s{sSTP}, s{sSTP}, s{sW}')
        A(f's_lshl_b32 s{sSTP}, s{sSTP}, 14')
        A(f's_add_u32 s{sSTP}, s{sSTP}, {STAMP_OFF}')

def load_weights(A, cfg, vo):
    for j in range(3):
        A(f'v_add_u32 v20, {64*j}, v13')
        A('v_mul_u32_u24 v21, 0xaaab, v20')
        A('v_lshrrev_b32 v21, 20, v21')
        A('v_mul_u32_u24 v22, 24, v21')
        A('v_sub_u32 v22, v20, v22')
        A('v_mul_u32_u24 v21, 12288, v21')
        A(f'v_lshl_add_u32 v{16+j}, v22, 4, v21')
    A(f's_mul_i32 s{sA}, s{sW}, {16*12288}')
    A(f's_mul_i32 s{sT0}, s{sH}, 384')
    A(f's_add_u32 s{sA}, s{sA}, s{sT0}')
    A('v_lshrrev_b32 v21, 3, v13')
    A('v_mul_u32_u24 v21, 1280, v21')
    A('v_and_b32 v22, 7, v13')
    A('v_lshl_add_u32 v19, v22, 4, v21')
    A(f's_mul_i32 s{sB}, s{sW}, {48*1280}')
    A(f's_mul_i32 s{sT0}, s{sH}, {192*1280}')
    A(f's_add_u32 s{sB}, s{sB}, s{sT0}')
    A(f's_mul_i32 s{sC}, s{sW}, 6144')
    A('v_lshrrev_b32 v21, 2, v14')
    A('v_lshl_add_u32 v21, v15, 3, v21')
    A('v_and_b32 v22, 3, v14')
    A('v_lshlrev_b32 v22, 3, v22')
    A(f's_lshl_b32 s{sT0}, s{sW}, 5')
    A(f'v_add_u32 v22, s{sT0}, v22')
    A('v_mul_u32_u24 v23, 384, v21')
    A('v_add_u32 v23, v23, v22')
    A('v_lshl_add_u32 v24, v21, 7, v22')
    def issue(c):
        slot = (c % 6) * 24576
        typeB = vo and c >= 10
        for j in range(6):
            A(f's_add_u32 m0, s{sC}, {slot + j*1024}')
            if typeB:
                A(f's_add_u32 s{sT0}, s{sB}, {(c-10)*128 + j*8*1280}')
                A(f'buffer_load_dwordx4 v19, s[{SRD_W2}:{SRD_W2+3}], s{sT0} offen lds')
            else:
                sr = SRD_W1 if c < 10 else SRD_W2
                A(f's_add_u32 s{sT0}, s{sA}, {((c%10)*64 + (j//3)*8)*12288}')
                A(f'buffer_load_dwordx4 v{16+j%3}, s[{sr}:{sr+3}], s{sT0} offen lds')
    A('v_lshrrev_b32 v26, 6, v12')
    A('v_lshl_add_u32 v26, v26, 4, v14')
    A('v_lshlrev_b32 v26, 1, v26')
    A('v_mul_u32_u24 v27, 2560, v15')
    A('v_add_u32 v27, v26, v27')
    for j in range(10):
        A(f'buffer_load_ushort v{32+2*j}, v27, s[{SRD_AUX}:{SRD_AUX+3}], 0 offen offset:{j*128}')
        A(f'buffer_load_ushort v{33+2*j}, v27, s[{SRD_AUX}:{SRD_AUX+3}], 0 offen offset:{j*128+1280}')
    A(f'v_add_u32 v26, 147456, v{vAIW}')
    for c in range(5): issue(c)
    for c in range(20):
        outstanding = min(20, c + 5) - c - 1
        A(f's_waitcnt vmcnt({6*outstanding}) lgkmcnt(0)')
        A('s_barrier')
        if c == 0:
            census_reg(A)
            for j in range(10):
                A(f'v_lshl_or_b32 v{32+2*j}, v{33+2*j}, 16, v{32+2*j}')
                A(f'ds_write_b32 v26, v{32+2*j} offset:{j*1024}')
        if c + 5 < 20: issue(c + 5)
        slot = (c % 6) * 24576
        typeB = vo and c >= 10
        A(f'v_add_u32 v25, {slot}, v{24 if typeB else 23}')
        for t in range(3):
            f, base = ('v', 32 + 8 * lds_frags(vo).index((c, t))) if (c, t) in lds_frags(vo) else wreg(c, t, vo)
            for rd in range(4):
                krow = 32 * (rd >> 1) + 4 * (rd & 1)
                off = (64 * t + krow) * 128 if typeB else krow * 384 + t * 128
                A(f'ds_read_b64_tr_b16 {R(f, base+2*rd, 2)}, v25 offset:{off}')
    for j in range(10): A(f'ds_read_b32 v{16+j}, v26 offset:{j*1024}')
    A('s_waitcnt lgkmcnt(0)')
    A('s_barrier')
    for j in range(10): A(f'ds_write_b32 v{vAIW}, v{16+j} offset:{RIMG + j*1024}')
    for j in range(len(lds_frags(vo))):
        A(f'ds_write_b128 v{vWR}, {v(32+8*j,4)} offset:{j*2048}')
        A(f'ds_write_b128 v{vWR}, {v(36+8*j,4)} offset:{j*2048+1024}')
    A('s_waitcnt lgkmcnt(0)')

def census_reg(A):
    skip = A.newlabel('cens')
    A(f's_cmp_lg_u32 s{sW}, 0')
    A(f's_cbranch_scc1 {skip}')
    A(f's_lshl_b32 s{sT0}, s{sXCC}, 3')
    A(f's_lshl_b64 s[{sM2}:{sM2+1}], 1, s{sT0}')
    A(f'v_mov_b32 v28, s{sM2}')
    A(f'v_mov_b32 v29, s{sM2+1}')
    A(f's_lshl_b32 s{sT0}, s{sX}, 3')
    A('s_mov_b64 exec, 1')
    A(f'buffer_atomic_add_x2 v[28:29], off, s[{SRD_DBG}:{SRD_DBG+3}], s{sT0} offset:{DBG_CENSUS} sc1')
    A('s_mov_b64 exec, -1')
    A.label(skip)

sNEAR = 69
def calibrate(A, cfg):
    sk = A.newlabel('cal')
    A(f's_or_b32 s{sT0}, s{sH}, s{sW}')
    A(f's_cmp_lg_u32 s{sT0}, 0')
    A(f's_cbranch_scc1 {sk}')
    A(f's_mov_b32 s{sA}, -1')
    A(f's_mov_b32 s{sB}, -1')
    for rep in range(3):
        for c, acc in ((0, sA), (1, sB)):
            A(f's_mov_b32 s{sT0}, {MI_OFF + NR*MI_S + c*8192 + rep*16384}')
            A(f's_memtime s[{sC}:{sC+1}]')
            A('s_waitcnt lgkmcnt(0)')
            A(f'buffer_store_dword v{vL16}, v{vAIW}, {WS}, s{sT0} offen sc1')
            A('s_waitcnt vmcnt(0)')
            A(f'buffer_load_dword v16, v{vAIW}, {WS}, s{sT0} offen sc1')
            A('s_waitcnt vmcnt(0)')
            A(f's_memtime s[{sE}:{sE+1}]')
            A('s_waitcnt lgkmcnt(0)')
            A(f's_sub_u32 s{sT1}, s{sE}, s{sC}')
            A(f's_min_u32 s{acc}, s{acc}, s{sT1}')
    A(f's_cmp_lt_u32 s{sA}, s{sB}')
    A(f's_cselect_b32 s{sT0}, 1, 2')
    if 'near' in cfg: A(f's_mov_b32 s{sT0}, {1 + cfg["near"]}')
    A(f'v_mov_b32 v16, s{sT0}')
    A('s_mov_b64 exec, 1')
    A(f'buffer_store_dword v16, off, s[{SRD_DBG}:{SRD_DBG+3}], 0 offset:{DBG_NEAR} sc1')
    if cfg.get('rt') or cfg.get('stamps'):
        A(f'v_mov_b32 v16, s{sA}'); A(f'v_mov_b32 v17, s{sB}')
        A(f'buffer_store_dwordx2 v[16:17], off, s[{SRD_DBG}:{SRD_DBG+3}], 0 offset:240 sc1')
    A('s_mov_b64 exec, -1')
    A.label(sk)

def census(A, cfg):
    L = A.newlabel('cw'); D = A.newlabel('cwd')
    A('v_mov_b32 v20, 0')
    A.label(L)
    A(f'buffer_load_dwordx4 v[16:19], v20, s[{SRD_DBG}:{SRD_DBG+3}], 0 offen offset:{DBG_CENSUS} sc1')
    A(f'buffer_load_dword v22, v20, s[{SRD_DBG}:{SRD_DBG+3}], 0 offen offset:{DBG_NEAR} sc1')
    A('s_waitcnt vmcnt(0)')
    A('v_min_u32 v21, 1, v22')
    A('v_sad_u8 v21, v16, 0, v21')
    A('v_sad_u8 v21, v17, 0, v21')
    A('v_sad_u8 v21, v18, 0, v21')
    A('v_sad_u8 v21, v19, 0, v21')
    A(f'v_readfirstlane_b32 s{sT0}, v21')
    A(f's_cmp_eq_u32 s{sT0}, 65')
    A(f's_cbranch_scc1 {D}')
    A('s_sleep 4')
    A(f's_sub_u32 s{sBUD}, s{sBUD}, 1')
    A(f's_cbranch_scc0 {L}')
    A(f's_mov_b32 s{sBUD}, 0')
    A.label(D)
    A(f'v_readfirstlane_b32 s{sNEAR}, v22')
    A(f's_and_b32 s{sNEAR}, s{sNEAR}, 2')
    A(f's_lshl_b32 s{sNEAR}, s{sNEAR}, 12')
    A(f's_add_u32 s{sMR}, s{sMR}, s{sNEAR}')
    A(f's_xor_b32 s{sNEAR}, s{sNEAR}, 8192')
    A(f's_add_u32 s{sML}, s{sML}, s{sNEAR}')
    A(f'v_readfirstlane_b32 s{sA}, v16')
    A(f'v_readfirstlane_b32 s{sB}, v17')
    A(f'v_readfirstlane_b32 s{sC}, v18')
    A(f'v_readfirstlane_b32 s{sD}, v19')
    A(f's_cmp_eq_u32 s{sX}, 0')
    A(f's_cselect_b32 s{sM2}, s{sA}, s{sC}')
    A(f's_cselect_b32 s{sM2+1}, s{sB}, s{sD}')
    A(f's_lshl_b32 s{sT0}, s{sXCC}, 3')
    A(f's_lshr_b64 s[{sM2}:{sM2+1}], s[{sM2}:{sM2+1}], s{sT0}')
    A(f's_and_b32 s{sT0}, s{sM2}, 0xff')
    A(f's_cmp_eq_u32 s{sT0}, {32 if not cfg.get("forceslow") else 77}')

def ring(A, dst, base, ahead, stride):
    if ahead:
        A(f's_add_u32 s{sT0}, s{sS}, {ahead}')
        A(f's_and_b32 s{sT0}, s{sT0}, {NR-1}')
    else:
        A(f's_and_b32 s{sT0}, s{sS}, {NR-1}')
    A(f's_mul_i32 s{sT0}, s{sT0}, {stride}')
    A(f's_add_u32 s{dst}, s{base}, s{sT0}')

def zero(A, base, n):
    i = base
    while i < base + n:
        if i % 2 == 0 and i + 1 < base + n:
            A(f'v_mov_b64 {v(i,2)}, 0'); i += 2
        else:
            A(f'v_mov_b32 v{i}, 0'); i += 1

def atr(e, dst, off, tag):
    return [F(e, f'ds_read_b64_tr_b16 {v(dst+2*u,2)}, v{(vTRA, vTRB)[u]} offset:{off}', tag) for u in range(2)]

def wfrag_fill(j, slot, e):
    return [F(e, f'ds_read_b128 {v(slot,4)}, v{vWR} offset:{j*2048}', ('W', j)),
            F(e, f'ds_read_b128 {v(slot+4,4)}, v{vWR} offset:{j*2048+1024}', ('W', j))]

KACC, QAW, QWW, PRE, QACC, PXR = 12, 24, 40, 64, 100, 64
DUMP = LDS_REC
NT = os.environ.get('NT', ' nt')
VWD = int(os.environ.get('VWD', '1'))
LINK = [1, 3, 5, 7, 8, 9]

def kx_dst(j):
    step, kt = j >> 1, j & 1
    return PRE + 16 * (step >> 1) + 8 * kt + 4 * (step & 1)

def qk_bop(ph, k, t, slot):
    if ph == 1 and t == 2: return v(QWW + 8 * slot, 8)
    f, b = wreg(10 * ph + k, t)
    return R(f, b, 8)

def qk_remote(A, lg, cfg):
    order = [(0, 0), (0, 1)]
    for j in range(8): order += [(0, j + 2), (1, j)]
    order += [(1, 8), (1, 9)]
    items, kend = [], {}
    for ph, k in order:
        for t in range(3):
            need = [('A', k)] if (ph, t) == (0, 0) else []
            if (ph, t) == (1, 2): need.append(('W', k))
            items.append((smf((QACC if ph == 0 else KACC) + 4 * t, QAW + 4 * (k % 4), qk_bop(ph, k, t, k % 3)), need))
        if ph == 1: kend[k] = len(items) - 1
    fl = []
    for k in range(10):
        fl += atr(-1 if k < 3 else (0 if k == 3 else kend[k - 4]), QAW + 4 * (k % 4), RIMG + k * 1024, ('A', k))
        fl += wfrag_fill(k, QWW + 8 * (k % 3), kend[k - 3] + 1 if k >= 3 else 2 + 2 * k)
    fl.append(F(-1, f's_mov_b32 m0, {DUMP}'))
    fl.append(F(-1, f'v_lshlrev_b32 v{QWW+23}, 3, v{vL16}'))
    fl.append(F(-1, f'buffer_load_dword v{QWW+23}, {WS}, s{sH1} offen sc1 lds'))
    fl.append(F(1, f'buffer_load_dword v{QWW+23}, {WS}, s{sH2} offen sc1 lds'))
    for t in range(3):
        b = QACC + 4 * t
        fl.append(F(52 + t, f'v_add_f32 v{b}, v{b}, v{b+2}'))
        fl.append(F(52 + t, f'v_add_f32 v{b+1}, v{b+1}, v{b+3}', id=('a', t)))
    for t in range(3):
        b = QACC + 4 * t
        fl.append(F(55, f'v_cvt_pk_bf16_f32 v{b}, v{b}, v{b+1}', id=('c', t), after=[('a', t)]))
        fl.append(F(55, f'ds_write_b32 v{vAIW}, v{b} offset:{QIMG + t*1024}', id=('w', t), after=[('c', t)]))
    run_stream(A, lg, items, fl, cap=dict(lds=1, valu=2, vmem=1, salu=2))

def qk_role(A, cfg):
    A.comment('==== QK role ====')
    srd(A, SRD_W1, 60, W_BYTES); srd(A, SRD_W2, 62, W_BYTES)
    A(f'v_add_u32 v{vBUFR}, {BUF}, v{vL16}')
    A(f's_lshl_b32 s{sT0}, s{sW}, 8')
    A(f'v_lshlrev_b32 v{v9}, 4, v14')
    A(f'v_lshl_add_u32 v{v9}, v15, 2, v{v9}')
    A(f'v_add_u32 v{v9}, s{sT0}, v{v9}')
    A('v_lshrrev_b32 v16, 2, v14')
    A('v_lshl_add_u32 v16, v15, 3, v16')
    A('v_and_b32 v17, 1, v14')
    A('v_lshlrev_b32 v17, 3, v17')
    A(f'v_lshl_add_u32 v{v10}, v16, 4, v17')
    A('v_cmp_gt_u32 vcc, 8, v14')
    A('v_mov_b32 v16, 0x40000000')
    A(f'v_cndmask_b32 v{v11}, v16, v{vAIW}, vcc')
    sk0 = A.newlabel('v11')
    A(f's_cmp_eq_u32 s{sW}, 0')
    A(f's_cbranch_scc1 {sk0}')
    A('v_lshlrev_b32 v17, 4, v14')
    A('v_lshl_add_u32 v17, v15, 3, v17')
    A('v_cmp_gt_u32 vcc, 2, v15')
    A(f'v_cndmask_b32 v{v11}, v16, v17, vcc')
    A.label(sk0)
    def p_offsets():
        A(f's_mul_i32 s{sD}, s{sX}, 10240')
        A(f's_add_u32 s{sD}, s{sD}, {PI_OFF}')
        A(f's_lshr_b32 s{sT0}, s{sHL}, 1')
        A(f's_lshl_b32 s{sT0}, s{sT0}, 8')
        A(f's_add_u32 s{sE}, s{sD}, s{sT0}')
        A(f's_add_u32 s{sE}, s{sE}, 8192')
        A(f's_lshr_b32 s{sT0}, s{sHL}, 1')
        A(f's_xor_b32 s{sT0}, s{sT0}, s{sHL}')
        A(f's_and_b32 s{sT0}, s{sT0}, 1')
        A(f's_lshl_b32 s{sT0}, s{sT0}, 5')
        A(f's_add_u32 s{sE}, s{sE}, s{sT0}')
        A(f's_lshl_b32 s{sT0}, s{sHL}, 9')
        A(f's_add_u32 s{sD}, s{sD}, s{sT0}')
    p_offsets()
    sk = A.newlabel('qkclr')
    A(f's_cmp_lg_u32 s{sW}, 0')
    A(f's_cbranch_scc1 {sk}')
    vSENT = 16
    A('v_mov_b32 v16, -1')
    for st in range(2):
        A(f's_add_u32 s{sT0}, s{sD}, {st*PI_S}')
        A(f's_add_u32 s{sT1}, s{sE}, {st*PI_S}')
        A(f'buffer_store_dword v{vSENT}, v{vAIW}, {WS}, s{sT0} offen sc1')
        A(f'buffer_store_dword v{vSENT}, v{vAIW}, {WS}, s{sT0} offen offset:256 sc1')
        A(f'buffer_store_dword v{vSENT}, v{v11}, {WS}, s{sT1} offen sc1')
    A.label(sk)
    load_weights(A, cfg, vo=False)
    rt_stamp(A, cfg, 0, 24)
    calibrate(A, cfg)
    census(A, cfg)
    A(f's_cselect_b32 s{sG}, 1, 0')
    p_offsets()
    for d_, s_ in ((bD, sD), (bE, sE), (bML, sML), (bMR, sMR)): A(f's_mov_b32 s{d_}, s{s_}')
    qk_rings(A)
    A(f's_mul_i32 s{sA}, s{sH}, {KQ_SH}')
    A(f's_add_u32 s{sA}, s{sA}, {KQ_OFF}')
    A(f's_lshl_b32 s{sB}, s{sH}, 11')
    A(f's_sub_u32 s{sT0}, s{sW}, 1')
    A(f's_lshl_b32 s{sT1}, s{sT0}, 10')
    A(f's_add_u32 s{sB}, s{sB}, s{sT1}')
    A(f's_add_u32 s{sB}, s{sB}, {PX_OFF}')
    A(f's_lshr_b32 s{sC}, s{sH}, 2')
    A(f's_lshl_b32 s{sC}, s{sC}, 11')
    A(f's_add_u32 s{sC}, s{sC}, s{sT1}')
    A(f's_and_b32 s{sT0}, s{sH}, 3')
    A(f's_lshl_b32 s{sT0}, s{sT0}, 8')
    A(f's_add_u32 s{sC}, s{sC}, s{sT0}')
    A(f's_add_u32 s{sC}, s{sC}, {PXM_OFF}')
    A(f's_lshl_b32 s{sF}, 1, s{sH}')
    A(f's_lshl_b32 s{sT0}, s{sX}, 4')
    A(f's_lshl_b32 s{sH3}, 0xffff, s{sT0}')
    A(f's_mul_i32 s{sH1}, s{sX}, {VW_X}')
    A(f's_mul_i32 s{sT0}, s{sHL}, 40960')
    A(f's_add_u32 s{sH1}, s{sH1}, s{sT0}')
    A(f's_lshl_b32 s{sT0}, s{sW}, 13')
    A(f's_add_u32 s{sH1}, s{sH1}, s{sT0}')
    A(f's_add_u32 s{sH1}, s{sH1}, {VW_OFF + VWD*VW_S}')
    A(f's_add_u32 s{sH2}, s{sA}, s{sT0}')
    A(f's_add_u32 s{sH2}, s{sH2}, {(KQ_S - 8192) & 0xffffffff}')
    A(f's_add_u32 s{sT0}, s{sH1}, {4*8192}')
    A(f's_cmp_eq_u32 s{sW}, 0')
    A(f's_cselect_b32 s{sH2}, s{sT0}, s{sH2}')
    A(f's_mov_b32 s{sTP}, {KQ_S}')
    A(f's_cselect_b32 s{sTP}, {VW_S}, s{sTP}')
    A(f's_cmp_lt_u32 s{sW}, {cfg.get("n2", 1)}')
    A(f's_cselect_b32 s{sH2}, s{sH2}, 0x40000000')
    A(f's_sub_u32 s{sT0}, s{sW}, 1')
    A(f's_cmp_lt_u32 s{sT0}, 2')
    A(f's_cselect_b32 s{bB}, s{sB}, 0x40000000')
    A(f's_cselect_b32 s{sUNIT}, s{sC}, 0x40000000')
    A(f's_mov_b32 s{sB}, 0x40000000')
    A(f's_mov_b32 s{sC}, 0x40000000')
    sk = A.newlabel('qkpre')
    A(f's_cmp_lg_u32 s{sW}, 0')
    A(f's_cbranch_scc1 {sk}')
    wait_ready(A, cfg, sS, True, 16)
    A(f's_mov_b32 s{sT2}, {BUF}')
    kq_dma(A)
    A('s_waitcnt vmcnt(0)')
    A.label(sk)
    zero(A, KACC, 12); zero(A, QACC, 12)
    A('s_barrier')
    kx_early(A)
    A('s_waitcnt lgkmcnt(0)')
    rt_stamp(A, cfg, 0, 24)
    slow = A.newlabel('qkslow')
    A(f's_cmp_eq_u32 s{sG}, 0')
    A(f's_cbranch_scc1 {slow}')
    qk_loop(A, cfg, '')
    A.label(slow)
    qk_loop(A, cfg, ' sc1')

def done_count(A):
    sk = A.newlabel('dn')
    A(f's_cmp_lg_u32 s{sW}, 0')
    A(f's_cbranch_scc1 {sk}')
    A('v_mov_b32 v24, 1')
    A('s_mov_b64 exec, 1')
    A(f'buffer_atomic_add v24, off, s[{SRD_DBG}:{SRD_DBG+3}], 0 offset:{DBG_PROG+4} sc1')
    A('s_mov_b64 exec, -1')
    A.label(sk)

def kx_early(A):
    sk = A.newlabel('kxe')
    A(f's_cmp_lg_u32 s{sW}, 0')
    A(f's_cbranch_scc1 {sk}')
    for j in range(12):
        if kx_dst(j) < QACC: A(f'ds_read_b128 {v(kx_dst(j),4)}, v{vBUFR} offset:{j*1024}')
    A.label(sk)

def qk_rings(A):
    ring(A, sD, bD, 0, PI_S); ring(A, sE, bE, 0, PI_S)
    ring(A, sD2, bD, 2, PI_S); ring(A, sE2, bE, 2, PI_S)
    ring(A, sML, bML, 0, MI_S); ring(A, sMR, bMR, 0, MI_S)

def kq_dma(A):
    for j in range(6):
        A(f's_add_u32 m0, s{sT2}, {j*4096}')
        A(f's_add_u32 s{sT0}, s{sA}, {j*4096}')
        for i in range(4):
            A(f'buffer_load_dwordx4 v{vL16}, {WS}, s{sT0} offen offset:{i*1024} sc1 lds')
    A(f's_add_u32 s{sA}, s{sA}, {KQ_S}')

def rowred(A, op, regs):
    for sh in (8, 4, 2, 1):
        for r in regs:
            A(f'{op}_dpp v{r}, v{r}, v{r} row_ror:{sh} row_mask:0xf bank_mask:0xf')

def qk_loop(A, cfg, ST):
    lg = Lg(A)
    TOP = A.newlabel('qkloop'); END = A.newlabel('qkend')
    A.label(TOP)
    A('s_barrier', 'B1')
    stamp(A, cfg, 2)
    qk_remote(A, lg, cfg)
    stamp(A, cfg, 3)
    for t in range(3):
        b = KACC + 4 * t
        A(f'v_add_f32 v{b}, v{b}, v{b+2}')
        A(f'v_add_f32 v{b+1}, v{b+1}, v{b+3}')
    for t in range(3):
        b = KACC + 4 * t
        A(f'v_cvt_pk_bf16_f32 v{QAW+t}, v{b}, v{b+1}')
    for t in range(3):
        lg.op(f'ds_write_b32 v{v9}, v{QAW+t} offset:{KIMG + t*1024}')
    zero(A, KACC, 12)
    lg.drain()
    A('s_barrier', 'B3')
    stamp(A, cfg, 4)
    WX = A.newlabel('qkwx'); W3 = A.newlabel('qkw3'); JOIN = A.newlabel('qkjoin')
    A(f's_cmp_lg_u32 s{sW}, 0')
    A(f's_cbranch_scc1 {WX}')
    for k3 in range(3):
        for u in range(2):
            lg.op(f'ds_read_b64_tr_b16 {v(QAW+4*k3+2*u,2)}, v{(vTRA, vTRB)[u]} offset:{QIMG + k3*1024}', ('q', k3))
    for j in range(12):
        if kx_dst(j) >= QACC: lg.op(f'ds_read_b128 {v(kx_dst(j),4)}, v{vBUFR} offset:{j*1024}', ('q', 2))
    def kmrd(k3):
        for rd in range(4):
            lg.op(f'ds_read_b64_tr_b16 {v(QWW+8*k3+2*rd,2)}, v{v10} offset:{KIMG + k3*1024 + (rd>>1)*512 + (rd&1)*64}', ('k', k3))
    kmrd(0)
    cs = QAW + 12
    A(f'v_mov_b32 v{cs}, s{sCSC}')
    A(f'v_xor_b32 v{QAW+15}, 32, v{vAIW}')
    for k3 in range(3):
        lg.wait(('q', k3))
        for kt in range(2):
            A(smf(KACC + 4 * kt, QAW + 4 * k3, v(PRE + 16 * k3 + 8 * kt, 8)))
        if k3 < 2: kmrd(k3 + 1)
    a0, a1, am = KACC, KACC + 4, KACC + 8
    for k3 in range(3):
        lg.wait(('k', k3))
        A(smf(am, QAW + 4 * k3, v(QWW + 8 * k3, 8)))
    stamp(A, cfg, 5)
    m0_, m1_ = QAW + 13, QAW + 14
    for b in (a0, a1):
        A(f'v_add_f32 v{b}, v{b}, v{b+2}')
        A(f'v_add_f32 v{b+1}, v{b+1}, v{b+3}')
    A(f'v_add_f32 v{am}, v{am}, v{am+2}')
    A(f'v_add_f32 v{am+1}, v{am+1}, v{am+3}')
    A(f'v_max3_f32 v{m0_}, v{a0}, v{a1}, v{am}')
    A(f'v_max3_f32 v{m1_}, v{a0+1}, v{a1+1}, v{am+1}')
    rowred(A, 'v_max_f32', (m0_, m1_))
    A(f'v_mul_f32 v{m0_}, v{cs}, v{m0_}')
    A(f'v_mul_f32 v{m1_}, v{cs}, v{m1_}')
    for b in (a0, a1, am):
        A(f'v_fma_f32 v{b}, v{b}, v{cs}, -v{m0_}')
        A(f'v_fma_f32 v{b+1}, v{b+1}, v{cs}, -v{m1_}')
    for b in (am, a0, a1):
        A(f'v_exp_f32 v{b}, v{b}')
        A(f'v_exp_f32 v{b+1}, v{b+1}')
    A(f'v_add_f32 v{m0_}, v{a0}, v{a1}')
    A(f'v_add_f32 v{m1_}, v{a0+1}, v{a1+1}')
    A(f'v_add_f32_dpp v{m0_}, v{am}, v{m0_} quad_perm:[0,1,2,3] row_mask:0xf bank_mask:0x3')
    A(f'v_add_f32_dpp v{m1_}, v{am+1}, v{m1_} quad_perm:[0,1,2,3] row_mask:0xf bank_mask:0x3')
    rowred(A, 'v_add_f32', (m0_, m1_))
    A(f'v_rcp_f32 v{m0_}, v{m0_}')
    A(f'v_rcp_f32 v{m1_}, v{m1_}')
    for b in (a0, a1, am):
        A(f'v_mul_f32 v{b}, v{b}, v{m0_}')
        A(f'v_mul_f32 v{b+1}, v{b+1}, v{m1_}')
    for b in (a0, a1, am):
        A(f'v_cvt_pk_bf16_f32 v{b}, v{b}, v{b+1}')
    for b, off, vo_, so in ((a0, 0, vAIW, sD), (a1, 256, QAW + 15, sD), (am, 0, v11, sE)):
        A(f'buffer_store_dword v{b}, v{vo_}, {WS}, s{so} offen offset:{off}{ST}')
    stamp(A, cfg, 8)
    vSENT = cs
    A(f'v_mov_b32 v{vSENT}, -1')
    A(f'buffer_store_dword v{vSENT}, v{vAIW}, {WS}, s{sD2} offen{ST}')
    A(f'buffer_store_dword v{vSENT}, v{vAIW}, {WS}, s{sD2} offen offset:256{ST}')
    A(f'buffer_store_dword v{vSENT}, v{v11}, {WS}, s{sE2} offen{ST}')
    npg = A.newlabel('npg')
    A(f's_cmp_lg_u32 s{sH}, 0')
    A(f's_cbranch_scc1 {npg}')
    A(f's_max_u32 s{sT0}, s{sS}, 2')
    A(f's_sub_u32 s{sT0}, s{sT0}, 2')
    A(f'v_mov_b32 v{QWW}, s{sT0}')
    A('s_mov_b64 exec, 1')
    A(f'buffer_store_dword v{QWW}, off, s[{SRD_DBG}:{SRD_DBG+3}], 0 offset:{DBG_PROG} sc1')
    A('s_mov_b64 exec, -1')
    A.label(npg)
    A(f's_cmp_eq_u32 s{sS}, 63')
    A(f's_cbranch_scc1 {JOIN}')
    A(f's_add_u32 s{sT3}, s{sS}, 1')
    A(f's_and_b32 s{sT2}, s{sT3}, 1')
    A(f's_mul_i32 s{sT2}, s{sT2}, 24576')
    A(f's_add_u32 s{sT2}, s{sT2}, {BUF}')
    kq_dma(A)
    A(f's_branch {JOIN}')
    A.label(WX)
    A(f's_cmp_eq_u32 s{sW}, 3')
    A(f's_cbranch_scc1 {W3}')
    x_softmax(A, cfg)
    A(f's_branch {JOIN}')
    A.label(W3)
    A(f's_add_u32 s{sT3}, s{sS}, 2')
    A(f's_and_b32 s{sT0}, s{sT3}, 0x43')
    A(f's_cmp_lg_u32 s{sT0}, 0')
    A(f's_cbranch_scc1 {JOIN}')
    A(f's_lshr_b32 s{sT2}, s{sT3}, 2')
    wait_ready(A, cfg, sT2, True, 12)
    A.label(JOIN)
    stamp(A, cfg, 6)
    stamp_flush(A, cfg, 9, QWW)
    lg.q = []
    A(f's_mov_b32 s{sB}, s{bB}')
    A(f's_mov_b32 s{sC}, s{sUNIT}')
    A(f's_cmp_eq_u32 s{sS}, 63')
    A(f's_cbranch_scc1 {END}')
    A(f's_add_u32 s{sS}, s{sS}, 1')
    qk_rings(A)
    def f1():
        zero(A, KACC + 4, 8); zero(A, QACC, 12); ident16(A, KACC + 2)
        A(f'v_xor_b32 v{vBUFR}, {BUF ^ (BUF+24576)}, v{vBUFR}')
        A(f's_add_u32 s{bB}, s{bB}, {PX_S}')
        A(f's_add_u32 s{sUNIT}, s{sUNIT}, {PXM_S}')
        A(f's_add_u32 s{sH1}, s{sH1}, {VW_S}')
        A(f's_add_u32 s{sH2}, s{sH2}, s{sTP}')
    def w0():
        A(f'buffer_store_dwordx4 {v(PXR,4)}, v{vL16}, {WS}, s{sB} offen sc1')
        A(f'buffer_store_dwordx2 {v(PXR+4,2)}, v{v11}, {WS}, s{sC} offen sc1')
    if True:
        f1()
        NP = A.newlabel('np'); L = A.newlabel('pr')
        A('s_waitcnt vmcnt(0)')
        kx_early(A)
        A(f's_cmp_lg_u32 s{sW}, 3')
        A(f's_cbranch_scc1 {NP}')
        A(f's_lshl_b32 s{sT1}, s{sX}, 8')
        A(f's_add_u32 s{sT1}, s{sT1}, {TF_OFF}')
        A(f'v_bfe_u32 v{QAW+1}, v{vL16}, 2, 6')
        A(f'v_and_b32 v{QAW+1}, 60, v{QAW+1}')
        for _ in range(2):
            A(f'buffer_load_dword v{QAW}, v{QAW+1}, {WS}, s{sT1} offen sc1')
            A('s_sleep 1')
        A.label(L)
        A(f'buffer_load_dword v{QAW}, v{QAW+1}, {WS}, s{sT1} offen sc1')
        A('s_waitcnt vmcnt(2)')
        A(f'v_cmp_gt_u32 vcc, s{sS}, v{QAW}')
        A(f's_cbranch_vccz {NP}_d')
        A(f's_sub_u32 s{sBUD}, s{sBUD}, 1')
        A(f's_cbranch_scc0 {L}')
        A(f's_mov_b32 s{sBUD}, 0')
        A.label(f'{NP}_d')
        if cfg.get('qkdelay', 2): A(f's_sleep {cfg.get("qkdelay", 2)}')
        A.label(NP)
        A('s_barrier', 'B0')
        stamp(A, cfg, 7)
        cold = fetch_m(A, cfg, QAW, QAW + 20, QAW + 30, KACC, lambda: None)
    zero(A, KACC, 4)
    w0()
    A('s_waitcnt lgkmcnt(0)')
    A(f's_branch {TOP}')
    cold()
    A.label(END)
    A(f'buffer_store_dwordx4 {v(PXR,4)}, v{vL16}, {WS}, s{sB} offen sc1')
    A(f'buffer_store_dwordx2 {v(PXR+4,2)}, v{v11}, {WS}, s{sC} offen sc1')
    A('s_waitcnt vmcnt(0)')
    A('s_barrier')
    done_count(A)
    rt_stamp(A, cfg, 0, 24)
    A('s_endpgm')

def x_softmax(A, cfg):
    lg = Lg(A)
    KM, QF, KX, SX, TMP = 40, 64, 12, 88, 100
    n_, g_, ad = TMP, TMP + 1, TMP + 2
    if cfg.get('xsleep', 3): A(f's_sleep {cfg.get("xsleep", 3)}')
    A(f'v_bfe_u32 v{n_}, v{vL16}, 4, 4')
    A(f'v_lshrrev_b32 v{g_}, 8, v{vL16}')
    A(f's_lshl_b32 s{sT0}, s{sW}, 10')
    A(f's_add_u32 s{sT0}, s{sT0}, {12288 - 1024}')
    A(f'v_add_u32 v{ad}, s{sT0}, v{vBUFR}')
    for st in range(6):
        lg.op(f'ds_read_b128 {v(QF+4*st,4)}, v{ad} offset:{st*2048}', ('q', st))
    for k3 in range(3):
        for rd in range(4):
            lg.op(f'ds_read_b64_tr_b16 {v(KM+8*k3+2*rd,2)}, v{v10} offset:{KIMG + k3*1024 + (rd>>1)*512 + (rd&1)*64}', ('k', 2*k3 + (rd >> 1)))
    A(f'v_sub_u32 v{ad+1}, v{vBUFR}, v{vL16}')
    A(f'v_lshrrev_b32 v{ad+2}, 3, v{n_}')
    A(f'v_lshl_add_u32 v{ad+1}, v{ad+2}, 10, v{ad+1}')
    A(f'v_bfe_u32 v{ad+2}, v{n_}, 2, 1')
    A(f'v_lshl_add_u32 v{ad+1}, v{ad+2}, 7, v{ad+1}')
    A(f'v_and_b32 v{ad+2}, 3, v{n_}')
    A(f'v_lshl_add_u32 v{ad+1}, v{ad+2}, 4, v{ad+1}')
    A(f'v_lshl_add_u32 v{ad+1}, v{g_}, 8, v{ad+1}')
    for st in range(6):
        lg.wait(('q', st)); lg.wait(('k', st))
        c = '0' if st == 0 else v(SX + 8, 4)
        A(f'v_mfma_f32_16x16x32_bf16 {v(SX+8,4)}, {v(KM+4*st,4)}, {v(QF+4*st,4)}, {c}')
    for kt in range(2):
        for st in range(6):
            lg.op(f'ds_read_b128 {v(KX+4*st,4)}, v{ad+1} offset:{st*2048 + kt*64}', ('x', kt, st))
        for st in range(6):
            lg.wait(('x', kt, st))
            c = '0' if st == 0 else v(SX + 4 * kt, 4)
            A(f'v_mfma_f32_16x16x32_bf16 {v(SX+4*kt,4)}, {v(KX+4*st,4)}, {v(QF+4*st,4)}, {c}')
    d_ = ad
    A(f's_lshl_b32 s{sT0}, s{sW}, 4')
    A(f's_sub_u32 s{sT0}, s{sT0}, 16')
    A(f'v_lshlrev_b32 v{d_}, 3, v{g_}')
    A(f'v_sub_u32 v{d_}, v{n_}, v{d_}')
    A(f'v_add_u32 v{d_}, s{sT0}, v{d_}')
    ninf = ad + 1
    A(f'v_mov_b32 v{ninf}, 0xff800000')
    for j in range(8):
        A(f'v_cmp_le_i32 vcc, {j}, v{d_}')
        A(f'v_cndmask_b32 v{SX+j}, v{ninf}, v{SX+j}, vcc')
    A(f'v_cmp_gt_u32 vcc, 2, v{g_}')
    for j in range(4):
        A(f'v_cndmask_b32 v{SX+8+j}, v{ninf}, v{SX+8+j}, vcc')
    mx, t2 = ad + 2, ad + 3
    A(f'v_max3_f32 v{mx}, v{SX}, v{SX+1}, v{SX+2}')
    for j in range(3, 11, 2):
        A(f'v_max3_f32 v{mx}, v{mx}, v{SX+j}, v{SX+j+1}')
    A(f'v_max_f32 v{mx}, v{mx}, v{SX+11}')
    def xred(op):
        for sw in ('v_permlane16_swap_b32', 'v_permlane32_swap_b32'):
            A(f'v_mov_b32 v{t2}, v{mx}')
            A(f'{sw} v{mx}, v{t2}')
            A(f'{op} v{mx}, v{mx}, v{t2}')
    xred('v_max_f32')
    A(f'v_mul_f32 v{mx}, s{sCSC}, v{mx}')
    for j in range(12):
        A(f'v_fma_f32 v{SX+j}, v{SX+j}, s{sCSC}, -v{mx}')
    for j in range(12):
        A(f'v_exp_f32 v{SX+j}, v{SX+j}')
    A(f'v_add_f32 v{mx}, v{SX}, v{SX+1}')
    for j in range(2, 12):
        A(f'v_add_f32 v{mx}, v{mx}, v{SX+j}')
    xred('v_add_f32')
    A(f'v_rcp_f32 v{mx}, v{mx}')
    for j in range(12):
        A(f'v_mul_f32 v{SX+j}, v{SX+j}, v{mx}')
    for j in range(6):
        A(f'v_cvt_pk_bf16_f32 v{PXR+j}, v{SX+2*j}, v{SX+2*j+1}')

ACC2, VAW, TACC, VWW, VACC, BVW, BT = 12, 16, 32, 72, 96, 96, 72
sPH = 68
vPUB, vSN = vBUFR, v11
sEX = 54
def wslot(j): return VWW + 8 * (j % 3)

def vo_role(A, cfg):
    A.comment('==== VO role ====')
    srd(A, SRD_W1, 64, W_BYTES); srd(A, SRD_W2, 66, W_BYTES)
    A(f's_lshl_b32 s{sT0}, s{sW}, 15')
    A(f's_add_u32 s{sT0}, s{sT0}, {WRES}')
    A(f'v_add_u32 v{vWR}, s{sT0}, v{vL16}')
    A(f's_and_b32 s{sT0}, s{sHL}, 1')
    A(f's_lshl_b32 s{sT0}, s{sT0}, 5')
    A(f'v_lshlrev_b32 v{vPUB}, 2, v13')
    A(f'v_xor_b32 v{vPUB}, s{sT0}, v{vPUB}')
    A(f'v_mov_b32 v{vSN}, -1')
    A(f'v_lshlrev_b32 v{v9}, 4, v14')
    A(f'v_mul_u32_u24 v{v10}, 10240, v15')
    A(f'v_add_u32 v{v10}, v{v10}, v{v9}')
    A('v_cmp_gt_u32 vcc, 2, v15')
    A('v_mov_b32 v16, 0x40000000')
    A(f'v_cndmask_b32 v{v9}, v16, v{vL16}, vcc')
    A(f's_lshl_b32 s{sT0}, s{sW}, 4')
    A(f's_add_u32 s{sT0}, s{sT0}, s{sHL}')
    A(f's_cmp_lt_u32 s{sT0}, 40')
    A(f's_cselect_b32 s{sUNIT}, 1, 0')
    A(f's_cselect_b64 s[{sEX}:{sEX+1}], -1, 0')
    def offsets():
        A(f's_lshl_b32 s{sT0}, s{sW}, 4')
        A(f's_add_u32 s{sT0}, s{sT0}, s{sHL}')
        A(f's_mul_i32 s{sD}, s{sX}, {T_X}')
        A(f's_add_u32 s{sD}, s{sD}, {T_OFF}')
        A(f's_mul_i32 s{sT1}, s{sW}, 2560')
        A(f's_add_u32 s{sC}, s{sD}, s{sT1}')
        A(f's_mul_i32 s{sT1}, s{sHL}, 10240')
        A(f's_add_u32 s{sC}, s{sC}, s{sT1}')
        A(f's_and_b32 s{sT1}, s{sT0}, 3')
        A(f's_mul_i32 s{sT1}, s{sT1}, 2560')
        A(f's_add_u32 s{sD}, s{sD}, s{sT1}')
        A(f's_lshr_b32 s{sT1}, s{sT0}, 2')
        A(f's_lshl_b32 s{sT1}, s{sT1}, 8')
        A(f's_add_u32 s{sD}, s{sD}, s{sT1}')
        A(f's_mul_i32 s{sT1}, s{sT0}, 0x199a')
        A(f's_lshr_b32 s{sT1}, s{sT1}, 16')
        A(f's_mul_i32 s{sT2}, s{sT1}, 10')
        A(f's_sub_u32 s{sT2}, s{sT0}, s{sT2}')
        A(f's_lshl_b32 s{sE}, s{sT2}, 8')
        A(f's_and_b32 s{sT2}, s{sT1}, 1')
        A(f's_lshl_b32 s{sT2}, s{sT2}, 12')
        A(f's_add_u32 s{sE}, s{sE}, s{sT2}')
        A(f's_lshr_b32 s{sT2}, s{sT1}, 1')
        A(f's_lshl_b32 s{sT2}, s{sT2}, 14')
        A(f's_add_u32 s{sE}, s{sE}, s{sT2}')
        A(f's_lshl_b32 s{sT2}, s{sX}, 15')
        A(f's_add_u32 s{sE}, s{sE}, s{sT2}')
        A(f's_add_u32 s{sE}, s{sE}, {MI_OFF}')
        A(f's_mul_i32 s{sF}, s{sX}, {VW_X}')
        A(f's_lshl_b32 s{sT1}, s{sT0}, 14')
        A(f's_add_u32 s{sF}, s{sF}, s{sT1}')
        A(f's_add_u32 s{sF}, s{sF}, {VW_OFF}')
        A(f's_sub_u32 s{sTP}, s{sC}, {T_OFF - TP_OFF}')
        A(f's_cmp_eq_u32 s{sUNIT}, 0')
        for r_ in (sD, sE, sF): A(f's_cselect_b32 s{r_}, 0x40000000, s{r_}')
    offsets()
    for i in range(4): A(f'v_mov_b32 v{16+i}, -1')
    for st in range(2):
        for cp in range(2):
            A(f's_add_u32 s{sT0}, s{sE}, {(st+1)*MI_S + cp*8192}')
            A(f'buffer_store_dword v16, v{vPUB}, {WS}, s{sT0} offen sc1')
    def flag_off(dst):
        A(f's_lshl_b32 s{dst}, s{sX}, 8')
        A(f's_lshl_b32 s{sT0}, s{sHL}, 2')
        A(f's_add_u32 s{dst}, s{dst}, s{sT0}')
        A(f's_add_u32 s{dst}, s{dst}, {TF_OFF}')
        A(f's_cmp_eq_u32 s{sW}, 3')
        A(f's_cselect_b32 s{dst}, s{dst}, 0x40000000')
    flag_off(sT1)
    A('v_mov_b32 v20, 0')
    A('s_mov_b64 exec, 1')
    A(f'buffer_store_dword v20, off, {WS}, s{sT1} sc1')
    A('s_mov_b64 exec, -1')
    for st in range(1):
        A(f's_add_u32 s{sT0}, s{sC}, {st*T_S}')
        for j in range(3):
            A(f'buffer_store_dwordx4 v[16:19], v{vL16 if j < 2 else v9}, {WS}, s{sT0} offen offset:{j*1024} sc1')
    load_weights(A, cfg, vo=True)
    rt_stamp(A, cfg, 0, 24)
    census(A, cfg)
    A(f's_cselect_b32 s{sG}, 1, 0')
    offsets()
    A(f's_add_u32 s{sE}, s{sE}, s{sNEAR}')
    A(f's_mov_b32 s{sA}, s{sF}')
    A(f's_mul_i32 s{sB}, s{sX}, 10240')
    A(f's_add_u32 s{sB}, s{sB}, {PI_OFF}')
    A(f's_lshl_b32 s{sT0}, s{sX}, 4')
    A(f's_lshl_b32 s{sF}, 0xffff, s{sT0}')
    for d_, s_ in ((bD, sD), (bE, sE), (bB, sB), (bC, sC), (bML, sML), (bMR, sMR)): A(f's_mov_b32 s{d_}, s{s_}')
    vo_rings(A); vw_offs(A); flag_off(bC)
    wait_ready(A, cfg, sS, False, 16)
    vw_early(A)
    A(f's_mov_b32 s{sD2}, 0x40000000')
    zero(A, VACC, 12); zero(A, TACC, 40)
    A('s_waitcnt lgkmcnt(0)')
    rt_stamp(A, cfg, 0, 24)
    slow = A.newlabel('voslow')
    A(f's_cmp_eq_u32 s{sG}, 0')
    A(f's_cbranch_scc1 {slow}')
    vo_loop(A, cfg, '')
    A.label(slow)
    vo_loop(A, cfg, ' sc1')

def vwld_text(j):
    return f'buffer_load_dwordx4 {v(BVW+4*j,4)}, v{vL16}, {WS}, s{(sA, sH1, sH2, sH3)[j//4]} offen offset:{(j%4)*1024} sc1{NT}'
NVE = int(os.environ.get('NVE', '10'))
TH = BVW + 12
def vw_early(A):
    for j in range(16 - NVE, 16): A(vwld_text(j))
def w_early(A):
    for j in range(3):
        for f_ in wfrag_fill(j, wslot(j), 0): A(f_.text)
def vw_offs(A):
    A(f's_add_u32 s{sH1}, s{sA}, 4096')
    A(f's_add_u32 s{sH2}, s{sA}, 8192')
    A(f's_add_u32 s{sH3}, s{sA}, 12288')

def vo_rings(A):
    assert NR == 4
    ring(A, sB, bB, 0, PI_S)
    ring(A, sE, bE, 1, MI_S); ring(A, sE2, bE, 2, MI_S)
    A(f's_and_b32 s{sPH}, s{sS}, 1')

def v_items(img, nxt, pre=False):
    items, fl, use = [], [], {}
    for k in range(10):
        for t in range(3):
            need = [('A', k)] if t == 0 else []
            if (k, t) in lds_frags(True):
                j = lds_frags(True).index((k, t)); bop = v(wslot(j), 8); use[j] = len(items)
                if j >= 3 or not pre: need.append(('W', j))
            else:
                f, b = wreg(k, t, True); bop = R(f, b, 8)
            items.append((smf(VACC + 4 * t, VAW + 4 * (k % 4), bop), need))
        fl += atr(-1 if k < 4 else 3 * (k - 4) + 2, VAW + 4 * (k % 4), img + k * 1024, ('A', k))
    for j in range(3 if pre else 0, 6):
        fl += wfrag_fill(j, wslot(j), use[j - 3] + 0.5 if j >= 3 else (0, 3.5, 6.5)[j])
    for n_, j in enumerate(nxt):
        fl += wfrag_fill(j, wslot(n_), use[3 + n_] + 0.5)
    return items, fl

def vo_loop(A, cfg, ST):
    lg = Lg(A)
    TOP = A.newlabel('voloop'); END = A.newlabel('voend')
    A.label(TOP)
    A('s_barrier', 'B1')
    stamp(A, cfg, 2)
    items, fl = v_items(RIMG, [6, 7])
    for j in range(3):
        fl.append(F(4 + 8 * j, f'buffer_store_dwordx4 {v(TH+4*j,4)}, v{vL16 if j < 2 else v9}, {WS}, s{sD2} offen offset:{j*1024} sc1'))
    fl += [F(8 + 8 * n_, vwld_text(j)) for n_, j in enumerate(range(6, 16 - NVE))]
    fl += [F(0, f's_xor_b32 s{sT1}, s{sE2}, 8192', id='t1'),
           F(1, f'buffer_store_dword v{vSN}, v{vPUB}, {WS}, s{sT1} offen sc1', after=['t1']),
           F(2, f'buffer_store_dword v{vSN}, v{vPUB}, {WS}, s{sE2} offen{ST}')]
    fl += [F(5, f's_add_u32 s{sT0}, s{sS}, 1'), F(6, f's_and_b32 s{sT0}, s{sT0}, {NR-1}'), F(7, f's_mul_i32 s{sT0}, s{sT0}, {MI_S}'),
           F(8, f's_add_u32 s{sML}, s{bML}, s{sT0}'), F(9, f's_add_u32 s{sMR}, s{bMR}, s{sT0}')]
    run_stream(A, lg, items, fl, cap=dict(lds=1, valu=1, vmem=1, salu=1))
    for t in range(3):
        b = VACC + 4 * t
        A(f'v_add_f32 v{b}, v{b}, v{b+2}')
        A(f'v_add_f32 v{b+1}, v{b+1}, v{b+3}')
    for t in range(3):
        b = VACC + 4 * t
        A(f'v_cvt_pk_bf16_f32 v{b}, v{b}, v{b+1}')
    for t in range(3):
        lg.op(f'ds_write_b32 v{vAIW}, v{VACC+4*t} offset:{QIMG + t*1024}')
    lg.drain()
    A('s_barrier', 'B2')
    stamp(A, cfg, 3)
    items, fl = [], []
    for k3 in range(3): fl += atr(-1, VAW + 4 * k3, QIMG + k3 * 1024, ('A', k3))
    fl += wfrag_fill(8, wslot(8), -1)
    fl += [F(2 * j, vwld_text(j)) for j in range(6)]
    last = {}
    for c0 in range(0, 10, 2):
        for k3 in range(3):
            for c in (c0, c0 + 1):
                need = [('A', k3)] if c == 0 else []
                if k3 == 2:
                    bop = v(wslot(6 + c), 8)
                    if c >= 2: need.append(('W', 6 + c))
                    last[c] = len(items)
                else:
                    f, b = wreg(10 + c, k3, True); bop = R(f, b, 8)
                items.append((smf(TACC + 4 * c, VAW + 4 * k3, bop), need))
    for c in range(10):
        if c >= 3: fl += wfrag_fill(6 + c, wslot(6 + c), last[c - 3])
        b = TACC + 4 * c
        e = last[c] + 3
        gb = ACC2 if c < 4 else (VAW + 12 if c < 8 else TACC)
        fl.append(F(e, f'v_add_f32 v{b}, v{b}, v{b+2}'))
        fl.append(F(e, f'v_add_f32 v{b+1}, v{b+1}, v{b+3}', id=('a', c)))
        fl.append(F(e + 1.5, f'v_cvt_pk_bf16_f32 v{gb + c%4}, v{b}, v{b+1}', id=('c', c), after=[('a', c)]))
        if c % 4 == 3 or c == 9:
            fl.append(F(e + 2, f'v_permlane32_swap_b32 v{gb}, v{gb+2}', after=[('c', c)]))
            fl.append(F(e + 2, f'v_permlane32_swap_b32 v{gb+1}, v{gb+3}', id=('s1', c)))
            fl.append(F(e + 3, f'v_permlane16_swap_b32 v{gb}, v{gb+1}', after=[('s1', c)]))
            fl.append(F(e + 3, f'v_permlane16_swap_b32 v{gb+2}, v{gb+3}', id=('s2', c)))
            fl.append(F(e + 4, f'v_and_or_b32 v{gb}, v{gb}, -2, s{sPH}', id=('tg', c), after=[('s2', c)]))
            vo_ = vL16 if c < 9 else v9
            fl.append(F(e + 5, f'buffer_store_dwordx4 {v(gb,4)}, v{vo_}, {WS}, s{sC} offen offset:{(c//4)*1024}{ST}', after=[('tg', c)]))
    run_stream(A, lg, items, fl, cap=dict(lds=1, valu=cfg.get('tval', 2), vmem=1, salu=2))
    stamp(A, cfg, 4)
    for i in range(2):
        A(f'v_mov_b64 {v(VWW+16+2*i,2)}, {v(ACC2+2*i,2)}')
        A(f'v_mov_b64 {v(VWW+20+2*i,2)}, {v(TACC+2*i,2)}')
    def tcopy():
        for j, (r_, o_) in enumerate(((VWW + 16, vL16), (VAW + 12, vL16), (VWW + 20, v9))):
            A(f'buffer_store_dwordx4 {v(r_,4)}, v{o_}, {WS}, s{sTP} offen offset:{j*1024} sc1')
    A(f's_cmp_eq_u32 s{sS}, 63')
    A(f's_cbranch_scc1 {END}')
    L1 = A.newlabel('tp'); L2 = A.newlabel('pp'); P0 = A.newlabel('pp0'); D = A.newlabel('ppd')
    def tloads():
        for j in range(4):
            A(f'buffer_load_dwordx4 {v(BT+4*j,4)}, v{v10}, {WS}, s{(sD, sH1, sH2, sH3)[j]} offen sc1')
    def tcheck(tmp):
        A(f'v_bitop3_b32 v{tmp}, v{BT}, v{BT+4}, v{BT+8} bitop3:0x7e')
        A(f'v_bitop3_b32 v{tmp+1}, v{BT}, v{BT+12}, s{sPH} bitop3:0x7e')
        A(f'v_bitop3_b32 v{tmp}, v{tmp}, v{tmp+1}, 1 bitop3:0xa8')
        A(f'v_cmp_ne_u32 vcc, 0, v{tmp}')
    for j, r_ in enumerate((sH1, sH2, sH3)): A(f's_add_u32 s{r_}, s{sD}, {(j+1)*40960}')
    ld10(A, sB, VAW)
    A('s_sleep 2')
    A.label(L2)
    ld10(A, sB, VAW)
    chk10(A, VAW, ACC2, behind=3)
    retry_tail(A, ACC2, L2, D)
    A.label(D)
    stamp(A, cfg, 6)
    put10(A, VAW, PIMG)
    tloads()
    zero(A, ACC2, 4)
    lg.drain()
    A('s_barrier', 'B4')
    stamp(A, cfg, 7)
    NU2 = A.newlabel('vonu')
    A(f's_cmp_eq_u32 s{sUNIT}, 0')
    A(f's_cbranch_scc1 {NU2}_f')
    items = [(smf(ACC2, TACC + 4 * k, v(BVW + 8 * k if k < 8 else BT + 8 * (k - 8), 8)), [('A', k)]) for k in range(10)]
    fa = []
    for k in range(10): fa += atr(-1 if k < 7 else 0, TACC + 4 * k, PIMG + k * 1024, ('A', k))
    run_stream(A, lg, items[:8], fa, cap=dict(lds=2, valu=1, vmem=1, salu=2))
    TL = A.newlabel('tl'); TD = A.newlabel('td')
    A('s_waitcnt vmcnt(0)')
    tcheck(VAW + 10)
    A(f's_cbranch_vccnz {TL}')
    A.label(TD)
    for text, need in items[8:]:
        for tg in need: lg.wait(tg)
        A(text)
    A(f's_xor_b32 s{sT0}, s{sE}, 8192')
    A(f'v_add_f32 v{ACC2}, v{ACC2}, v{ACC2+2}')
    A(f'v_add_f32 v{ACC2+1}, v{ACC2+1}, v{ACC2+3}')
    A(f'v_cvt_pk_bf16_f32 v{ACC2}, v{ACC2}, v{ACC2+1}')
    A(f'buffer_store_dword v{ACC2}, v{vPUB}, {WS}, s{sT0} offen sc1')
    A(f'buffer_store_dword v{ACC2}, v{vPUB}, {WS}, s{sE} offen{ST}')
    stamp(A, cfg, 8)
    A.label(NU2)
    A(f's_add_u32 s{sA}, s{sA}, {VW_S}')
    vw_offs(A)
    A('s_barrier', 'B5')
    stamp_flush(A, cfg, 9, ACC2)
    NU3 = A.newlabel('vonu3')
    A(f's_cmp_eq_u32 s{sUNIT}, 0')
    A(f's_cbranch_scc1 {NU3}_s')
    vw_early(A)
    A.label(NU3)
    stamp(A, cfg, 5)
    for j, r_ in enumerate((VWW + 16, VAW + 12, VWW + 20)):
        for i in range(2): A(f'v_mov_b64 {v(TH+4*j+2*i,2)}, {v(r_+2*i,2)}')
    def f1():
        zero(A, VACC, 12); zero(A, TACC, 40)
        A(f's_add_u32 s{sS}, s{sS}, 1')
        A(f's_mov_b32 s{sD2}, s{sTP}')
        A(f's_add_u32 s{sTP}, s{sTP}, {T_S}')
        vo_rings(A)
        ident16(A, VWW + 22)
    cold = fetch_m(A, cfg, VWW, ACC2, ACC2 + 10, VWW + 20, f1)
    A('s_waitcnt lgkmcnt(0)')
    A(f's_branch {TOP}')
    cold()
    A.label(f'{NU2}_f')
    A(f's_add_u32 s{sT0}, s{sS}, 1')
    A(f'v_mov_b32 v{ACC2}, s{sT0}')
    A('s_mov_b64 exec, 1')
    A(f'buffer_store_dword v{ACC2}, off, {WS}, s{bC}{ST}')
    A('s_mov_b64 exec, -1')
    A(f's_branch {NU2}')
    A.label(TL)
    tloads()
    A('s_waitcnt vmcnt(0)')
    tcheck(VAW + 10)
    A(f's_cbranch_vccz {TD}')
    A(f's_sub_u32 s{sBUD}, s{sBUD}, 1')
    A(f's_cbranch_scc0 {TL}')
    A(f's_mov_b32 s{sBUD}, 0')
    A(f's_branch {TD}')
    A.label(f'{NU3}_s')
    A(f's_sleep {cfg.get("nusleep", 6)}')
    A(f's_branch {NU3}')
    A.label(END)
    tcopy()
    A('s_waitcnt vmcnt(0)')
    A('s_barrier')
    done_count(A)
    rt_stamp(A, cfg, 0, 24)
    A('s_endpgm')

def rec_entry(A, cfg):
    common_setup(A, cfg)
    rt_stamp(A, cfg, 0, 16, first=True)
    VO = A.newlabel('role_vo')
    A('s_lshr_b32 s34, s2, 7')
    A('s_cmp_lg_u32 s34, 0')
    A(f's_cbranch_scc1 {VO}')
    qk_role(A, cfg)
    A.label(VO)
    vo_role(A, cfg)
```

```python
from asmgen import *
from layout import *
from rec import srd, Lg, rt_stamp, f2u, SRD_WS, SRD_DBG, WS
from work import Pipe, mf, sW, sT0, sT1, sT2, sLI, sBUD, sR

SRD_1, SRD_2, SRD_X, SRD_O = 16, 20, 24, 48
sB, sG, sA1, sA2, sA3, sA4, sN = 35, 36, 37, 38, 39, 40, 41
DBG = f's[{SRD_DBG}:{SRD_DBG+3}]'
M_BYTES = 640 * 640 * 2

def wait_bits(A, soff, sbits, vt):
    L = A.newlabel('wb'); D = A.newlabel('wbd')
    A.label(L)
    A(f'buffer_load_dword v{vt}, off, {DBG}, s{soff} sc1')
    A('s_waitcnt vmcnt(0)')
    A(f'v_readfirstlane_b32 s{sT1}, v{vt}')
    A(f's_and_b32 s{sT1}, s{sT1}, s{sbits}')
    A(f's_cmp_eq_u32 s{sT1}, s{sbits}')
    A(f's_cbranch_scc1 {D}')
    A('s_sleep 8')
    A(f's_sub_u32 s{sBUD}, s{sBUD}, 1')
    A(f's_cbranch_scc0 {L}')
    A(f's_mov_b32 s{sBUD}, 0')
    A.label(D)

def set_bit(A, soff, sbit, vt):
    A('s_waitcnt vmcnt(0)')
    A('s_barrier')
    sk = A.newlabel('sb')
    A(f's_cmp_lg_u32 s{sW}, 0')
    A(f's_cbranch_scc1 {sk}')
    A(f'v_mov_b32 v{vt}, s{sbit}')
    A('s_mov_b64 exec, 1')
    A(f'buffer_atomic_or v{vt}, off, {DBG}, s{soff} sc1')
    A('s_mov_b64 exec, -1')
    A.label(sk)

def row_voffs(A, dst, rowmap):
    for j in range(4):
        A('v_lshrrev_b32 v27, 3, v0')
        A(f'v_add_u32 v27, {8*j}, v27')
        A('v_bfe_u32 v29, v27, 1, 3')
        A('v_and_b32 v28, 7, v0')
        A('v_xor_b32 v28, v28, v29')
        rowmap(j)
        A('v_mul_u32_u24 v27, 1280, v27')
        A(f'v_lshl_add_u32 v{dst+j}, v28, 4, v27')

def rd_addrs(A, dst):
    A('v_lshrrev_b32 v26, 5, v0')
    A('v_and_b32 v27, 31, v0')
    A('v_bfe_u32 v28, v0, 1, 3')
    A('v_xor_b32 v28, v28, v26')
    A('v_lshlrev_b32 v27, 7, v27')
    for ks in range(4):
        A(f'v_xor_b32 v29, {2*ks}, v28')
        A(f'v_lshl_add_u32 v{dst+ks}, v29, 4, v27')

def cmul(A, dr, di, ar, ai, br, bi, t):
    A(f'v_mul_f32 v{t}, v{ai}, v{bi}')
    A(f'v_mul_f32 v{t+1}, v{ar}, v{bi}')
    A(f'v_fma_f32 v{t}, v{ar}, v{br}, -v{t}')
    A(f'v_fma_f32 v{di}, v{ai}, v{br}, v{t+1}')
    A(f'v_mov_b32 v{dr}, v{t}')

def ssm(A, cfg):
    A(f's_load_dwordx16 s[64:79], s[0:1], {KA["B_x"]}')
    A(f's_load_dwordx4 s[80:83], s[0:1], {KA["Dsk"]}')
    A(f's_mul_i32 s{sB}, s{sN}, 0x3334')
    A(f's_lshr_b32 s{sB}, s{sB}, 16')
    A(f's_mul_i32 s{sT0}, s{sB}, 5')
    A(f's_sub_u32 s{sG}, s{sN}, s{sT0}')
    A('s_waitcnt lgkmcnt(0)')
    A('s_barrier')
    srd(A, SRD_X, 64, X_BYTES); srd(A, SRD_1, 70, M_BYTES); srd(A, SRD_2, 72, M_BYTES); srd(A, SRD_O, 82, OUT_BYTES)
    SL = 49152
    vXV, vBV, vRD = 1, 5, 9
    def xmap(j):
        A('v_bfe_u32 v29, v27, 2, 1')
        A('v_and_b32 v27, 3, v27')
        A('v_lshl_add_u32 v27, v29, 6, v27')
        A(f'v_add_u32 v27, {4*j}, v27')
    row_voffs(A, vXV, xmap)
    row_voffs(A, vBV, lambda j: None)
    rd_addrs(A, vRD)
    for sl in (1, 2):
        for ks in range(4): A(f'v_add_u32 v{vRD+4*sl+ks}, {sl*SL}, v{vRD+ks}')
    vPR = 21
    A(f's_lshl_b32 s{sT0}, s{sW}, 13')
    A(f's_add_u32 s{sA4}, s{sT0}, 16384')
    A(f's_lshl_b32 s{sA1}, s{sB}, 7')
    A(f's_lshl_b32 s{sT0}, s{sW}, 4')
    A(f's_add_u32 s{sA1}, s{sA1}, s{sT0}')
    A(f's_mul_i32 s{sA1}, s{sA1}, 1280')
    A(f's_lshl_b32 s{sA3}, s{sW}, 12')
    A(f's_lshl_b32 s{sA2}, s{sG}, 7')
    A(f's_lshl_b32 s{sT0}, s{sW}, 5')
    A(f's_add_u32 s{sA2}, s{sA2}, s{sT0}')
    A('v_and_b32 v26, 31, v0')
    A(f'v_add_u32 v26, s{sA2}, v26')
    A('v_lshlrev_b32 v26, 1, v26')
    PAR = 232
    for i, p_ in enumerate((66, 68, 78)):
        srd(A, 52, p_, 1280)
        A(f'buffer_load_ushort v{PAR+i}, v26, s[52:55], 0 offen')
    A(f's_mul_i32 s{sA2}, s{sA2}, 1280')
    ACC = 32
    stages = []
    for kc in range(10):
        slot = kc % 3
        def dma(nxt, kc=kc, slot=slot):
            g = []
            for j in range(4):
                g.append([f's_add_u32 m0, s{sA3}, {slot*SL + j*1024}', f's_add_u32 s{sT0}, s{sA1}, {kc*128}',
                          f'buffer_load_dwordx4 v{vXV+j}, s[{SRD_X}:{SRD_X+3}], s{sT0} offen lds'])
            for part in range(2):
                sr = (SRD_1, SRD_2)[part]
                for j in range(4):
                    g.append([f's_add_u32 m0, s{sA4}, {slot*SL + part*4096 + j*1024}', f's_add_u32 s{sT0}, s{sA2}, {kc*128}',
                              f'buffer_load_dwordx4 v{vBV+j}, s[{sr}:{sr+3}], s{sT0} offen lds'])
            return g
        steps = []
        for ks in range(4):
            fb = 24 * (ks % 2)
            reads = [(f'ds_read_b128 {a(fb+16+4*part,4)}, v{160+4*slot+ks} offset:{part*4096}', ('b', fb)) for part in range(2)]
            reads += [(f'ds_read_b128 {a(fb+4*tt,4)}, v{vRD+4*slot+ks} offset:{tt*4096}', ('x', fb, tt)) for tt in range(4)]
            mfs = []
            for tt in range(4):
                for part in range(2):
                    d = v(ACC + 64 * part + 16 * tt, 16)
                    mfs.append((mf(d, a(fb + 4 * tt, 4), a(fb + 16 + 4 * part, 4), '0' if (kc, ks) == (0, 0) else d), [('x', fb, tt)]))
            steps.append(dict(reads=reads, mf=mfs))
        stages.append(dict(dma=dma, steps=steps))
    for i in range(12): A(f'v_add_u32 v{160+i}, s{sA4}, v{vRD+i}')
    P = Pipe(A, stages, 3, False)
    P.prologue(); P.body()
    Lr, Li, dt = PAR, PAR + 1, PAR + 2
    lr, li, cr, ci, qr, qi, t0 = 236, 237, 238, 239, 240, 241, 242
    for i in range(3): A(f'v_lshlrev_b32 v{PAR+i}, 16, v{PAR+i}')
    A(f'v_mul_f32 v{dt}, {f2u(1.4426950408889634):#x}, v{dt}')
    A(f'v_exp_f32 v{dt}, v{dt}')
    A(f'v_cvt_pk_bf16_f32 v{dt}, v{dt}, v{dt}')
    A(f'v_lshlrev_b32 v{dt}, 16, v{dt}')
    A(f'v_mul_f32 v{t0}, v{dt}, v{Lr}')
    A(f'v_mul_f32 v{t0}, {f2u(1.4426950408889634):#x}, v{t0}')
    A(f'v_exp_f32 v{t0}, v{t0}')
    A(f'v_mul_f32 v{t0+1}, v{dt}, v{Li}')
    A(f'v_mul_f32 v{t0+1}, 0.15915494309189535, v{t0+1}')
    A(f'v_rndne_f32 v{t0+2}, v{t0+1}')
    A(f'v_sub_f32 v{t0+1}, v{t0+1}, v{t0+2}')
    A(f'v_cos_f32 v{lr}, v{t0+1}')
    A(f'v_sin_f32 v{li}, v{t0+1}')
    A(f'v_mul_f32 v{lr}, v{lr}, v{t0}')
    A(f'v_mul_f32 v{li}, v{li}, v{t0}')
    A(f'v_mul_f32 v{t0}, v{Lr}, v{Lr}')
    A(f'v_fma_f32 v{t0}, v{Li}, v{Li}, v{t0}')
    A(f'v_rcp_f32 v{t0}, v{t0}')
    A(f'v_add_f32 v{t0+1}, -1.0, v{lr}')
    A(f'v_add_f32 v{t0}, v{t0}, v{t0}')
    A(f'v_mul_f32 v{cr}, v{t0+1}, v{Lr}')
    A(f'v_fma_f32 v{cr}, v{li}, v{Li}, v{cr}')
    A(f'v_mul_f32 v{ci}, v{li}, v{Lr}')
    A(f'v_fma_f32 v{ci}, -v{t0+1}, v{Li}, v{ci}')
    A(f'v_mul_f32 v{cr}, v{cr}, v{t0}')
    A(f'v_mul_f32 v{ci}, v{ci}, v{t0}')
    A(f'v_mov_b32 v{qr}, v{lr}'); A(f'v_mov_b32 v{qi}, v{li}')
    for _ in range(6): cmul(A, qr, qi, qr, qi, qr, qi, t0)
    UR, UI = ACC, ACC + 64
    er, ei, x1, x2 = 244, 245, 246, 247
    A(f'v_mov_b32 v{er}, v{UR}'); A(f'v_mov_b32 v{ei}, v{UI}')
    for i in range(1, 64):
        A(f'v_fma_f32 v{x1}, v{lr}, v{er}, v{UR+i}')
        A(f'v_fma_f32 v{x2}, v{lr}, v{ei}, v{UI+i}')
        A(f'v_fma_f32 v{x1}, -v{li}, v{ei}, v{x1}')
        A(f'v_fma_f32 v{ei}, v{li}, v{er}, v{x2}')
        er, x1 = x1, er
    if er != 244:
        A(f'v_mov_b32 v244, v{er}'); er, x1 = 244, 246
    A('v_lshlrev_b32 v27, 2, v26') if False else None
    A('v_and_b32 v26, 31, v0')
    A('v_lshlrev_b32 v26, 3, v26')
    A('v_lshrrev_b32 v28, 5, v0')
    A('v_mul_u32_u24 v27, 5120, v28')
    A('v_add_u32 v27, v27, v26')
    A(f's_lshl_b32 s{sA1}, s{sG}, 10')
    A(f's_lshl_b32 s{sT0}, s{sW}, 8')
    A(f's_add_u32 s{sA1}, s{sA1}, s{sT0}')
    A(f's_add_u32 s{sA1}, s{sA1}, {SE_OFF}')
    A(f's_mul_i32 s{sT0}, s{sB}, 10240')
    A(f's_add_u32 s{sT0}, s{sT0}, s{sA1}')
    A(f'buffer_store_dwordx2 v[244:245], v27, {WS}, s{sT0} offen sc1')
    A(f's_lshl_b32 s{sA2}, s{sG}, 2')
    A(f's_add_u32 s{sA2}, s{sA2}, {DBG_SF1}')
    A(f's_lshl_b32 s{sA3}, 1, s{sB}')
    set_bit(A, sA2, sA3, 29)
    A(f's_lshl_b32 s{sA4}, s{sA3}, 1')
    A(f's_sub_u32 s{sA4}, s{sA4}, 1')
    wait_bits(A, sA2, sA4, 29)
    EB = 164
    for j in range(31):
        A(f's_add_u32 s{sT0}, s{sA1}, {j*5120}')
        A(f'buffer_load_dwordx2 {v(EB+2*j,2)}, v26, {WS}, s{sT0} offen sc1')
    A(f's_lshl_b32 s{sT0}, s{sB}, 1')
    A(f'v_add_u32 v28, s{sT0}, v28')
    hr, hi = 244, 245
    A(f'v_mov_b64 v[244:245], 0')
    A('s_waitcnt vmcnt(0)')
    for j in range(31):
        A(f'v_cmp_lt_u32 vcc, {j}, v28')
        A(f'v_fma_f32 v246, v{qr}, v{hr}, v{EB+2*j}')
        A(f'v_fma_f32 v247, v{qr}, v{hi}, v{EB+2*j+1}')
        A(f'v_fma_f32 v246, -v{qi}, v{hi}, v246')
        A(f'v_fma_f32 v247, v{qi}, v{hr}, v247')
        A(f'v_cndmask_b32 v{hr}, v{hr}, v246, vcc')
        A(f'v_cndmask_b32 v{hi}, v{hi}, v247, vcc')
    A('v_bfe_u32 v26, v0, 2, 3')
    A('v_lshlrev_b32 v26, 10, v26')
    A('v_and_b32 v27, 3, v0')
    A('v_lshl_add_u32 v26, v27, 4, v26')
    A('v_lshrrev_b32 v27, 5, v0')
    A('v_lshl_add_u32 v26, v27, 9, v26')
    A(f's_mul_i32 s{sA1}, s{sB}, 327680')
    A(f's_lshl_b32 s{sT0}, s{sG}, 15')
    A(f's_add_u32 s{sA1}, s{sA1}, s{sT0}')
    A(f's_lshl_b32 s{sT0}, s{sW}, 13')
    A(f's_add_u32 s{sA1}, s{sA1}, s{sT0}')
    A(f's_add_u32 s{sA1}, s{sA1}, {HT_OFF}')
    A(f's_add_u32 s{sA4}, s{sA1}, 163840')
    pr, pi_ = hr, hi
    for i in range(64):
        A(f'v_fma_f32 v{UR+i}, v{lr}, v{pr}, v{UR+i}')
        A(f'v_fma_f32 v{UI+i}, v{lr}, v{pi_}, v{UI+i}')
        if i > 0:
            A(f'v_mul_f32 v{EB+16+(i-1)%8}, v{cr}, v{pr}')
            A(f'v_mul_f32 v{EB+24+(i-1)%8}, v{cr}, v{pi_}')
        A(f'v_fma_f32 v{UR+i}, -v{li}, v{pi_}, v{UR+i}')
        A(f'v_fma_f32 v{UI+i}, v{li}, v{pr}, v{UI+i}')
        def fin(k, r_, i_):
            A(f'v_fma_f32 v{EB+16+k%8}, -v{ci}, v{i_}, v{EB+16+k%8}')
            A(f'v_fma_f32 v{EB+24+k%8}, -v{ci}, v{r_}, -v{EB+24+k%8}')
            if k % 8 == 7:
                o = EB + 8 * ((k // 8) % 2) if False else EB
                for q in range(4):
                    A(f'v_cvt_pk_bf16_f32 v{EB+32+8*((k//8)%2)+q}, v{EB+16+2*q}, v{EB+16+2*q+1}')
                    A(f'v_cvt_pk_bf16_f32 v{EB+36+8*((k//8)%2)+q}, v{EB+24+2*q}, v{EB+24+2*q+1}')
                A(f'buffer_store_dwordx4 {v(EB+32+8*((k//8)%2),4)}, v26, {WS}, s{sA1} offen offset:{(k//8)*64} sc1')
                A(f'buffer_store_dwordx4 {v(EB+36+8*((k//8)%2),4)}, v26, {WS}, s{sA4} offen offset:{(k//8)*64} sc1')
        if i > 0: fin(i - 1, pr, pi_)
        pr, pi_ = UR + i, UI + i
    A(f'v_mul_f32 v{EB+16+7}, v{cr}, v{pr}')
    A(f'v_mul_f32 v{EB+24+7}, v{cr}, v{pi_}')
    fin(63, pr, pi_)
    A(f's_add_u32 s{sA2}, s{sA2}, {DBG_SF2 - DBG_SF1}')
    set_bit(A, sA2, sA3, 29)
    rt_stamp(A, cfg, 0, 29)
    srd(A, SRD_1, 74, M_BYTES); srd(A, SRD_2, 76, M_BYTES)
    SL = 32768
    vCV, vHV, vCR, vHR = 5, 1, 9, 21
    A(f'v_lshlrev_b32 v{vHV}, 4, v0')
    rd_addrs(A, vCR)
    A(f's_lshl_b32 s{sT0}, s{sW}, 12')
    A(f's_add_u32 s{sA4}, s{sT0}, 16384')
    A(f's_mov_b32 s{sA3}, s{sT0}')
    for ks in range(4):
        A(f'v_add_u32 v{vCR+ks}, s{sA4}, v{vCR+ks}')
        A(f'v_add_u32 v{vCR+4+ks}, 65536, v{vCR+ks}')
        A(f'v_add_u32 v{vCR+8+ks}, 131072, v{vCR+ks}')
    A('v_lshrrev_b32 v26, 5, v0')
    A(f'v_lshlrev_b32 v{vHR}, 11, v26')
    A('v_bfe_u32 v26, v0, 2, 2')
    A(f'v_lshl_add_u32 v{vHR}, v26, 4, v{vHR}')
    A('v_bfe_u32 v26, v0, 4, 1')
    A(f'v_lshl_add_u32 v{vHR}, v26, 7, v{vHR}')
    A('v_bfe_u32 v26, v0, 1, 1')
    A(f'v_lshl_add_u32 v{vHR}, v26, 6, v{vHR}')
    A('v_and_b32 v26, 1, v0')
    A(f'v_lshl_add_u32 v{vHR}, v26, 3, v{vHR}')
    A(f'v_add_u32 v{vHR+1}, 65536, v{vHR}')
    A(f'v_add_u32 v{vHR+2}, 131072, v{vHR}')
    A(f's_mul_i32 s{sA1}, s{sB}, 327680')
    A(f's_add_u32 s{sA1}, s{sA1}, s{sT0}')
    A(f's_add_u32 s{sA1}, s{sA1}, {HT_OFF}')
    A(f's_lshl_b32 s{sN}, s{sG}, 7')
    A(f's_lshl_b32 s{sT0}, s{sW}, 5')
    A(f's_add_u32 s{sN}, s{sN}, s{sT0}')
    XF, DF = 100, 132
    A('v_and_b32 v26, 31, v0')
    A('v_mul_u32_u24 v27, 1280, v26')
    A('v_lshrrev_b32 v28, 5, v0')
    A('v_lshl_add_u32 v27, v28, 4, v27')
    A(f's_mul_i32 s{sT0}, s{sB}, {128*1280}')
    A(f's_lshl_b32 s{sT1}, s{sN}, 1')
    A(f's_add_u32 s{sT0}, s{sT0}, s{sT1}')
    for tt in range(4):
        A(f's_add_u32 s{sT2}, s{sT0}, {tt*32*1280}')
        for ks in range(2):
            A(f'buffer_load_dwordx4 {v(XF+8*tt+4*ks,4)}, v27, s[{SRD_X}:{SRD_X+3}], s{sT2} offen offset:{ks*32}')
    srd(A, 52, 80, 1280)
    A('v_lshlrev_b32 v27, 1, v26')
    A(f'buffer_load_ushort v29, v27, s[52:55], s{sT1} offen')
    A('v_lshlrev_b32 v28, 3, v28')
    A('v_sub_u32 v26, v26, v28')
    A('s_waitcnt vmcnt(0)')
    A('v_lshlrev_b32 v30, 16, v29')
    for ks in range(2):
        for q in range(4):
            r_ = DF + 4 * ks + q
            A(f'v_cmp_eq_u32 vcc, {16*ks + 2*q}, v26')
            A(f'v_cndmask_b32 v{r_}, 0, v29, vcc')
            A(f'v_cmp_eq_u32 vcc, {16*ks + 2*q + 1}, v26')
            A(f'v_cndmask_b32 v{r_}, v{r_}, v30, vcc')
    for tt in range(4):
        for ks in range(2):
            d = v(ACC + 16 * tt, 16)
            A(mf(d, v(XF + 8 * tt + 4 * ks, 4), v(DF + 4 * ks, 4), '0' if ks == 0 else d))
    A(f's_mul_i32 s{sA2}, s{sN}, 1280')
    A(f's_lshl_b32 s{sT2}, 1, s{sB}')
    for g_ in range(5):
        A(f's_mov_b32 s{sT0}, {DBG_SF2 + 4*g_}')
        wait_bits(A, sT0, sT2, 29)
    stages = []
    for kc in range(20):
        slot = kc % 5
        def dma(nxt, kc=kc, slot=slot):
            g = []
            for j in range(4):
                g.append([f's_add_u32 m0, s{sA3}, {slot*SL + j*1024}', f's_add_u32 s{sT0}, s{sA1}, {kc*16384 + j*1024}',
                          f'buffer_load_dwordx4 v{vHV}, {WS}, s{sT0} offen sc1 lds'])
            sr = SRD_1 if kc < 10 else SRD_2
            for j in range(4):
                g.append([f's_add_u32 m0, s{sA4}, {slot*SL + j*1024}', f's_add_u32 s{sT0}, s{sA2}, {(kc%10)*128}',
                          f'buffer_load_dwordx4 v{vCV+j}, s[{sr}:{sr+3}], s{sT0} offen lds'])
            return g
        steps = []
        for ks in range(4):
            fb = 20 * (ks % 2)
            hb, so = slot >> 1, (slot & 1) * SL
            reads = [(f'ds_read_b128 {a(fb+16,4)}, v{vCR+4*hb+ks} offset:{so}', ('c', fb))]
            for tt in range(4):
                for rd in range(2):
                    reads.append((f'ds_read_b64_tr_b16 {a(fb+4*tt+2*rd,2)}, v{vHR+hb} offset:{so + ks*4096 + rd*1024 + tt*256}', ('h', fb, tt)))
            mfs = []
            for tt in range(4):
                d = v(ACC + 16 * tt, 16)
                mfs.append((mf(d, a(fb + 4 * tt, 4), a(fb + 16, 4), d), [('h', fb, tt)]))
            steps.append(dict(reads=reads, mf=mfs))
        stages.append(dict(dma=dma, steps=steps))
    P = Pipe(A, stages, 5, False)
    P.prologue(); P.body()
    A('v_and_b32 v26, 31, v0')
    A('v_lshlrev_b32 v26, 2, v26')
    A('v_lshrrev_b32 v27, 5, v0')
    A('v_mul_u32_u24 v27, 20480, v27')
    A('v_add_u32 v26, v26, v27')
    A(f's_mul_i32 s{sA1}, s{sB}, {128*5120}')
    A(f's_lshl_b32 s{sT0}, s{sN}, 2')
    A(f's_add_u32 s{sA1}, s{sA1}, s{sT0}')
    A(f's_add_u32 s{sA1}, s{sA1}, 2560')
    for tt in range(4):
        for rg in range(16):
            A(f's_add_u32 s{sT0}, s{sA1}, {(32*tt + 8*(rg>>2) + (rg&3))*5120}')
            A(f'buffer_store_dword v{ACC+16*tt+rg}, v26, s[{SRD_O}:{SRD_O+3}], s{sT0} offen')
    rt_stamp(A, cfg, 0, 29)

def post(A, cfg, first, stride, waitprog=True):
    A(f's_load_dwordx2 s[82:83], s[0:1], {KA["out"]}')
    A('v_lshlrev_b32 v1, 4, v0')
    A('v_lshrrev_b32 v27, 4, v0')
    A('v_and_b32 v26, 15, v0')
    A('v_mul_u32_u24 v2, 10240, v27')
    A('v_lshl_add_u32 v2, v26, 4, v2')
    A('v_mul_u32_u24 v3, 5120, v26')
    A('v_lshl_add_u32 v3, v27, 4, v3')
    A('v_mov_b32 v4, v0')
    A(f's_mul_i32 s{sT0}, s{sW}, 10240')
    A(f'v_add_u32 v5, s{sT0}, v1')
    A('s_waitcnt lgkmcnt(0)')
    A('s_barrier')
    srd(A, SRD_O, 82, OUT_BYTES)
    TOP = A.newlabel('ptop'); END = A.newlabel('pend')
    A.label(TOP)
    nq = A.newlabel('nq')
    A(f's_cmp_lg_u32 s{sW}, 0')
    A(f's_cbranch_scc1 {nq}')
    A('v_mov_b32 v6, 1')
    A('v_mov_b32 v7, 0')
    A('s_mov_b64 exec, 1')
    A(f'buffer_atomic_add v6, off, {DBG}, 0 offset:{DBG_QUEUE} sc0 sc1')
    A('s_waitcnt vmcnt(0)')
    A('ds_write_b32 v7, v6 offset:49152')
    A('s_waitcnt lgkmcnt(0)')
    A('s_mov_b64 exec, -1')
    A.label(nq)
    A('s_barrier')
    A('v_mov_b32 v7, 0')
    A('ds_read_b32 v6, v7 offset:49152')
    A('s_waitcnt lgkmcnt(0)')
    A(f'v_readfirstlane_b32 s{sN}, v6')
    A(f's_cmp_ge_u32 s{sN}, 512')
    A(f's_cbranch_scc1 {END}')
    A(f's_lshr_b32 s{sB}, s{sN}, 3')
    A(f's_and_b32 s{sG}, s{sN}, 7')
    A(f's_mul_i32 s{sG}, s{sG}, 5')
    PF, ACC, VF = 8, 88, 0
    A(f's_mul_i32 s{sA1}, s{sB}, {VW_S}')
    A(f's_lshr_b32 s{sT0}, s{sW}, 1')
    A(f's_mul_i32 s{sT0}, s{sT0}, {VW_X}')
    A(f's_add_u32 s{sA1}, s{sA1}, s{sT0}')
    A(f's_and_b32 s{sT0}, s{sW}, 1')
    A(f's_lshl_b32 s{sT0}, s{sT0}, 13')
    A(f's_add_u32 s{sA1}, s{sA1}, s{sT0}')
    A(f's_lshl_b32 s{sT0}, s{sG}, 14')
    A(f's_add_u32 s{sA1}, s{sA1}, s{sT0}')
    A(f's_add_u32 s{sA1}, s{sA1}, {VW_OFF}')
    A(f's_lshr_b32 s{sT0}, s{sB}, 2')
    A(f's_cmp_eq_u32 s{sT0}, 0')
    A(f's_cselect_b32 s{sT2}, 2, 1')
    A(f's_mul_i32 s{sT2}, s{sT2}, 0x1010')
    A(f's_and_b32 s{sT1}, s{sT0}, 1')
    A(f's_lshl_b32 s{sT1}, s{sT1}, 4')
    A(f's_lshl_b32 s{sT2}, s{sT2}, s{sT1}')
    A(f's_lshr_b32 s{sT0}, s{sT0}, 1')
    A(f's_lshl_b32 s{sT0}, s{sT0}, 2')
    A(f's_add_u32 s{sT0}, s{sT0}, {DBG_VCNT}')
    wait_bits(A, sT0, sT2, 6)
    for t in range(5):
        for hh in range(8):
            if hh % 4 == 0: A(f's_add_u32 s{sT0}, s{sA1}, {t*16384 + hh*1024}')
            A(f'buffer_load_dwordx4 {a(40*t+4*hh,4)}, v1, {WS}, s{sT0} offen offset:{(hh%4)*1024} sc1')
    if waitprog:
        L = A.newlabel('pw'); D = A.newlabel('pwd')
        A.label(L)
        A(f'buffer_load_dwordx2 v[6:7], off, {DBG}, 0 offset:{DBG_PROG} sc1')
        A('s_waitcnt vmcnt(0)')
        A('v_and_b32 v7, 64, v7')
        A('v_max_u32 v6, v6, v7')
        A(f'v_cmp_ge_u32 vcc, s{sB}, v6')
        A(f's_cbranch_vccz {D}')
        A('s_sleep 3')
        A(f's_sub_u32 s{sBUD}, s{sBUD}, 1')
        A(f's_cbranch_scc0 {L}')
        A(f's_mov_b32 s{sBUD}, 0')
        A.label(D)
    A(f's_mul_i32 s{sA2}, s{sB}, {PX_S}')
    A(f's_lshl_b32 s{sT0}, s{sW}, 14')
    A(f's_add_u32 s{sA2}, s{sA2}, s{sT0}')
    A(f's_add_u32 s{sA2}, s{sA2}, {PX_OFF}')
    for j in range(16):
        if j % 4 == 0: A(f's_add_u32 s{sT0}, s{sA2}, {j*1024}')
        A(f'buffer_load_dwordx4 {v(PF+4*j,4)}, v1, {WS}, s{sT0} offen offset:{(j%4)*1024} sc1')
    A(f's_mul_i32 s{sA2}, s{sB}, {PXM_S}')
    A(f's_lshl_b32 s{sT0}, s{sW}, 12')
    A(f's_add_u32 s{sA2}, s{sA2}, s{sT0}')
    A(f's_add_u32 s{sA2}, s{sA2}, {PXM_OFF}')
    for j in range(4):
        A(f'buffer_load_dwordx4 {v(PF+64+4*j,4)}, v1, {WS}, s{sA2} offen offset:{j*1024} sc1')
    A(f's_mul_i32 s{sA3}, s{sB}, {T_S}')
    A(f's_mul_i32 s{sT0}, s{sW}, 81920')
    A(f's_add_u32 s{sA3}, s{sA3}, s{sT0}')
    A(f's_add_u32 s{sA3}, s{sA3}, {TP_OFF}')
    def tile_loads(t):
        A(f's_add_u32 s{sT1}, s{sG}, {t}')
        A(f's_and_b32 s{sT0}, s{sT1}, 3')
        A(f's_mul_i32 s{sT0}, s{sT0}, 2560')
        A(f's_lshr_b32 s{sT1}, s{sT1}, 2')
        A(f's_lshl_b32 s{sT1}, s{sT1}, 8')
        A(f's_add_u32 s{sT0}, s{sT0}, s{sT1}')
        A(f's_add_u32 s{sT0}, s{sT0}, s{sA3}')
        A(f'buffer_load_dwordx4 {a(40*t+32,4)}, v2, {WS}, s{sT0} offen sc1')
        A(f's_add_u32 s{sT0}, s{sT0}, 40960')
        A(f'buffer_load_dwordx4 {a(40*t+36,4)}, v2, {WS}, s{sT0} offen sc1')
    for t in range(5): tile_loads(t)
    for kk in range(10):
        A(f's_waitcnt vmcnt({28 - 2*kk if kk < 8 else 0})')
        for t in range(5):
            for qt in range(2):
                d = v(ACC + 8 * t + 4 * qt, 4)
                A(f'v_mfma_f32_16x16x32_bf16 {d}, {a(40*t+4*kk,4)}, {v(PF+8*kk+4*qt,4)}, {"0" if kk == 0 else d}')
    A('s_barrier')
    for i in range(10):
        A(f'ds_write_b128 v5, {v(ACC+4*i,4)} offset:{i*1024}')
    A('s_waitcnt lgkmcnt(0)')
    A('s_barrier')
    A(f's_lshl_b32 s{sT0}, s{sW}, 10')
    A(f'v_add_u32 v6, s{sT0}, v1')
    for k in range(3):
        for p in range(4):
            A(f'ds_read_b128 {v(PF+16*k+4*p,4)}, v6 offset:{p*10240 + k*4096}')
    A(f's_lshl_b32 s{sA1}, s{sB}, 5')
    A(f's_and_b32 s{sT0}, s{sW}, 1')
    A(f's_lshl_b32 s{sT0}, s{sT0}, 4')
    A(f's_add_u32 s{sA1}, s{sA1}, s{sT0}')
    A(f's_mul_i32 s{sA1}, s{sA1}, 5120')
    A(f's_lshr_b32 s{sT0}, s{sW}, 1')
    A(f's_add_u32 s{sT0}, s{sT0}, s{sG}')
    A(f's_lshl_b32 s{sT0}, s{sT0}, 6')
    A(f's_add_u32 s{sA1}, s{sA1}, s{sT0}')
    A(f's_cmp_lt_u32 s{sW}, 2')
    A(f's_cselect_b32 s{sA2}, s{sA1}, 0x40000000')
    A('s_waitcnt lgkmcnt(0)')
    for k in range(3):
        b = PF + 16 * k
        for r in range(4):
            A(f'v_add_f32 v{b+r}, v{b+r}, v{b+4+r}')
            A(f'v_add_f32 v{b+8+r}, v{b+8+r}, v{b+12+r}')
        for r in range(4):
            A(f'v_add_f32 v{b+r}, v{b+r}, v{b+8+r}')
        A(f'buffer_store_dwordx4 {v(b,4)}, v3, s[{SRD_O}:{SRD_O+3}], s{sA1 if k < 2 else sA2} offen offset:{k*128}')
    A('s_waitcnt vmcnt(0)')
    rt_stamp(A, cfg, 0, 6)
    A(f's_branch {TOP}')
    A.label(END)
```

```python
from asmgen import *
from layout import *
from rec import rt_stamp, srd, Lg, SRD_WS, SRD_DBG, SRD_W1, SRD_W2, WS

SRD_X = 24
sW, sH, sR, sBLK, sT0, sT1, sT2 = 28, 29, 30, 31, 32, 33, 34
sM0W, sM0X = 35, 36
sWA, sWB = 37, 38
sXC, sXN = 39, 40
sOUT = 41
sBIT = 42
sLI, sBUD = 43, 44
sXB, sOUTB, sFIRST, sWB0 = 46, 47, 58, 59
SLOT = 40960
import os, json
EXP = json.loads(os.environ.get('EXP', '{}'))
NS = 4
vA0, vB, vX0, vWE, vXR, vOE, vST = 1, 4, 5, 9, 13, 21, 25
ACCA, ACCB, STG = 32, 128, 224

def mf(d, a_, b_, c): return f'v_mfma_f32_32x32x16_bf16 {d}, {a_}, {b_}, {c}'

class Pipe:
    def __init__(self, A, stages, ns, loop):
        self.A, self.stages, self.ns, self.loop = A, stages, ns, loop
    def prologue(self):
        A = self.A
        for st in self.stages[:self.ns]:
            for grp in st['dma'](False):
                for t in grp: A(t)
        n_after = sum(len(st['dma'](False)) for st in self.stages[1:self.ns])
        A(f's_waitcnt vmcnt({n_after})')
        A('s_barrier')
        for t, _ in self.stages[0]['steps'][0]['reads']: A(t)
    def body(self):
        A = self.A; S = self.stages; n = len(S); NS_ = self.ns
        flat = [(si, k) for si, st in enumerate(S) for k in range(len(st['steps']))]
        vq = [('dma', i) for i in range(1, NS_) for _ in S[i]['dma'](False)]
        pend = []
        lg = Lg(A)
        lg.q = [tg for _, tg in S[0]['steps'][0]['reads']]
        for j, (si, k) in enumerate(flat):
            step = S[si]['steps'][k]
            last = j + 1 == len(flat)
            nsi, nk = flat[(j + 1) % len(flat)]
            if nk == 0 and (self.loop or not last):
                idx = max(i for i, tg in enumerate(vq) if tg == ('dma', nsi))
                hook = S[nsi].get('hook')
                if hook:
                    idx = max([idx] + [i for i, tg in enumerate(vq) if tg == 'st'])
                lg.drain()
                A(f's_waitcnt vmcnt({min(63, len(vq) - 1 - idx)})')
                vq = [tg for tg in vq[:idx + 1] if tg not in ('st', ('dma', nsi))] + vq[idx + 1:]
                A('s_barrier')
                if hook: hook()
                tgt = si + NS_
                assert not pend
                if self.loop or tgt < n:
                    pend = [(grp, ('dma', tgt % n)) for grp in S[tgt % n]['dma'](tgt >= n)]
                    nmf = sum(len(S[a_]['steps'][b_]['mf']) for a_, b_ in [flat[(j + d) % len(flat)] for d in range(len(S[nsi]['steps']))])
                    dper = max(1, nmf // len(pend)); dcnt = 0
            reads = list(S[nsi]['steps'][nk]['reads']) if (self.loop or not last) else []
            if EXP.get('noread'): reads = []
            extra = list(step.get('fill', []))
            nm = len(step['mf'])
            rper = -(-len(reads) // max(1, nm - 1))
            eper = -(-len(extra) // nm)
            for i, (text, need) in enumerate(step['mf']):
                for tg in need: lg.wait(tg)
                if not EXP.get('nomfma'): A(text)
                for _ in range(rper):
                    if reads:
                        t, tg = reads.pop(0); lg.op(t, tg)
                if pend:
                    dcnt += 1
                    if dcnt % dper == 0:
                        grp, tg = pend.pop(0)
                        for t in grp: A(t)
                        vq.append(tg)
                for _ in range(eper):
                    if extra:
                        t = extra.pop(0); A(t)
                        if t.startswith('buffer_'): vq.append('st')
            for t in step.get('post', []):
                A(t)
                if t.startswith('buffer_'): vq.append('st')
        for grp, tg in pend:
            for t in grp: A(t)

def setup(A, vw):
    A(f's_load_dwordx2 s[4:5], s[0:1], {KA["ws"]}')
    A(f's_load_dwordx2 s[6:7], s[0:1], {KA["dbg"]}')
    A(f's_load_dwordx2 s[56:57], s[0:1], {KA["A_x"]}')
    A(f's_load_dwordx8 s[60:67], s[0:1], {KA["Wq"]}')
    A('v_lshrrev_b32 v30, 6, v0')
    A(f'v_readfirstlane_b32 s{sW}, v30')
    A('v_and_b32 v0, 63, v0')
    A('s_waitcnt lgkmcnt(0)')
    srd(A, SRD_WS, 4, WS_BYTES); srd(A, SRD_DBG, 6, 256); srd(A, SRD_X, 56, X_BYTES)
    if vw: srd(A, SRD_W1, 64, W_BYTES); srd(A, SRD_W2, 66, W_BYTES)
    else:
        A(f's_cmp_eq_u32 s{sR}, 1')
        A('s_cselect_b64 s[64:65], s[60:61], s[62:63]')
        A('s_cselect_b64 s[66:67], s[62:63], s[60:61]')
        srd(A, SRD_W1, 64, W_BYTES); srd(A, SRD_W2, 66, W_BYTES)
    for j in range(3):
        A(f'v_add_u32 v26, {64*j}, v0')
        A('v_mul_u32_u24 v27, 0xaaab, v26')
        A('v_lshrrev_b32 v27, 20, v27')
        A('v_mul_u32_u24 v28, 24, v27')
        A('v_sub_u32 v28, v26, v28')
        A('v_bfe_u32 v29, v27, 1, 1')
        A('v_lshlrev_b32 v29, 2, v29')
        A('v_xor_b32 v28, v28, v29')
        A('v_mul_u32_u24 v27, 12288, v27')
        A(f'v_lshl_add_u32 v{vA0+j}, v28, 4, v27')
    A('v_lshrrev_b32 v27, 3, v0')
    A('v_and_b32 v28, 7, v0')
    A('v_bfe_u32 v29, v27, 1, 1')
    A('v_lshlrev_b32 v29, 2, v29')
    A('v_xor_b32 v28, v28, v29')
    A('v_mul_u32_u24 v27, 1280, v27')
    A(f'v_lshl_add_u32 v{vB}, v28, 4, v27')
    for j in range(4):
        A('v_lshrrev_b32 v27, 3, v0')
        A(f'v_add_u32 v27, {8*j}, v27')
        A('v_bfe_u32 v29, v27, 1, 3')
        A('v_and_b32 v28, 7, v0')
        A('v_xor_b32 v28, v28, v29')
        if vw:
            A('v_bfe_u32 v29, v27, 2, 1')
            A('v_and_b32 v27, 3, v27')
            A('v_lshl_add_u32 v27, v29, 4, v27')
            A(f'v_add_u32 v27, {8*(j>>1) + 4*(j&1)}, v27')
        A('v_mul_u32_u24 v27, 1280, v27')
        A(f'v_lshl_add_u32 v{vX0+j}, v28, 4, v27')
    A('v_lshrrev_b32 v26, 5, v0')
    A('v_bfe_u32 v27, v0, 2, 2')
    A('v_bfe_u32 v28, v0, 4, 1')
    A('v_and_b32 v29, 3, v0')
    A('v_lshl_add_u32 v30, v26, 3, v27')
    A('v_mul_u32_u24 v30, 384, v30')
    A('v_and_b32 v31, 1, v29')
    A('v_lshl_add_u32 v30, v31, 5, v30')
    A('v_lshl_add_u32 v30, v28, 4, v30')
    A('v_lshrrev_b32 v31, 1, v29')
    A('v_lshl_add_u32 v30, v31, 3, v30')
    A('v_lshrrev_b32 v31, 1, v27')
    A('v_lshlrev_b32 v31, 6, v31')
    A(f'v_add_u32 v{vWE}, v30, v31')
    A('v_sub_u32 v30, v30, v31')
    A(f'v_add_u32 v{vWE+1}, 64, v30')
    A(f'v_add_u32 v{vWE+2}, {2*SLOT}, v{vWE}')
    A(f'v_add_u32 v{vWE+3}, {2*SLOT}, v{vWE+1}')
    A('v_lshl_add_u32 v30, v26, 4, v27')
    A('v_lshlrev_b32 v30, 7, v30')
    A('v_lshl_add_u32 v30, v28, 5, v30')
    A('v_lshl_add_u32 v30, v29, 3, v30')
    A(f'v_add_u32 v{vOE}, v30, v31')
    A('v_sub_u32 v30, v30, v31')
    A(f'v_add_u32 v{vOE+1}, 64, v30')
    A(f'v_add_u32 v{vOE+2}, {2*SLOT}, v{vOE}')
    A(f'v_add_u32 v{vOE+3}, {2*SLOT}, v{vOE+1}')
    A(f's_lshl_b32 s{sM0X}, s{sW}, 12')
    A(f's_add_u32 s{sM0X}, s{sM0X}, 24576')
    A(f's_mul_i32 s{sM0W}, s{sW}, 6144')
    A('v_and_b32 v27, 31, v0')
    A('v_bfe_u32 v28, v0, 1, 3')
    A('v_xor_b32 v28, v28, v26')
    A('v_lshlrev_b32 v27, 7, v27')
    A(f'v_add_u32 v27, s{sM0X}, v27')
    for ks in range(4):
        A(f'v_xor_b32 v29, {2*ks}, v28')
        A(f'v_lshl_add_u32 v{vXR+ks}, v29, 4, v27')
        A(f'v_add_u32 v{vXR+4+ks}, {2*SLOT}, v{vXR+ks}')
    A('v_bfe_u32 v28, v0, 4, 1')
    A(f'v_lshlrev_b32 v{vST}, {14 if vw else 10}, v28')
    A('v_and_b32 v28, 15, v0')
    A(f'v_lshl_add_u32 v{vST}, v28, 4, v{vST}')
    A(f'v_lshl_add_u32 v{vST}, v26, 9, v{vST}')
    A(f's_mul_i32 s{sWA}, s{sW}, {16*12288}')
    A(f's_mul_i32 s{sT0}, s{sH}, 384')
    A(f's_add_u32 s{sWA}, s{sWA}, s{sT0}')
    A(f's_mul_i32 s{sWB}, s{sW}, {48*1280}')
    A(f's_mul_i32 s{sT0}, s{sH}, {192*1280}')
    A(f's_add_u32 s{sWB}, s{sWB}, s{sT0}')
    A(f's_lshl_b32 s{sBIT}, 1, s{sH}')
    A(f's_mov_b32 s{sBLK}, s{sR}')

def seg_of(A, blk):
    A(f's_lshl_b32 s{sT0}, s{blk}, 2')
    A(f's_add_u32 s{sT0}, s{sT0}, s{sW}')

def vw_offsets(A):
    seg_of(A, sBLK)
    A(f's_mul_i32 s{sXC}, s{sT0}, {32*1280}')
    A(f's_add_u32 s{sXN}, s{sXC}, {3*128*1280}')
    A(f's_mul_i32 s{sOUT}, s{sT0}, {VW_S}')
    A(f's_lshr_b32 s{sT1}, s{sH}, 4')
    A(f's_mul_i32 s{sT1}, s{sT1}, {VW_X}')
    A(f's_add_u32 s{sOUT}, s{sOUT}, s{sT1}')
    A(f's_and_b32 s{sT1}, s{sH}, 15')
    A(f's_lshl_b32 s{sT1}, s{sT1}, 10')
    A(f's_add_u32 s{sOUT}, s{sOUT}, s{sT1}')
    A(f's_add_u32 s{sOUT}, s{sOUT}, {VW_OFF}')

def kq_offsets(A):
    for d, sx, so in ((0, sXC, sOUT), (3, sXB, sOUTB)):
        A(f's_add_u32 s{sT2}, s{sBLK}, {d}')
        A(f's_lshr_b32 s{sT1}, s{sT2}, 1')
        seg_of(A, sT1)
        A(f's_mul_i32 s{sx}, s{sT0}, {32*1280}')
        A(f's_mul_i32 s{so}, s{sT0}, {KQ_S}')
        A(f's_mul_i32 s{sT1}, s{sH}, {KQ_SH}')
        A(f's_add_u32 s{so}, s{so}, s{sT1}')
        A(f's_and_b32 s{sT1}, s{sT2}, 1')
        A(f's_mul_i32 s{sT1}, s{sT1}, 12288')
        A(f's_add_u32 s{so}, s{so}, s{sT1}')
    A(f's_add_u32 s{sXN}, s{sXC}, {3*128*1280}')

def proj_stages(first_slot, first_step, srdw, acc, sx=sXC):
    stages = []
    for kc in range(10):
        slot = (first_slot + kc) % NS
        def dma(nxt, kc=kc, slot=slot):
            g = []
            for j in range(6):
                g.append([f's_add_u32 m0, s{sM0W}, {slot*SLOT + j*1024}',
                          f's_add_u32 s{sT0}, s{sWA}, {(kc*64 + (j//3)*8)*12288}',
                          f'buffer_load_dwordx4 v{vA0+j%3}, s[{srdw}:{srdw+3}], s{sT0} offen lds'])
            for j in range(4):
                g.append([f's_add_u32 m0, s{sM0X}, {slot*SLOT + j*1024}',
                          f's_add_u32 s{sT0}, s{sXN if nxt else sx}, {kc*128}',
                          f'buffer_load_dwordx4 v{vX0+j}, s[{SRD_X}:{SRD_X+3}], s{sT0} offen lds'])
            return g
        steps = []
        for ks in range(4):
            fb = 28 * ((first_step + 4 * kc + ks) % 2)
            so = (slot & 1) * SLOT; hi = slot >> 1
            reads = [(f'ds_read_b128 {a(fb+24,4)}, v{vXR+4*hi+ks} offset:{so}', ('x', fb))]
            for T in range(6):
                for rd in range(2):
                    reads.append((f'ds_read_b64_tr_b16 {a(fb+4*T+2*rd,2)}, v{vWE+2*hi+(T&1)} offset:{so + (16*ks+4*rd)*384 + (T>>1)*128}', ('w', fb, T)))
            mfs = []
            for T in range(6):
                d = v(acc + 16 * T, 16)
                mfs.append((mf(d, a(fb + 4 * T, 4), a(fb + 24, 4), '0' if (kc, ks) == (0, 0) else d), [('w', fb, T)]))
            steps.append(dict(reads=reads, mf=mfs))
        stages.append(dict(dma=dma, steps=steps))
    return stages

def pack_store(acc16, stg, u, soff, imm):
    out = [f'v_cvt_pk_bf16_f32 v{stg+i}, v{acc16+8*u+2*i}, v{acc16+8*u+2*i+1}' for i in range(4)]
    if not EXP.get('nostore'): out.append(f'buffer_store_dwordx4 {v(stg,4)}, v{vST}, {WS}, s{soff} offen offset:{imm}{EXP.get("stfl", " sc1")}')
    return out

def kq_epilogue(acc, sout, sreg):
    out = []
    for T in range(6):
        for u in range(2):
            pre = [f's_add_u32 s{sreg}, s{sout}, {(T>>1)*4096}'] if (T % 2 == 0 and u == 0) else []
            out.append(pre + pack_store(acc + 16 * T, STG + 4 * ((2 * T + u) % 8), u, sreg, u * 256 + (T & 1) * 2048))
    return out

def signal(A, vw, d=0):
    sk = A.newlabel('pub')
    A(f's_cmp_lg_u32 s{sW}, 0')
    A(f's_cbranch_scc1 {sk}')
    if vw:
        A(f's_lshr_b32 s{sT0}, s{sH}, 4')
        A(f's_lshl_b32 s{sT1}, s{sBLK}, 1')
        A(f's_add_u32 s{sT0}, s{sT0}, s{sT1}')
        A(f's_and_b32 s{sT1}, s{sT0}, 3')
        A(f's_lshl_b32 s{sT1}, s{sT1}, 3')
        A(f's_lshl_b32 s{sT1}, 1, s{sT1}')
        A(f's_and_b32 s{sT0}, s{sT0}, 0xfc')
        A(f's_add_u32 s{sT0}, s{sT0}, {DBG_VCNT}')
        A(f'v_mov_b32 v26, s{sT1}')
    else:
        A(f's_add_u32 s{sT0}, s{sBLK}, {d}')
        A(f's_lshl_b32 s{sT0}, s{sT0}, 2')
        A(f's_add_u32 s{sT0}, s{sT0}, {DBG_MASK}')
        A(f'v_mov_b32 v26, s{sBIT}')
    A('s_mov_b64 exec, 1')
    A(f'buffer_atomic_add v26, off, s[{SRD_DBG}:{SRD_DBG+3}], s{sT0} sc1')
    A('s_mov_b64 exec, -1')
    A.label(sk)

def worker(A, cfg, vw, done_label, nrep=3):
    setup(A, vw)
    rt_stamp(A, cfg, 0, 26, first=True)
    EXIT = A.newlabel('wexit'); PRO = A.newlabel('wpro')
    if vw:
        st = proj_stages(0, 0, SRD_W1, ACCA)
        VP, PACC = ACCB, ACCB + 48
        st[-1]['steps'][-1]['post'] = [f'v_cvt_pk_bf16_f32 v{VP+i}, v{ACCA+2*i}, v{ACCA+2*i+1}' for i in range(48)]
        pend_epi = []
        for c in range(10):
            slot = (10 + c) % NS
            def dma(nxt, c=c, slot=slot):
                return [[f's_add_u32 m0, s{sM0W}, {slot*SLOT + j*1024}',
                         f's_add_u32 s{sT0}, s{sWB}, {c*128 + j*8*1280}',
                         f'buffer_load_dwordx4 v{vB}, s[{SRD_W2}:{SRD_W2+3}], s{sT0} offen lds'] for j in range(6)]
            steps = []
            for q in range(4):
                ct, half = q >> 1, q & 1
                fb = 28 * (q % 2)
                so = (slot & 1) * SLOT; hi = slot >> 1
                d = v(PACC + 16 * ct, 16)
                reads, mfs = [], []
                for i in range(6):
                    kk = 6 * half + i; T, u = kk >> 1, kk & 1
                    for rd in range(2):
                        reads.append((f'ds_read_b64_tr_b16 {a(fb+4*i+2*rd,2)}, v{vOE+2*hi+ct} offset:{so + (32*T+8*u+4*rd)*128}', ('w', fb, i)))
                    mfs.append((mf(d, v(VP + 4 * kk, 4), a(fb + 4 * i, 4), '0' if kk == 0 else d), [('w', fb, i)]))
                step = dict(reads=reads, mf=mfs)
                if half == 1 and pend_epi: pass
                steps.append(step)
            st.append(dict(dma=dma, steps=steps))
        flat = [(c, q) for c in range(10) for q in range(4)]
        for n in range(20):
            epi = [f's_add_u32 s{sT2}, s{sOUT}, {n*32768}']
            for u in range(2): epi += pack_store(PACC + 16 * (n & 1), STG + 4 * ((2 * n + u) % 8), u, sT2, u * 256)
            if n < 19:
                c, q = flat[2 * (n + 1) + 1]
                st[10 + c]['steps'][q]['fill'] = epi
            else:
                st[19]['steps'][3]['post'] = epi
        st[15]['steps'][1]['post'] = [f's_cmp_lg_u32 s{sFIRST}, 0', f's_cbranch_scc1 {EXIT}']
        A(f's_lshr_b32 s{sBLK}, s{sR}, 1')
        A(f's_xor_b32 s{sFIRST}, s{sBLK}, 1')
        vw_offsets(A)
        A(f's_mov_b32 s{sWB0}, s{sWB}')
        A(f's_and_b32 s{sT1}, s{sR}, 1')
        A(f's_mul_i32 s{sT0}, s{sT1}, {5*128}')
        A(f's_add_u32 s{sWB}, s{sWB}, s{sT0}')
        A(f's_mul_i32 s{sT0}, s{sT1}, {10*32768}')
        A(f's_add_u32 s{sOUT}, s{sOUT}, s{sT0}')
    else:
        st = proj_stages(0, 0, SRD_W1, ACCA) + proj_stages(10, 40, SRD_W2, ACCB, sXB)
        epi = kq_epilogue(ACCA, sOUT, sT2)
        for i in range(6):
            st[10 + (i + 1) // 4]['steps'][(i + 1) % 4]['fill'] = epi[2 * i] + epi[2 * i + 1]
        st[19]['steps'][3]['post'] = [t for e in kq_epilogue(ACCB, sOUTB, sT2) for t in e]
        def hookA():
            signal(A, False, 0)
            rt_stamp(A, cfg, 0, 26)
            A(f's_cmp_ge_u32 s{sBLK}, 29')
            A(f's_cbranch_scc1 {EXIT}')
        st[13]['hook'] = hookA
        kq_offsets(A)
    P = Pipe(A, st, NS, True)
    A.label(PRO)
    P.prologue()
    TOP = A.newlabel('wtop')
    A.label(TOP)
    P.body()
    A('s_waitcnt vmcnt(0)')
    A('s_barrier')
    signal(A, vw, 3)
    rt_stamp(A, cfg, 0, 26)
    A(f's_add_u32 s{sBLK}, s{sBLK}, {3 if vw else 6}')
    (vw_offsets if vw else kq_offsets)(A)
    A(f's_cmp_lt_u32 s{sBLK}, {16 if vw else 32}')
    A(f's_cbranch_scc1 {TOP}')
    A('s_waitcnt lgkmcnt(0)')
    A(f's_branch {done_label}')
    A.label(EXIT)
    A('s_waitcnt vmcnt(0) lgkmcnt(0)')
    A('s_barrier')
    if vw:
        signal(A, True)
        rt_stamp(A, cfg, 0, 26)
        A(f's_mov_b32 s{sFIRST}, 0')
        A(f's_mov_b32 s{sWB}, s{sWB0}')
        A(f's_add_u32 s{sBLK}, s{sR}, 2')
        vw_offsets(A)
        A(f's_branch {PRO}')
    else:
        A(f's_branch {done_label}')

def worker_entry(A, cfg, done_label):
    A('s_and_b32 s32, s2, 7')
    A('s_sub_u32 s32, s32, 2')
    A('s_lshl_b32 s32, s32, 5')
    A('s_lshr_b32 s33, s2, 3')
    A('s_add_u32 s32, s32, s33')
    A(f's_mov_b32 s{sLI}, s32')
    A(f's_mov_b32 s{sBUD}, 0x40000')
    A('s_mul_i32 s33, s32, 0xaaab')
    A('s_lshr_b32 s33, s33, 17')
    A('s_mul_i32 s34, s33, 3')
    A(f's_sub_u32 s{sR}, s32, s34')
    A(f's_lshr_b32 s{sH}, s33, 1')
    if EXP.get('samehead'): A(f's_mov_b32 s{sH}, 0')
    VW = A.newlabel('role_vw')
    A('s_bitcmp1_b32 s33, 0')
    A(f's_cbranch_scc1 {VW}')
    worker(A, cfg, False, done_label)
    A.label(VW)
    worker(A, cfg, True, done_label)
```
